```python
import torch

def _softmax(x, axis=-1):
    return torch.softmax(x, dim=axis)
def _gelu(x):
    return torch.nn.functional.gelu(x, approximate="tanh")
def _silu(x):
    return torch.nn.functional.silu(x)
def _sigmoid(x):
    return torch.sigmoid(x)
def _layernorm(x, axis=-1, eps=1e-5):
    m = x.mean(dim=axis, keepdim=True)
    v = x.var(dim=axis, keepdim=True, unbiased=False)
    return (x - m) / torch.sqrt(v + eps)
def _scatter_add(tgt, idx, src, axis=0):
    return tgt.clone().index_add_(axis, idx, src)
def _segment_sum(src, seg, n):
    out = torch.zeros((n,) + src.shape[1:], dtype=src.dtype)
    return out.index_add_(0, seg, src)
def _pad(x, pw):
    flat = tuple(v for pair in reversed(pw) for v in pair)
    return torch.nn.functional.pad(x, flat)

kernel_name = 'gated_mix__ssm_conv_s4d__moe_arch_mod__prompt'

def setup_inputs():

    _w = (lambda a: (lambda t: t.to(torch.bfloat16) if t.is_floating_point() else t)(torch.as_tensor(a)))
    def _A_setup():
        Bsz, L, D, N = 1, 2048, 1024, 128
        return {
            "u": _w((lambda *s: torch.randn(*s, dtype=torch.bfloat16) * 0.05)(Bsz, L, D)),
            "log_A_real": _w((lambda *s: torch.randn(*s, dtype=torch.bfloat16) * 6.4)(D, N) * 0.5),
            "A_imag": _w((lambda *s: torch.randn(*s, dtype=torch.bfloat16) * 0.1)(D, N) * 3.14),
            "C_real": _w((lambda *s: torch.randn(*s, dtype=torch.bfloat16) * 0.4)(D, N) / N ** 0.5),
            "C_imag": _w((lambda *s: torch.randn(*s, dtype=torch.bfloat16) * 0.4)(D, N) / N ** 0.5),
            "log_dt": _w((lambda *s: torch.randn(*s, dtype=torch.bfloat16) * 0.1)(D) * 0.5 - 4.0),
            "D_skip": _w((lambda *s: torch.randn(*s, dtype=torch.bfloat16) * 0.1)(D)),
        }
    _A_in = _A_setup()

    def _B_setup():
        B, S, D, F, C = 1, 2048, 1024, 3584, 8
        return {
            "x": _w((lambda *s: torch.randn(*s, dtype=torch.bfloat16) * 0.05)(B, S, D)),
            "w_r": _w((lambda *s: torch.randn(*s, dtype=torch.bfloat16) * 6.4)(D)),
            "w_gate": _w((lambda *s: torch.randn(*s, dtype=torch.bfloat16) * 0.1)(D, F)),
            "w_up": _w((lambda *s: torch.randn(*s, dtype=torch.bfloat16) * 0.1)(D, F)),
            "w_down": _w((lambda *s: torch.randn(*s, dtype=torch.bfloat16) * 0.1)(F, D)),
        }
    _B_in = _B_setup()

    return {
        "A_u": _A_in["u"],
        "A_log_A_real": _A_in["log_A_real"],
        "A_A_imag": _A_in["A_imag"],
        "A_C_real": _A_in["C_real"],
        "A_C_imag": _A_in["C_imag"],
        "A_log_dt": _A_in["log_dt"],
        "A_D_skip": _A_in["D_skip"],
        "B_x": _B_in["x"],
        "B_w_r": _B_in["w_r"],
        "B_w_gate": _B_in["w_gate"],
        "B_w_up": _B_in["w_up"],
        "B_w_down": _B_in["w_down"],
        "gate_w": _w((lambda *s: torch.randn(*s, dtype=torch.bfloat16) * 0.05)(1024) * 16.0),
    }

def reference(A_u, A_log_A_real, A_A_imag, A_C_real, A_C_imag, A_log_dt, A_D_skip, B_x, B_w_r, B_w_gate, B_w_up, B_w_down, gate_w):
    def _A_ref(u, log_A_real, A_imag, C_real, C_imag, log_dt, D_skip):
        L = u.shape[1]
        dt = torch.exp(log_dt)
        A = -torch.exp(log_A_real) + 1j * A_imag
        C = (C_real + 1j * C_imag) * dt[:, None]
        pos = (lambda x, dt: x.to(dt))(torch.arange(L), log_dt.dtype)
        P = torch.exp((A * dt[:, None])[:, :, None] * pos[None, None, :])
        K = 2.0 * torch.einsum("dn,dnl->dl", C, P).real
        L2 = 2 * L
        u_t = (lambda x, *d: x.permute(*d))(u, 0, 2, 1)
        Kf = (lambda x, *a, **k: torch.fft.rfft(x.float(), *a, **k))(K, L2)
        Uf = (lambda x, *a, **k: torch.fft.rfft(x.float(), *a, **k))(u_t, L2)
        y = (lambda x, *a, **k: torch.fft.irfft(x, *a, **k).to(torch.bfloat16))(Uf * Kf[None, :, :], L2)[:, :, :L]
        y = (lambda x, *d: x.permute(*d))(y, 0, 2, 1)
        return y + u * D_skip[None, None, :]

    def _B_ref(x, w_r, w_gate, w_up, w_down):
        B, S, D = x.shape
        C = 8
        r = x @ w_r
        idx = torch.argsort(-r, axis=-1)[:, :C]
        idx_e = (lambda x, n, axis: torch.repeat_interleave(x, n, dim=axis))(idx.reshape(B, C, 1), D, axis=2)
        x_sel = (lambda x, i, axis: torch.take_along_dim(x, i, dim=axis))(x, idx_e, axis=1)
        g = _silu(x_sel @ w_gate)
        u = x_sel @ w_up
        y = (g * u) @ w_down
        r_sel = _sigmoid((lambda x, i, axis: torch.take_along_dim(x, i, dim=axis))(r, idx, axis=1))
        y = y * r_sel.reshape(B, C, 1)
        b_off = (torch.arange(B) * S).reshape(B, 1)
        flat_idx = (idx + b_off).reshape(B * C)
        zero = (x * 0.0).reshape(B * S, D)
        upd = _scatter_add(zero, flat_idx, y.reshape(B * C, D), axis=0)
        return x + upd.reshape(B, S, D)

    x = A_u
    g = _sigmoid((x * gate_w).sum(-1, keepdims=True))
    a = _A_ref(x, A_log_A_real, A_A_imag, A_C_real, A_C_imag, A_log_dt, A_D_skip)
    b = _B_ref(x, B_w_r, B_w_gate, B_w_up, B_w_down)
    return g * a + (1 - g) * b
```

```python
KN = "gated_mix__ssm_conv_s4d__moe_arch_mod__prompt_kernel"

class Asm:
    def __init__(self):
        self.lines = []
        self.nlab = 0
    def __call__(self, s):
        for l in s.split("\n"):
            l = l.strip()
            if not l:
                continue
            if l.endswith(":") or l.startswith("."):
                self.lines.append(l)
            else:
                self.lines.append("    " + l)
    def label(self, p="L"):
        self.nlab += 1
        return f"{p}_{self.nlab}"
    def text(self):
        return "\n".join(self.lines) + "\n"
    def srd(self, d, base, nbytes):
        self(f"s_mov_b32 s{d}, s{base}")
        self(f"s_mov_b32 s{d+1}, s{base+1}")
        self(f"s_mov_b32 s{d+2}, {nbytes}")
        self(f"s_mov_b32 s{d+3}, 0x00020000")

def header(launch_lines):
    return "\n".join(launch_lines) + '\n.amdgcn_target "amdgcn-amd-amdhsa--gfx950"\n.text\n'

def kstart(name):
    return f".globl {name}\n.p2align 8\n.type {name},@function\n{name}:\n"

def kdesc(name, vgpr, sgpr=102, accum=None):
    if accum is None:
        accum = (vgpr + 3) // 4 * 4
    return f""".amdhsa_kernel {name}
  .amdhsa_next_free_vgpr {vgpr}
  .amdhsa_next_free_sgpr {sgpr}
  .amdhsa_accum_offset {accum}
  .amdhsa_group_segment_fixed_size 0
  .amdhsa_kernarg_size 128
  .amdhsa_user_sgpr_count 2
  .amdhsa_user_sgpr_kernarg_segment_ptr 1
  .amdhsa_system_sgpr_workgroup_id_x 1
.end_amdhsa_kernel
"""
RODATA = '.section .rodata,"a"\n.p2align 6\n'
```

```python
import sys
sys.path.insert(0, "exp")
from asmlib import *

LOG2E = "0x3fb8aa3b"
INV2PI = "0x3e22f983"

WS_RG   = 0x10000
WS_SEL  = 0x20000
WS_PRE  = 0x100000
WS_PART = 0x200000

S_X, S_LA, S_AI, S_CR, S_CI, S_LDT, S_DSK = 16, 18, 20, 22, 24, 26, 28
S_WR, S_WG, S_WU, S_WD, S_GW, S_OUT, S_DBG, S_WS = 32, 34, 36, 38, 40, 42, 44, 46
SRD_X, SRD_OUT, SRD_WS, SRD_WD = 48, 52, 56, 60

def vr(a, n=1):
    return f"v{a}" if n == 1 else f"v[{a}:{a+n-1}]"
def sr(a, n=1):
    return f"s{a}" if n == 1 else f"s[{a}:{a+n-1}]"

def prologue(a, nwg, endlab):
    a(f"s_cmp_ge_u32 s2, {nwg}")
    a(f"s_cbranch_scc1 {endlab}")
    a("s_load_dwordx16 s[16:31], s[0:1], 0")
    a("s_load_dwordx16 s[32:47], s[0:1], 64")
    a("v_lshrrev_b32 v2, 6, v0")
    a("v_and_b32 v1, 63, v0")
    a("v_readfirstlane_b32 s3, v2")

def cmul(d, s, w, t):
    return [f"v_pk_mul_f32 {vr(t,2)}, {vr(s,2)}, {vr(w,2)} op_sel:[0,0] op_sel_hi:[0,1]",
            f"v_pk_fma_f32 {vr(d,2)}, {vr(s,2)}, {vr(w,2)}, {vr(t,2)} op_sel:[1,1,0] op_sel_hi:[1,0,1] neg_lo:[0,1,0]"]

def sigmoid(a, dst, src, tmp):
    a(f"v_mul_f32 {vr(tmp)}, 0xbfb8aa3b, {vr(src)}")
    a(f"v_exp_f32 {vr(tmp)}, {vr(tmp)}")
    a("s_nop 0")
    a(f"v_add_f32 {vr(tmp)}, 1.0, {vr(tmp)}")
    a(f"v_rcp_f32 {vr(dst)}, {vr(tmp)}")
    a("s_nop 0")
```

```python
from blocks import *

def k_rows():
    a = Asm()
    prologue(a, 256, "L1_end")
    a("v_lshlrev_b32 v3, 4, v1")
    a("s_lshl_b32 s4, s2, 2")
    a("s_add_u32 s4, s4, s3")
    a("s_lshl_b32 s5, s4, 12")
    a("v_add_u32 v4, s5, v3")
    a("s_waitcnt lgkmcnt(0)")
    for i in range(4):
        a(f"global_load_dwordx4 {vr(12+4*i,4)}, v4, {sr(S_X,2)} offset:{i*1024}")
    for i in range(2):
        a(f"global_load_dwordx4 {vr(28+4*i,4)}, v3, {sr(S_WR,2)} offset:{i*1024}")
        a(f"global_load_dwordx4 {vr(36+4*i,4)}, v3, {sr(S_GW,2)} offset:{i*1024}")
    for r in range(4):
        a(f"v_mov_b32 v{8+r}, 0")
    a("s_waitcnt vmcnt(0)")
    for i in range(8):
        a(f"v_dot2_f32_bf16 v8, v{12+i}, v{28+i}, v8")
        a(f"v_dot2_f32_bf16 v9, v{20+i}, v{28+i}, v9")
        a(f"v_dot2_f32_bf16 v10, v{12+i}, v{36+i}, v10")
        a(f"v_dot2_f32_bf16 v11, v{20+i}, v{36+i}, v11")
    a("s_nop 2")
    for st in ("row_shr:1 row_mask:0xf bank_mask:0xf bound_ctrl:0", "row_shr:2 row_mask:0xf bank_mask:0xf bound_ctrl:0",
               "row_shr:4 row_mask:0xf bank_mask:0xf bound_ctrl:0", "row_shr:8 row_mask:0xf bank_mask:0xf bound_ctrl:0",
               "row_bcast:15 row_mask:0xa bank_mask:0xf", "row_bcast:31 row_mask:0xc bank_mask:0xf"):
        for r in range(4):
            a(f"v_add_f32_dpp v{8+r}, v{8+r}, v{8+r} {st}")
    a("v_cvt_pk_bf16_f32 v12, v8, v9")
    a("v_cvt_pk_bf16_f32 v13, v10, v11")
    a("v_lshlrev_b32 v14, 16, v13")
    a("v_and_b32 v15, 0xffff0000, v13")
    sigmoid(a, 14, 14, 16)
    sigmoid(a, 15, 15, 17)
    a("v_cvt_pk_bf16_f32 v13, v14, v15")
    a("v_lshlrev_b32 v14, 16, v12")
    a("v_ashrrev_i32 v16, 31, v14")
    a("v_ashrrev_i32 v17, 31, v12")
    a("v_or_b32 v16, 0x80000000, v16")
    a("v_or_b32 v17, 0x80000000, v17")
    a("v_xor_b32 v14, v14, v16")
    a("v_xor_b32 v15, v12, v17")
    a("s_mov_b32 s6, 0x07060100")
    a("s_mov_b32 s7, 0x07060302")
    a("v_perm_b32 v8, v14, v13, s6")
    a("v_perm_b32 v10, v15, v13, s7")
    a("v_mov_b32 v9, 0")
    a("v_mov_b32 v11, 0")
    a("s_lshl_b32 s5, s4, 4")
    a(f"s_add_u32 s5, s5, {WS_RG}")
    a("v_mov_b32 v4, s5")
    a("s_mov_b32 exec_lo, 0")
    a("s_mov_b32 exec_hi, 0x80000000")
    a(f"global_store_dwordx4 v4, v[8:11], {sr(S_WS,2)}")
    a("L1_end:")
    a("s_endpgm")
    return a.text()

ROWB = 528
REG_W = 32 * ROWB
UB0 = 4 * REG_W
UST = 4608
LDS_CONV = UB0 + 4 * UST
KE_OFF = 32
KO_OFF = 32 + 4096 + 64

def k_conv():
    a = Asm()
    prologue(a, 256, "L2_end")
    a("s_and_b32 s4, s2, 7")
    a("s_lshl_b32 s4, s4, 7")
    a("s_lshr_b32 s5, s2, 3")
    a("s_lshl_b32 s5, s5, 2")
    a("s_add_u32 s4, s4, s5")
    a("s_add_u32 s5, s4, s3")
    a("s_lshl_b32 s6, s5, 8")
    a("v_lshl_add_u32 v3, v1, 2, s6")
    a("s_lshl_b32 s6, s5, 1")
    a("v_mov_b32 v4, s6")
    a("v_lshlrev_b32 v5, 14, v0")
    a("s_lshl_b32 s7, s4, 1")
    a("s_waitcnt lgkmcnt(0)")
    P = 26
    for i, s in enumerate((S_LA, S_AI, S_CR, S_CI)):
        a(f"global_load_dword v{P+i}, v3, {sr(s,2)}")
    a(f"global_load_ushort v30, v4, {sr(S_LDT,2)}")
    a(f"global_load_ushort v31, v4, {sr(S_DSK,2)}")
    a.srd(SRD_X, S_X, 4194304)
    a.srd(SRD_OUT, S_OUT, 4194304)
    U = 10
    for e in range(8):
        if e % 2 == 0:
            a(f"s_add_u32 s{8+e//2}, s7, {e*2048}")
        a(f"buffer_load_dwordx2 {vr(U+2*e,2)}, v5, {sr(SRD_X,4)}, s{8+e//2} offen offset:{(e%2)*2048}")
    GG = 200
    a(f"v_lshlrev_b32 v6, 6, v0")
    a(f"v_add_u32 v6, {WS_RG}, v6")
    for i in range(4):
        a(f"global_load_dwordx4 {vr(GG+4*i,4)}, v6, {sr(S_WS,2)} offset:{16*i}")
    a(f"s_mul_i32 s12, s3, {REG_W}")
    a("v_lshl_add_u32 v6, v1, 3, s12")
    a(f"s_mul_i32 s13, s3, {UST}")
    a(f"s_add_u32 s13, s13, {UB0}")
    a("v_lshl_add_u32 v7, v1, 3, s13")
    a("v_mov_b32 v8, 0")
    a("v_mov_b32 v9, 0")
    a("ds_write_b64 v7, v[8:9] offset:4096")
    W1, W8, W256 = (36, 38), (40, 42), (44, 46)
    G0 = (48, 50)
    a("s_waitcnt vmcnt(12)")
    a("v_lshlrev_b32 v30, 16, v30")
    a(f"v_mul_f32 v30, {LOG2E}, v30")
    a("v_lshlrev_b32 v32, 16, v26")
    a("v_and_b32 v34, 0xffff0000, v26")
    a("v_exp_f32 v30, v30")
    a(f"v_mul_f32 v32, {LOG2E}, v32")
    a(f"v_mul_f32 v34, {LOG2E}, v34")
    a("v_cvt_pk_bf16_f32 v30, v30, v30")
    a("v_exp_f32 v32, v32")
    a("v_exp_f32 v34, v34")
    a("v_lshlrev_b32 v30, 16, v30")
    a("v_lshlrev_b32 v31, 16, v31")
    a("v_cvt_pk_bf16_f32 v34, v32, v34")
    a(f"v_mul_f32 v52, 0xbfb8aa3b, v30")
    a(f"v_mul_f32 v53, {INV2PI}, v30")
    a("v_add_f32 v54, v30, v30")
    a("v_lshlrev_b32 v32, 16, v34")
    a("v_and_b32 v34, 0xffff0000, v34")
    a("v_lshlrev_b32 v33, 16, v27")
    a("v_and_b32 v35, 0xffff0000, v27")
    a("v_mul_f32 v32, v32, v52")
    a("v_mul_f32 v34, v34, v52")
    a("v_mul_f32 v33, v33, v53")
    a("v_mul_f32 v35, v35, v53")
    a(f"v_lshlrev_b32 v{G0[0]}, 16, v28")
    a(f"v_and_b32 v{G0[1]}, 0xffff0000, v28")
    a(f"v_lshlrev_b32 v{G0[0]+1}, 16, v29")
    a(f"v_and_b32 v{G0[1]+1}, 0xffff0000, v29")
    for r in (G0[0], G0[0]+1, G0[1], G0[1]+1):
        a(f"v_mul_f32 v{r}, v{r}, v54")
    for sc, W in (("0x41000000", W8), ("0x43800000", W256), ("1.0", W1)):
        for m in range(2):
            a(f"v_mul_f32 v{56+2*m}, {sc}, v{32+2*m}")
            a(f"v_mul_f32 v{57+2*m}, {sc}, v{33+2*m}")
        for m in range(2):
            a(f"v_exp_f32 v{56+2*m}, v{56+2*m}")
            a(f"v_fract_f32 v{57+2*m}, v{57+2*m}")
        for m in range(2):
            a(f"v_cos_f32 v{W[m]}, v{57+2*m}")
            a(f"v_sin_f32 v{W[m]+1}, v{57+2*m}")
        a("s_nop 0")
        for m in range(2):
            a(f"v_mul_f32 v{W[m]}, v{W[m]}, v{56+2*m}")
            a(f"v_mul_f32 v{W[m]+1}, v{W[m]+1}, v{56+2*m}")
    T = (60, 62)
    PK = (64, 66)
    def run_steps(steps, neg):
        pend = None
        n = "-" if neg else ""
        k = 0
        for (dst, src, w, row) in steps + [(None, None, None, None)]:
            if dst is not None and w is not None:
                x = cmul(dst[0], src[0], w[0], T[0]); y = cmul(dst[1], src[1], w[1], T[1])
            else:
                x = y = [None, None]
            p = PK[k % 2]
            seq = [x[0], y[0],
                   f"v_cvt_pk_bf16_f32 v{p}, v{pend[0][0]}, {n}v{pend[0][0]+1}" if pend else None,
                   x[1], y[1],
                   f"v_cvt_pk_bf16_f32 v{p+1}, v{pend[0][1]}, {n}v{pend[0][1]+1}" if pend else None,
                   f"ds_write_b64 v6, {vr(p,2)} offset:{pend[1]*ROWB}" if pend else None]
            for s in seq:
                if s: a(s)
            if pend: k += 1
            pend = (dst, row) if (dst is not None and row is not None) else None
    a("v_mov_b32 v68, 0x3f80")
    a("v_mov_b32 v69, 0x3f80")
    a("ds_write_b64 v6, v[68:69]")
    EA, EB = (70, 72), (74, 76)
    steps = [(W8, None, None, 1)]
    cur = W8
    for b in range(2, 32):
        nxt = EA if b % 2 == 0 else EB
        steps.append((nxt, cur, W8, b))
        cur = nxt
    run_steps(steps, False)
    EOP = 128
    a("v_and_b32 v8, 31, v1")
    a(f"v_mul_u32_u24 v8, {ROWB}, v8")
    a("v_lshrrev_b32 v9, 5, v1")
    a("v_lshl_add_u32 v9, v9, 4, s12")
    a("v_add_u32 v8, v8, v9")
    for s in range(16):
        a(f"ds_read_b128 {vr(EOP+4*s,4)}, v8 offset:{32*s}")
    def drow(r, h): return 8*(r//4) + 4*h + (r % 4)
    want = {}
    def put(al, r, h): want.setdefault(al, []).append(drow(r, h))
    for h in range(2):
        for j in range(4): put(4*h + j, j, h)
        for j in range(3): put(256 + 4*h + 2*j, 4 + j, h)
        for j in range(3): put(512 + 256*h + 4*j, 7 + j, h)
        for q in range(2):
            for j in range(2): put(1024 + 512*h + 256*q + 8*j, 10 + 2*q + j, h)
    regs = {}
    nxt = [80]
    def newp():
        p = (nxt[0], nxt[0] + 2); nxt[0] += 4; return p
    regs[0] = G0
    keep = {al: newp() for al in (2, 4, 6, 8)}
    tA, tB = newp(), newp()
    steps = []
    def st(al, dst, src, w):
        rows = want.get(al, [])
        steps.append((dst, src, w, rows[0] if rows else None))
        for extra in rows[1:]:
            steps.append((dst, None, None, extra))
    st(0, G0, None, None)
    cur = G0
    for al in range(1, 9):
        d = keep.get(al) or (tA if al % 4 == 1 else tB)
        st(al, d, cur, W1)
        cur = d
    c0 = [G0, tA]; c8 = [keep[8], tB]; c4 = [keep[4], newp()]
    e2, e6 = newp(), newp()
    st(258, e2, keep[2], W256)
    st(262, e6, keep[6], W256)
    for k in range(1, 8):
        st(256*k, c0[k % 2], c0[(k-1) % 2], W256)
        st(256*k + 8, c8[k % 2], c8[(k-1) % 2], W256)
        if k <= 3:
            st(256*k + 4, c4[k % 2], c4[(k-1) % 2], W256)
    assert nxt[0] <= 128
    run_steps(steps, True)
    GOP = 64
    for s in range(16):
        a(f"ds_read_b128 {vr(GOP+4*s,4)}, v8 offset:{32*s}")
    D = 32
    for s in range(16):
        a(f"s_waitcnt lgkmcnt({15-s})")
        a(f"v_mfma_f32_32x32x16_bf16 {vr(D,16)}, {vr(GOP+4*s,4)}, {vr(EOP+4*s,4)}, {vr(D,16) if s else 0}")
    a("v_and_b32 v8, 31, v1")
    a("v_lshrrev_b32 v9, 5, v1")
    a("v_lshl_add_u32 v2, v8, 4, s12")
    a("v_lshl_add_u32 v3, v9, 3, v2")
    a("v_lshl_add_u32 v4, v9, 9, v2")
    a("v_lshl_add_u32 v2, v9, 10, v2")
    a("v_and_b32 v8, 1, v1")
    a("v_cmp_eq_u32 s[14:15], 1, v8")
    a("v_cmp_eq_u32 vcc, 0, v1")
    a("v_mov_b32 v64, 0")
    a("v_mov_b32 v65, 0")
    a("v_cndmask_b32 v31, 0, v31, vcc")
    a("v_lshl_add_u32 v7, v1, 3, s12")
    a("s_mov_b64 exec, 0xf")
    a(f"ds_write_b64 v7, v[64:65]")
    a(f"ds_write_b64 v7, v[64:65] offset:{KO_OFF-32}")
    a("s_mov_b64 exec, -1")
    a("s_nop 4")
    a(f"v_add_f32 v{D}, v{D}, v31")
    a(f"v_cvt_pk_bf16_f32 v67, v{D+2}, v{D+3}")
    a(f"v_cvt_pk_bf16_f32 v66, v{D}, v{D+1}")
    a(f"v_cvt_pk_bf16_f32 v68, v{D+4}, v{D+4}")
    a(f"v_cvt_pk_bf16_f32 v69, v{D+5}, v{D+6}")
    a(f"ds_write_b64 v3, v[66:67] offset:{KE_OFF}")
    a(f"ds_write_b64 v3, v[68:69] offset:{KE_OFF+512}")
    a(f"v_cvt_pk_bf16_f32 v72, v{D+7}, v{D+7}")
    a(f"v_cvt_pk_bf16_f32 v73, v{D+7}, v{D+8}")
    a(f"v_cvt_pk_bf16_f32 v74, v{D+8}, v{D+8}")
    a(f"v_cvt_pk_bf16_f32 v75, v{D+9}, v{D+9}")
    a(f"ds_write_b128 v4, v[72:75] offset:{KE_OFF+1024}")
    for q in range(2):
        x0, x1 = D + 10 + 2*q, D + 11 + 2*q
        o = 76 + 4*q
        a(f"v_cndmask_b32 v70, v{x0}, v{x1}, s[14:15]")
        a(f"v_cvt_pk_bf16_f32 v{o}, v{x0}, v{x0}")
        a(f"v_cvt_pk_bf16_f32 v{o+1}, v{x0}, v{x0}")
        a(f"v_cvt_pk_bf16_f32 v{o+2}, v70, v{x1}")
        a(f"v_cvt_pk_bf16_f32 v{o+3}, v{x1}, v{x1}")
        a(f"ds_write_b128 v2, {vr(o,4)} offset:{KE_OFF+2048+512*q}")
    a("v_lshl_add_u32 v7, v1, 4, s12")
    for q in range(4):
        a(f"ds_read_b128 {vr(84+4*q,4)}, v7 offset:{KE_OFF+1024*q}")
        a(f"ds_read_b32 v{100+q}, v7 offset:{KE_OFF+1024*q-4}")
    for q in range(4):
        a(f"s_waitcnt lgkmcnt({6-2*q + q})")
        b = 84 + 4*q
        o = 104 + 4*q
        a(f"v_alignbit_b32 v{o}, v{b}, v{100+q}, 16")
        for j in range(1, 4):
            a(f"v_alignbit_b32 v{o+j}, v{b+j}, v{b+j-1}, 16")
        a(f"ds_write_b128 v7, {vr(o,4)} offset:{KO_OFF+1024*q}")
    a("s_mov_b32 s8, 0x05040100")
    a("s_mov_b32 s9, 0x07060302")
    a("v_lshlrev_b32 v7, 4, v0")
    a(f"v_sub_u32 v7, {UB0+4080}, v7")
    a("s_waitcnt vmcnt(4)")
    for ch in range(4):
        o = 64 + 4*ch
        for p in range(4):
            a(f"v_perm_b32 v{o+p}, v{U+2*(6-2*p)+ch//2}, v{U+2*(7-2*p)+ch//2}, s{8+ch%2}")
        a(f"ds_write_b128 v7, {vr(o,4)} offset:{ch*UST}")
    a("v_and_b32 v8, 15, v1")
    a("v_lshrrev_b32 v9, 4, v1")
    a("v_lshlrev_b32 v2, 5, v8")
    a("v_lshl_add_u32 v3, v9, 4, s13")
    a("v_sub_u32 v3, v3, v2")
    a("v_add_u32 v26, 480, v3")
    a("v_and_b32 v2, 14, v1")
    a("v_lshlrev_b32 v2, 1, v2")
    a("v_lshl_add_u32 v2, v9, 4, v2")
    a(f"v_mov_b32 v3, {KO_OFF-28}")
    a(f"v_mov_b32 v4, {KE_OFF-28}")
    a("v_cndmask_b32 v3, v3, v4, s[14:15]")
    a("v_add3_u32 v27, v2, v3, s12")
    for k in range(1, 4):
        a(f"v_add_u32 v{27+k}, {1024*k}, v27")
    a("s_waitcnt lgkmcnt(0)")
    a("s_barrier")
    ACC = 32
    AS = (64, 96); BS = (128, 160)
    def loads(t0):
        L = []
        A, B = AS[t0 % 2], BS[t0 % 2]
        for k in range(8):
            o = 16*t0 + 128*(k % 2)
            L.append(f"ds_read_b128 {vr(B+4*k,4)}, v26 offset:{3584-512*k+64*t0}")
            L.append(f"ds_read2_b32 {vr(A+4*k,2)}, v{27+k//2} offset0:{o} offset1:{o+1}")
            L.append(f"ds_read2_b32 {vr(A+4*k+2,2)}, v{27+k//2} offset0:{o+2} offset1:{o+3}")
        return L
    for l in loads(0): a(l)
    for t0 in range(8):
        A, B = AS[t0 % 2], BS[t0 % 2]
        nl = loads(t0 + 1) if t0 < 7 else []
        a("s_waitcnt lgkmcnt(0)")
        n = 0
        for tau in range(8):
            for c in range(8 - tau):
                Tt = tau + c
                first = (t0 == 0 and tau == 0)
                a(f"v_mfma_f32_16x16x32_bf16 {vr(ACC+4*Tt,4)}, {vr(A+4*tau,4)}, {vr(B+4*c,4)}, {vr(ACC+4*Tt,4) if not first else 0}")
                if n < len(nl):
                    a(nl[n])
                n += 1
    a("v_lshlrev_b32 v2, 5, v8")
    a("v_lshl_add_u32 v2, v9, 3, v2")
    a("v_add_u32 v2, s12, v2")
    a("v_lshlrev_b32 v3, 4, v0")
    a("s_nop 4")
    for Tt in range(8):
        a(f"v_cvt_pk_bf16_f32 v{64+2*Tt}, v{ACC+4*Tt}, v{ACC+4*Tt+1}")
        a(f"v_cvt_pk_bf16_f32 v{65+2*Tt}, v{ACC+4*Tt+2}, v{ACC+4*Tt+3}")
        a(f"ds_write_b64 v2, {vr(64+2*Tt,2)} offset:{512*Tt}")
    a("s_waitcnt lgkmcnt(0)")
    a("s_barrier")
    Y = 96
    for ch in range(4):
        a(f"ds_read_b128 {vr(Y+4*ch,4)}, v3 offset:{ch*REG_W}")
    a("s_waitcnt vmcnt(0)")
    for e in range(8):
        a(f"v_lshlrev_b32 v{GG+2*e}, 16, v{GG+2*e}")
    a("s_waitcnt lgkmcnt(0)")
    for e in range(8):
        if e % 2 == 0:
            a(f"s_add_u32 s{8+e//2}, s7, {e*2048}")
        o = 64 + 2*e
        for pr in range(2):
            t = 120 + 8*pr
            a(f"v_lshlrev_b32 v{t}, 16, v{U+2*e+pr}")
            a(f"v_and_b32 v{t+1}, 0xffff0000, v{U+2*e+pr}")
            for j in range(2):
                src = Y + 4*(2*pr + j) + e//2
                if e % 2 == 0: a(f"v_lshlrev_b32 v{t+2+j}, 16, v{src}")
                else:          a(f"v_and_b32 v{t+2+j}, 0xffff0000, v{src}")
        for pr in range(2):
            t = 120 + 8*pr
            a(f"v_pk_add_f32 {vr(t+2,2)}, {vr(t+2,2)}, {vr(t,2)} neg_lo:[0,1] neg_hi:[0,1]")
        for pr in range(2):
            t = 120 + 8*pr
            a(f"v_pk_fma_f32 {vr(t+2,2)}, {vr(GG+2*e,2)}, {vr(t+2,2)}, {vr(t,2)} op_sel:[0,0,0] op_sel_hi:[0,1,1]")
        for pr in range(2):
            t = 120 + 8*pr
            a(f"v_cvt_pk_bf16_f32 v{o+pr}, v{t+2}, v{t+3}")
        a(f"buffer_store_dwordx2 {vr(o,2)}, v5, {sr(SRD_OUT,4)}, s{8+e//2} offen offset:{(e%2)*2048}")
    a("L2_end:")
    a("s_endpgm")
    return a.text()

def group_ids(a):
    a("s_and_b32 s4, s2, 7")
    a("s_mul_i32 s4, s4, 7")
    a("s_lshr_b32 s5, s2, 5")
    a("s_add_u32 s4, s4, s5")
    a("s_lshr_b32 s5, s2, 3")
    a("s_and_b32 s5, s5, 3")

def topk_slow(a, K, n, out_s, tag):
    a("s_mov_b32 s14, -1")
    for rnd in range(8):
        for i in range(0, n, 2):
            a(f"v_sub_u32 v240, s14, v{K+i}")
            a(f"v_sub_u32 v241, s14, v{K+i+1}")
            if i == 0: a("v_min_u32 v2, v240, v241")
            else:      a("v_min3_u32 v2, v240, v241, v2")
        for st in ("row_shr:1 row_mask:0xf bank_mask:0xf", "row_shr:2 row_mask:0xf bank_mask:0xf",
                   "row_shr:4 row_mask:0xf bank_mask:0xf", "row_shr:8 row_mask:0xf bank_mask:0xf",
                   "row_bcast:15 row_mask:0xa bank_mask:0xf", "row_bcast:31 row_mask:0xc bank_mask:0xf"):
            a("s_nop 1")
            a(f"v_min_u32_dpp v2, v2, v2 {st}")
        a("s_nop 0")
        a("v_readlane_b32 s15, v2, 63")
        a(f"s_sub_u32 s{out_s+rnd}, s14, s15")
        a(f"s_sub_u32 s14, s{out_s+rnd}, 1")

def k_gateup():
    a = Asm()
    prologue(a, 224, "L3_end")
    group_ids(a)
    a("s_lshl_b32 s6, s5, 2")
    a("s_add_u32 s6, s6, s3")
    a("s_lshl_b32 s6, s6, 6")
    a("v_lshrrev_b32 v8, 4, v1")
    a("v_and_b32 v9, 7, v1")
    a("v_lshl_add_u32 v3, v8, 3, s6")
    a("v_mul_u32_u24 v4, 7168, v3")
    a("s_lshl_b32 s7, s4, 7")
    a("v_lshl_add_u32 v5, v9, 4, s7")
    a("v_add_u32 v4, v4, v5")
    a("v_mov_b32 v5, 0")
    a("v_and_b32 v2, 8, v1")
    a("v_cmp_eq_u32 s[12:13], 0, v2")
    a("s_waitcnt lgkmcnt(0)")
    KR = 160
    a("v_lshlrev_b32 v2, 4, v1")
    a(f"v_add_u32 v2, {WS_RG}, v2")
    for q in range(16):
        if q and q % 4 == 0: a("v_add_u32 v2, 4096, v2")
        a(f"global_load_dwordx4 {vr(KR+4*q,4)}, v2, {sr(S_WS,2)} offset:{(q%4)*1024}")
    a(f"v_mov_b32 v6, s{S_WU}")
    a(f"v_mov_b32 v7, s{S_WU+1}")
    a(f"v_mov_b32 v10, s{S_WG}")
    a(f"v_mov_b32 v11, s{S_WG+1}")
    a("v_cndmask_b32 v6, v6, v10, s[12:13]")
    a("v_cndmask_b32 v7, v7, v11, s[12:13]")
    a("v_lshl_add_u64 v[6:7], v[6:7], 0, v[4:5]")
    a("s_mov_b32 s8, 7168")
    a("s_mov_b32 s9, 0")
    a(f"s_mov_b32 s10, {25*7168}")
    a("s_mov_b32 s11, 0")
    R = 32
    for kap in range(2):
        for i in range(8):
            a(f"global_load_dwordx4 {vr(R+32*kap+4*i,4)}, v[6:7], off")
            if i < 7: a("v_lshl_add_u64 v[6:7], s[8:9], 0, v[6:7]")
            elif kap == 0: a("v_lshl_add_u64 v[6:7], s[10:11], 0, v[6:7]")
    a.srd(SRD_X, S_X, 4194304)
    a("v_lshlrev_b32 v2, 1, v1")
    a("v_sub_u32 v2, 2047, v2")
    a("s_mov_b32 s8, 0xffff0000")
    a("s_waitcnt vmcnt(16)")
    KEY = 128
    for q in range(16):
        for j in range(2):
            a(f"v_subrev_u32 v10, {128*q+j}, v2")
            a(f"v_and_or_b32 v{KEY+2*q+j}, v{KR+4*q+2*j}, s8, v10")
    SEL = 64
    topk_slow(a, KEY, 32, SEL, "a")
    a(f"v_mov_b32 v10, s{SEL}")
    for t in range(1, 8):
        a(f"v_cmp_eq_u32 vcc, {t}, v9")
        a(f"v_mov_b32 v11, s{SEL+t}")
        a("s_nop 0")
        a("v_cndmask_b32 v10, v10, v11, vcc")
    a("s_add_u32 s14, s2, s3")
    a("s_cmp_lg_u32 s14, 0")
    a("s_cbranch_scc1 L3_nopub")
    a("v_lshlrev_b32 v11, 2, v1")
    a(f"v_add_u32 v11, {WS_SEL}, v11")
    a(f"global_store_dword v11, v10, {sr(S_WS,2)}")
    a("L3_nopub:")
    a("v_and_b32 v10, 2047, v10")
    a("v_sub_u32 v10, 2047, v10")
    a("v_lshlrev_b32 v10, 11, v10")
    a("v_lshl_add_u32 v10, v3, 1, v10")
    a("v_mov_b32 v11, 0x7ffffff0")
    a("v_cndmask_b32 v12, v11, v10, s[12:13]")
    a("v_cndmask_b32 v13, v10, v11, s[12:13]")
    B = 16
    for kap in range(2):
        for hf in range(2):
            a(f"buffer_load_dwordx4 {vr(B+8*kap+4*hf,4)}, v{12+hf}, {sr(SRD_X,4)}, 0 offen offset:{64*kap}")
    a("s_mov_b32 s8, 0x05040100")
    a("s_mov_b32 s9, 0x07060302")
    a("s_waitcnt vmcnt(4)")
    O = 160
    for kap in range(2):
        for e in range(8):
            for p in range(4):
                a(f"v_perm_b32 v{O+32*kap+4*e+p}, v{R+32*kap+4*(2*p+1)+e//2}, v{R+32*kap+4*(2*p)+e//2}, s{8+e%2}")
    a("s_waitcnt vmcnt(0)")
    ACC = 32
    for kap in range(2):
        for hf in range(2):
            for j in range(4):
                first = kap == 0 and hf == 0
                a(f"v_mfma_f32_16x16x32_bf16 {vr(ACC+4*j,4)}, {vr(O+32*kap+4*(j+4*hf),4)}, {vr(B+8*kap+4*hf,4)}, {vr(ACC+4*j,4) if not first else 0}")
    a("s_lshl_b32 s8, s3, 12")
    a("v_lshl_add_u32 v2, v1, 4, s8")
    a("s_lshl_b32 s8, s3, 10")
    a("v_lshl_add_u32 v3, v1, 4, s8")
    a("s_nop 4")
    for j in range(4):
        a(f"ds_write_b128 v2, {vr(ACC+4*j,4)} offset:{1024*j}")
    a("s_waitcnt lgkmcnt(0)")
    a("s_barrier")
    for w in range(4):
        a(f"ds_read_b128 {vr(48+4*w,4)}, v3 offset:{4096*w}")
    a("s_lshl_b32 s8, s4, 2")
    a("s_add_u32 s8, s8, s5")
    a("s_lshl_b32 s8, s8, 12")
    a(f"s_add_u32 s8, s8, {WS_PRE}")
    a("v_add_u32 v3, s8, v3")
    a("s_waitcnt lgkmcnt(0)")
    for r in range(0, 4, 2):
        a(f"v_pk_add_f32 {vr(48+r,2)}, {vr(48+r,2)}, {vr(52+r,2)}")
        a(f"v_pk_add_f32 {vr(56+r,2)}, {vr(56+r,2)}, {vr(60+r,2)}")
    for r in range(0, 4, 2):
        a(f"v_pk_add_f32 {vr(48+r,2)}, {vr(48+r,2)}, {vr(56+r,2)}")
    a(f"global_store_dwordx4 v3, v[48:51], {sr(S_WS,2)}")
    a("L3_end:")
    a("s_endpgm")
    return a.text()

def k_down():
    a = Asm()
    prologue(a, 224, "L4_end")
    group_ids(a)
    a("s_lshl_b32 s8, s4, 14")
    a("s_lshl_b32 s9, s3, 10")
    a("s_add_u32 s8, s8, s9")
    a(f"s_add_u32 s8, s8, {WS_PRE+4096}")
    a("v_lshl_add_u32 v3, v1, 4, s8")
    a("v_add_u32 v4, 8192, v3")
    a("v_lshrrev_b32 v8, 5, v1")
    a("v_bfe_u32 v9, v1, 4, 1")
    a("v_lshlrev_b32 v5, 15, v8")
    a("v_lshl_add_u32 v5, v9, 13, v5")
    a("v_and_b32 v6, 15, v1")
    a("v_lshl_add_u32 v5, v6, 3, v5")
    a("s_lshl_b32 s6, s4, 17")
    a("s_lshl_b32 s7, s5, 9")
    a("s_add_u32 s6, s6, s7")
    a("s_lshl_b32 s7, s3, 7")
    a("s_add_u32 s6, s6, s7")
    a("s_waitcnt lgkmcnt(0)")
    P = 16
    a(f"global_load_dwordx4 {vr(P,4)}, v3, {sr(S_WS,2)} offset:-4096")
    a(f"global_load_dwordx4 {vr(P+4,4)}, v3, {sr(S_WS,2)}")
    a(f"global_load_dwordx4 {vr(P+8,4)}, v4, {sr(S_WS,2)} offset:-4096")
    a(f"global_load_dwordx4 {vr(P+12,4)}, v4, {sr(S_WS,2)}")
    a.srd(SRD_WD, S_WD, 7340032)
    R = 32
    for kap in range(2):
        for hi in range(2):
            for p in range(4):
                if p % 2 == 0:
                    a(f"s_add_u32 s7, s6, {(32*kap+8*hi+p)*2048}")
                a(f"buffer_load_dwordx2 {vr(R+16*kap+4*p+2*hi,2)}, v5, {sr(SRD_WD,4)}, s7 offen offset:{(p%2)*2048}")
    a("v_mov_b32 v10, 0")
    a("v_lshlrev_b32 v11, 2, v1")
    a("ds_write_b32 v11, v10 offset:2048")
    a("v_and_b32 v10, 7, v1")
    a("v_mul_u32_u24 v10, 144, v10")
    a("v_lshl_add_u32 v11, v9, 6, v10")
    a("v_lshl_add_u32 v11, v8, 5, v11")
    a("v_bfe_u32 v12, v1, 3, 1")
    a("v_lshl_add_u32 v11, v12, 4, v11")
    a("s_lshl_b32 s7, s3, 2")
    a("v_add_u32 v11, s7, v11")
    a("v_lshrrev_b32 v13, 4, v1")
    a("v_lshl_add_u32 v13, v13, 4, v10")
    a("v_cmp_eq_u32 s[12:13], 0, v12")
    a("v_mov_b32 v14, 2048")
    a("s_waitcnt vmcnt(16)")
    a("v_cndmask_b32 v2, v14, v13, s[12:13]")
    a("v_cndmask_b32 v3, v13, v14, s[12:13]")
    for r in range(0, 4, 2):
        a(f"v_pk_add_f32 {vr(P+r,2)}, {vr(P+r,2)}, {vr(P+4+r,2)}")
        a(f"v_pk_add_f32 {vr(P+8+r,2)}, {vr(P+8+r,2)}, {vr(P+12+r,2)}")
    for r in range(0, 4, 2):
        a(f"v_pk_add_f32 {vr(P+r,2)}, {vr(P+r,2)}, {vr(P+8+r,2)}")
    a(f"v_cvt_pk_bf16_f32 v20, v{P}, v{P+1}")
    a(f"v_cvt_pk_bf16_f32 v21, v{P+2}, v{P+3}")
    a("s_nop 1")
    a("v_permlane32_swap_b32 v20, v21")
    a("s_nop 1")
    a("v_lshlrev_b32 v22, 16, v20")
    a("v_and_b32 v23, 0xffff0000, v20")
    sigmoid(a, 24, 22, 26)
    sigmoid(a, 25, 23, 27)
    a("v_mul_f32 v22, v22, v24")
    a("v_mul_f32 v23, v23, v25")
    a("v_cvt_pk_bf16_f32 v20, v22, v23")
    a("v_lshlrev_b32 v24, 16, v21")
    a("v_and_b32 v25, 0xffff0000, v21")
    a("v_lshlrev_b32 v22, 16, v20")
    a("v_and_b32 v23, 0xffff0000, v20")
    a("v_mul_f32 v22, v22, v24")
    a("v_mul_f32 v23, v23, v25")
    a("v_cvt_pk_bf16_f32 v20, v22, v23")
    a("ds_write_b32 v11, v20")
    a("s_waitcnt lgkmcnt(0)")
    a("s_barrier")
    A = 16
    for kap in range(2):
        for hf in range(2):
            a(f"ds_read_b128 {vr(A+8*kap+4*hf,4)}, v{2+hf} offset:{64*kap}")
    a("s_mov_b32 s8, 0x05040100")
    a("s_mov_b32 s9, 0x07060302")
    a("s_waitcnt vmcnt(0)")
    O = 64
    for kap in range(2):
        for e in range(4):
            for p in range(4):
                a(f"v_perm_b32 v{O+16*kap+4*e+p}, v{R+16*kap+4*p+2+e//2}, v{R+16*kap+4*p+e//2}, s{8+e%2}")
    a("s_waitcnt lgkmcnt(0)")
    a("s_nop 0")
    ACC = 32
    for kap in range(2):
        for hf in range(2):
            for j in range(2):
                first = kap == 0 and hf == 0
                a(f"v_mfma_f32_16x16x32_bf16 {vr(ACC+4*j,4)}, {vr(A+8*kap+4*hf,4)}, {vr(O+16*kap+4*(2*j+hf),4)}, {vr(ACC+4*j,4) if not first else 0}")
    a("s_lshl_b32 s8, s5, 2")
    a("s_add_u32 s8, s8, s3")
    a("s_lshl_b32 s8, s8, 17")
    a("s_lshl_b32 s9, s4, 7")
    a("s_add_u32 s8, s8, s9")
    a(f"s_add_u32 s8, s8, {WS_PART}")
    a("v_lshl_add_u32 v2, v6, 13, s8")
    a("v_and_b32 v3, 48, v1")
    a("v_add_u32 v2, v2, v3")
    a("s_nop 2")
    for j in range(2):
        a(f"global_store_dwordx4 v2, {vr(ACC+4*j,4)}, {sr(S_WS,2)} offset:{64*j}")
    a("L4_end:")
    a("s_endpgm")
    return a.text()

def k_final():
    a = Asm()
    prologue(a, 256, "L5_end")
    a("s_lshl_b32 s4, s2, 13")
    a(f"s_add_u32 s4, s4, {WS_PART+4096}")
    a("v_lshl_add_u32 v3, v1, 4, s4")
    a("v_and_b32 v4, 1, v1")
    a("v_lshlrev_b32 v4, 4, v4")
    a(f"v_add_u32 v4, {WS_SEL}, v4")
    a("s_waitcnt lgkmcnt(0)")
    a(f"global_load_dwordx4 v[8:11], v4, {sr(S_WS,2)}")
    for q in range(7):
        a(f"global_load_dwordx4 {vr(32+4*q,4)}, v3, {sr(S_WS,2)} offset:{1024*q-4096}")
    a("v_bfe_u32 v5, v1, 1, 2")
    a("s_lshl_b32 s5, s2, 3")
    a("v_lshl_add_u32 v5, v5, 1, s5")
    a("s_waitcnt vmcnt(7)")
    for r in range(4):
        a(f"v_and_b32 v{12+r}, 2047, v{8+r}")
        a(f"v_sub_u32 v{12+r}, 2047, v{12+r}")
        a(f"v_lshlrev_b32 v{16+r}, 3, v{12+r}")
        a(f"v_add_u32 v{16+r}, {WS_RG}, v{16+r}")
        a(f"v_lshl_add_u32 v{12+r}, v{12+r}, 11, v5")
        a(f"global_load_dword v{16+r}, v{16+r}, {sr(S_WS,2)}")
        a(f"global_load_ushort v{20+r}, v{12+r}, {sr(S_OUT,2)}")
    for r in range(4):
        a(f"v_ashrrev_i32 v24, 31, v{8+r}")
        a("v_not_b32 v24, v24")
        a("v_or_b32 v24, 0x80000000, v24")
        a(f"v_xor_b32 v{8+r}, v{8+r}, v24")
        a(f"v_and_b32 v{8+r}, 0xffff0000, v{8+r}")
        sigmoid(a, 8+r, 8+r, 24)
        a(f"v_cvt_pk_bf16_f32 v{8+r}, v{8+r}, v{8+r}")
        a(f"v_lshlrev_b32 v{8+r}, 16, v{8+r}")
    a("s_waitcnt vmcnt(8)")
    for q in range(1, 7):
        for r in range(0, 4, 2):
            a(f"v_pk_add_f32 {vr(32+r,2)}, {vr(32+r,2)}, {vr(32+4*q+r,2)}")
    a("s_nop 1")
    for r in range(4):
        a(f"v_add_f32_dpp v{32+r}, v{32+r}, v{32+r} row_ror:8 row_mask:0xf bank_mask:0xf")
    for op in ("v_permlane16_swap_b32", "v_permlane32_swap_b32"):
        for r in range(4):
            a(f"v_mov_b32 v{36+r}, v{32+r}")
        for r in range(4):
            a(f"{op} v{32+r}, v{36+r}")
        a("s_nop 1")
        for r in range(4):
            a(f"v_add_f32 v{32+r}, v{32+r}, v{36+r}")
    a("s_waitcnt vmcnt(0)")
    for r in range(4):
        a(f"v_cvt_pk_bf16_f32 v{32+r}, v{32+r}, v{32+r}")
        a(f"v_lshlrev_b32 v{32+r}, 16, v{32+r}")
        a(f"v_mul_f32 v{32+r}, v{32+r}, v{8+r}")
        a(f"v_lshlrev_b32 v{16+r}, 16, v{16+r}")
        a(f"v_sub_f32 v{16+r}, 1.0, v{16+r}")
        a(f"v_lshlrev_b32 v{20+r}, 16, v{20+r}")
        a(f"v_fmac_f32 v{20+r}, v{16+r}, v{32+r}")
        a(f"v_cvt_pk_bf16_f32 v{20+r}, v{20+r}, v{20+r}")
    a("s_mov_b64 exec, 0xff")
    for r in range(4):
        a(f"global_store_short v{12+r}, v{20+r}, {sr(S_OUT,2)}")
    a("L5_end:")
    a("s_endpgm")
    return a.text()

def build(extra_empty=0):
    ks = [("rows_kernel", k_rows(), 256, 256, 0, 48),
          ("conv_kernel", k_conv(), 256, 256, LDS_CONV, 216),
          ("gateup_kernel", k_gateup(), 224, 256, 16384, 244),
          ("down_kernel", k_down(), 224, 256, 4096, 96),
          ("final_kernel", k_final(), 256, 64, 0, 64)]
    lines = [f"; @launch kernel={n} grid=({g},1,1) block=({b},1,1) lds={l}" for n, _, g, b, l, _ in ks]
    if extra_empty:
        ks.append(("empty_kernel", "    s_endpgm\n", 256, 64, 0, 8))
        lines += ["; @launch kernel=empty_kernel grid=(256,1,1) block=(64,1,1) lds=0"] * extra_empty
    s = header(lines)
    for n, t, *_ in ks:
        s += kstart(n) + t
    s += RODATA
    for n, _, _, _, _, v in ks:
        s += ".p2align 6\n" + kdesc(n, v)
    return s

if __name__ == "__main__":
    open("v1.s", "w").write(build())
    open("v1_e4.s", "w").write(build(4))
```

```python
import sys
sys.path.insert(0, "exp")
from asmlib import *

LOG2E = "0x3fb8aa3b"
INV2PI = "0x3e22f983"

WS_RG   = 0x10000
WS_SEL  = 0x20000
WS_PRE  = 0x100000
WS_PART = 0x200000

S_X, S_LA, S_AI, S_CR, S_CI, S_LDT, S_DSK = 16, 18, 20, 22, 24, 26, 28
S_WR, S_WG, S_WU, S_WD, S_GW, S_OUT, S_DBG, S_WS = 32, 34, 36, 38, 40, 42, 44, 46
SRD_X, SRD_OUT, SRD_WS, SRD_WD = 48, 52, 56, 60

def vr(a, n=1):
    return f"v{a}" if n == 1 else f"v[{a}:{a+n-1}]"
def sr(a, n=1):
    return f"s{a}" if n == 1 else f"s[{a}:{a+n-1}]"

def prologue(a, nwg, endlab):
    stamp_init(a)
    a(f"s_cmp_ge_u32 s2, {nwg}")
    a(f"s_cbranch_scc1 {endlab}")
    a("s_load_dwordx16 s[16:31], s[0:1], 0")
    a("s_load_dwordx16 s[32:47], s[0:1], 64")
    a("v_lshrrev_b32 v2, 6, v0")
    a("v_and_b32 v1, 63, v0")
    a("v_readfirstlane_b32 s3, v2")

def cmul(d, s, w, t):
    return [f"v_pk_mul_f32 {vr(t,2)}, {vr(s,2)}, {vr(w,2)} op_sel:[0,0] op_sel_hi:[0,1]",
            f"v_pk_fma_f32 {vr(d,2)}, {vr(s,2)}, {vr(w,2)}, {vr(t,2)} op_sel:[1,1,0] op_sel_hi:[1,0,1] neg_lo:[0,1,0]"]

def sigmoid(a, dst, src, tmp):
    a(f"v_mul_f32 {vr(tmp)}, 0xbfb8aa3b, {vr(src)}")
    a(f"v_exp_f32 {vr(tmp)}, {vr(tmp)}")
    a("s_nop 0")
    a(f"v_add_f32 {vr(tmp)}, 1.0, {vr(tmp)}")
    a(f"v_rcp_f32 {vr(dst)}, {vr(tmp)}")
    a("s_nop 0")


STAMP = {"on": False}
WS_TS = 0x800000
ST0 = 72
def stamp(a, i):
    if STAMP["on"]:
        a(f"{'s_memtime' if STAMP.get('clk') else 's_memrealtime'} s[{ST0+2*i}:{ST0+2*i+1}]")
def stamp_init(a):
    if STAMP["on"]:
        for i in range(1, 14):
            a(f"s_mov_b32 s{ST0+2*i}, 0")
        stamp(a, 0)
def stamp_dump(a, kidx, last):
    if STAMP["on"]:
        a("s_waitcnt vmcnt(0)")
        stamp(a, last)
        a("s_waitcnt lgkmcnt(0)")
        a("s_mov_b64 exec, -1")
        a("v_mov_b32 v8, 0")
        for i in range(14):
            a(f"v_writelane_b32 v8, s{ST0+2*i}, {i}")
        a("s_lshl_b32 s14, s2, 3")
        a("s_add_u32 s14, s14, s3")
        a("s_lshl_b32 s14, s14, 6")
        a(f"s_add_u32 s14, s14, {WS_TS + kidx*0x20000}")
        a("v_lshl_add_u32 v4, v1, 2, s14")
        a("s_mov_b64 exec, 0xffff")
        a(f"global_store_dword v4, v8, s[{S_WS}:{S_WS+1}]")
```

```python
from blocks import *

WS_E    = 0xF000
WS_KEYS = 0x20000
SPIN = 40000
SRD_WD = 56

CFG = dict(n1=4, n2=10, n3=14, nd1=8, dpre=1, upre=1, sprefetch=1)

DPP_FULL = "row_mask:0xf bank_mask:0xf"

L_REC, L_SEL, L_TAU, L_CNT = 0, 128, 160, 164
L_HB, L_ZERO, L_MB, L_RG, L_RED = 256, 1536, 2048, 8192, 16384

def moe(a):
    c = CFG
    R, O, DR, B, ACC = 64, 128, 192, 224, 240
    DO = R
    X, WR, GW = O, O + 16, O + 24
    PL, KEY, IDX, SC = 16, 24, 28, 32
    VW = 6
    S_TAG, S_TB, S_G, S_S = 60, 61, 62, 63
    a("s_and_b32 s4, s2, 7")
    a("s_lshr_b32 s5, s2, 3")
    a(f"s_mul_i32 s{S_G}, s4, 7")
    a("s_lshr_b32 s6, s5, 1")
    a(f"s_add_u32 s{S_G}, s{S_G}, s6")
    a(f"s_and_b32 s{S_S}, s5, 1")
    a("v_lshlrev_b32 v3, 4, v1")
    a("s_lshl_b32 s6, s2, 3")
    a("s_add_u32 s6, s6, s3")
    a("s_lshl_b32 s6, s6, 12")
    a("v_add_u32 v4, s6, v3")
    a(f"s_lshl_b32 s6, s{S_S}, 3")
    a("s_add_u32 s6, s6, s3")
    a("s_lshl_b32 s6, s6, 6")
    a("v_lshrrev_b32 v8, 4, v1")
    a("v_and_b32 v9, 7, v1")
    a("v_lshl_add_u32 v10, v8, 3, s6")
    a("v_mul_u32_u24 v12, 7168, v10")
    a(f"s_lshl_b32 s7, s{S_G}, 7")
    a("v_lshl_add_u32 v13, v9, 4, s7")
    a("v_add_u32 v12, v12, v13")
    a("v_mov_b32 v13, 0")
    a("v_and_b32 v2, 8, v1")
    a("v_cmp_eq_u32 s[12:13], 0, v2")
    a("s_waitcnt lgkmcnt(0)")
    a(f"s_load_dword s{S_TAG}, {sr(S_WS,2)}, {WS_E}")
    for i in range(4):
        a(f"global_load_dwordx4 {vr(X+4*i,4)}, v4, {sr(S_X,2)} offset:{i*1024}")
    for i in range(2):
        a(f"global_load_dwordx4 {vr(WR+4*i,4)}, v3, {sr(S_WR,2)} offset:{i*1024}")
        a(f"global_load_dwordx4 {vr(GW+4*i,4)}, v3, {sr(S_GW,2)} offset:{i*1024}")
    a(f"v_mov_b32 v{VW}, s{S_WU}")
    a(f"v_mov_b32 v{VW+1}, s{S_WU+1}")
    a(f"v_mov_b32 v14, s{S_WG}")
    a(f"v_mov_b32 v15, s{S_WG+1}")
    a(f"v_cndmask_b32 v{VW}, v{VW}, v14, s[12:13]")
    a(f"v_cndmask_b32 v{VW+1}, v{VW+1}, v15, s[12:13]")
    a(f"v_lshl_add_u64 {vr(VW,2)}, {vr(VW,2)}, 0, v[12:13]")
    a("s_mov_b32 s8, 7168")
    a("s_mov_b32 s9, 0")
    a(f"s_mov_b32 s10, {25*7168}")
    a("s_mov_b32 s11, 0")
    def wloads(lo, hi):
        for n in range(lo, hi):
            a(f"global_load_dwordx4 {vr(R+4*n,4)}, {vr(VW,2)}, off nt")
            if n == 7:    a(f"v_lshl_add_u64 {vr(VW,2)}, s[10:11], 0, {vr(VW,2)}")
            elif n < 15:  a(f"v_lshl_add_u64 {vr(VW,2)}, s[8:9], 0, {vr(VW,2)}")
    a("s_cmp_ge_u32 s5, 14")
    a("s_cbranch_scc1 LM_spare0")
    wloads(0, c["n1"])
    stamp(a, 1)
    for r in range(4): a(f"v_mov_b32 v{40+r}, 0")
    a(f"s_waitcnt vmcnt({c['n1']})")
    a("s_branch LM_rows")
    a("LM_spare0:")
    for r in range(4): a(f"v_mov_b32 v{40+r}, 0")
    a("s_waitcnt vmcnt(0)")
    a("LM_rows:")
    stamp(a, 2)
    for i in range(8):
        a(f"v_dot2_f32_bf16 v40, v{X+i}, v{WR+i}, v40")
        a(f"v_dot2_f32_bf16 v41, v{X+8+i}, v{WR+i}, v41")
        a(f"v_dot2_f32_bf16 v42, v{X+i}, v{GW+i}, v42")
        a(f"v_dot2_f32_bf16 v43, v{X+8+i}, v{GW+i}, v43")
    a("s_waitcnt lgkmcnt(0)")
    a(f"s_add_u32 s{S_TAG}, s{S_TAG}, 0x01010101")
    a(f"s_and_b32 s{S_TB}, s{S_TAG}, 0xff")
    for st in (f"row_shr:1 {DPP_FULL} bound_ctrl:0", f"row_shr:2 {DPP_FULL} bound_ctrl:0",
               f"row_shr:4 {DPP_FULL} bound_ctrl:0", f"row_shr:8 {DPP_FULL} bound_ctrl:0",
               "row_bcast:15 row_mask:0xa bank_mask:0xf", "row_bcast:31 row_mask:0xc bank_mask:0xf"):
        for r in range(4):
            a(f"v_add_f32_dpp v{40+r}, v{40+r}, v{40+r} {st}")
    a("v_cvt_pk_bf16_f32 v45, v42, v43")
    a("v_cvt_pk_bf16_f32 v44, v40, v41")
    a("v_lshlrev_b32 v46, 16, v45")
    a("v_and_b32 v47, 0xffff0000, v45")
    a("v_mul_f32 v46, 0xbfb8aa3b, v46")
    a("v_mul_f32 v47, 0xbfb8aa3b, v47")
    a("v_exp_f32 v46, v46")
    a("v_exp_f32 v47, v47")
    a("v_lshlrev_b32 v48, 16, v44")
    a("v_add_f32 v46, 1.0, v46")
    a("v_add_f32 v47, 1.0, v47")
    a("v_rcp_f32 v46, v46")
    a("v_rcp_f32 v47, v47")
    a("v_ashrrev_i32 v50, 31, v48")
    a("v_ashrrev_i32 v51, 31, v44")
    a("v_cvt_pk_bf16_f32 v45, v46, v47")
    a("v_or_b32 v50, 0x80000000, v50")
    a("v_or_b32 v51, 0x80000000, v51")
    a("v_xor_b32 v48, v48, v50")
    a("v_xor_b32 v49, v44, v51")
    a("s_mov_b32 s6, 0x07060100")
    a("s_mov_b32 s7, 0x07060302")
    a("v_perm_b32 v40, v48, v45, s6")
    a("v_perm_b32 v42, v49, v45, s7")
    a(f"v_mov_b32 v41, s{S_TAG}")
    a(f"v_mov_b32 v43, s{S_TAG}")
    a("s_lshl_b32 s6, s3, 4")
    a("v_mov_b32 v2, s6")
    a("s_mov_b32 exec_lo, 0")
    a("s_mov_b32 exec_hi, 0x80000000")
    a(f"ds_write_b128 v2, v[40:43] offset:{L_REC}")
    a("s_mov_b64 exec, -1")
    a("s_waitcnt lgkmcnt(0)")
    a("s_barrier")
    a("s_cmp_lg_u32 s3, 0")
    a("s_cbranch_scc1 LM_nopub")
    a(f"ds_read_b128 v[44:47], v3 offset:{L_REC}")
    a("s_lshl_b32 s6, s2, 7")
    a(f"s_add_u32 s6, s6, {WS_RG}")
    a("v_add_u32 v2, s6, v3")
    a("s_mov_b64 exec, 0xff")
    a("s_waitcnt lgkmcnt(0)")
    a(f"global_store_dwordx4 v2, v[44:47], {sr(S_WS,2)} sc1")
    a("s_mov_b64 exec, -1")
    a("LM_nopub:")
    stamp(a, 3)
    a("s_cmp_ge_u32 s5, 14")
    a("s_cbranch_scc1 LM_spare")
    a("s_barrier")
    wloads(c["n1"], c["n2"])
    a("s_lshl_b32 s6, s3, 11")
    a(f"s_add_u32 s6, s6, {WS_RG}")
    a("v_add_u32 v5, s6, v3")
    for q in range(2):
        a(f"global_load_dwordx4 {vr(PL+4*q,4)}, v5, {sr(S_WS,2)} offset:{1024*q} sc1")
    wloads(c["n2"], c["n3"])
    a.srd(SRD_X, S_X, 4194304)
    a.srd(SRD_WD, S_WD, 7340032)
    a("s_lshl_b32 s6, s3, 8")
    a("s_sub_u32 s6, 2047, s6")
    a("v_lshlrev_b32 v2, 1, v1")
    a(f"v_sub_u32 v{IDX}, s6, v2")
    a(f"v_subrev_u32 v{IDX+1}, 1, v{IDX}")
    a(f"v_subrev_u32 v{IDX+2}, 0x80, v{IDX}")
    a(f"v_subrev_u32 v{IDX+3}, 0x81, v{IDX}")
    a("v_mov_b32 v12, 0")
    a("v_lshlrev_b32 v13, 2, v1")
    a(f"ds_write_b32 v13, v12 offset:{L_ZERO}")
    a(f"ds_write_b32 v12, v12 offset:{L_CNT}")
    a("s_lshl_b32 s6, s3, 9")
    a("v_lshl_add_u32 v14, v1, 3, s6")
    a("s_lshl_b32 s6, s3, 10")
    a("v_lshl_add_u32 v15, v1, 3, s6")
    a("s_mov_b32 s64, 0x05040100")
    a("s_mov_b32 s65, 0x07060302")
    a("s_mov_b32 s66, 0xffff0000")
    a("s_mov_b32 s14, 0")
    stamp(a, 4)
    a(f"s_waitcnt vmcnt({c['n3']-c['n2']})")
    a("LM_poll1:")
    a(f"v_xor_b32 v2, s{S_TAG}, v{PL+1}")
    for i in (3, 5, 7):
        a(f"v_bitop3_b32 v2, v{PL+i}, s{S_TAG}, v2 bitop3:0xbe")
    a("v_cmp_ne_u32 vcc, 0, v2")
    a("s_cbranch_vccz LM_poll1_ok")
    a("s_add_u32 s14, s14, 1")
    a(f"s_cmp_ge_u32 s14, {SPIN}")
    a("s_cbranch_scc1 LM_poll1_ok")
    a("s_mov_b64 exec, vcc")
    for q in range(2):
        a(f"global_load_dwordx4 {vr(PL+4*q,4)}, v5, {sr(S_WS,2)} offset:{1024*q} sc1")
    a("s_mov_b64 exec, -1")
    a("s_waitcnt vmcnt(0)")
    a("s_branch LM_poll1")
    a("LM_poll1_ok:")
    if STAMP["on"]: a(f"s_mov_b32 s{ST0+24}, s14")
    stamp(a, 5)
    for i in range(4):
        a(f"v_and_or_b32 v{KEY+i}, v{PL+2*i}, s66, v{IDX+i}")
    a(f"v_max_u32 v36, v{KEY}, v{KEY+1}")
    a(f"v_min_u32 v37, v{KEY}, v{KEY+1}")
    a(f"v_med3_u32 v38, v36, v{KEY+2}, v{KEY+3}")
    a(f"v_max3_u32 v36, v36, v{KEY+2}, v{KEY+3}")
    a("v_max_u32 v37, v37, v38")
    a(f"ds_write_b64 v14, v[36:37] offset:{L_MB}")
    a(f"v_add_u32 v15, {L_RG}, v15")
    a(f"ds_write2_b32 v15, v{PL}, v{PL+2} offset0:0 offset1:1")
    a(f"ds_write2_b32 v15, v{PL+4}, v{PL+6} offset0:128 offset1:129")
    a("s_waitcnt lgkmcnt(2)")
    a("s_barrier")
    a("s_cmp_lg_u32 s3, 0")
    a("s_cbranch_scc1 LM_notopk")
    a("v_lshlrev_b32 v2, 3, v1")
    P = 40
    for i in range(4):
        a(f"ds_read2st64_b64 {vr(P+4*i,4)}, v2 offset0:{L_MB//512+2*i} offset1:{L_MB//512+2*i+1}")
    a("s_waitcnt lgkmcnt(3)")
    a(f"v_max_u32 v36, v{P}, v{P+2}")
    a(f"v_min_u32 v37, v{P}, v{P+2}")
    a(f"v_max3_u32 v37, v37, v{P+1}, v{P+3}")
    for i in range(1, 4):
        a(f"s_waitcnt lgkmcnt({3-i})")
        a(f"v_med3_u32 v38, v36, v{P+4*i}, v{P+4*i+2}")
        a(f"v_max3_u32 v36, v36, v{P+4*i}, v{P+4*i+2}")
        a(f"v_max3_u32 v39, v38, v{P+4*i+1}, v{P+4*i+3}")
        a("v_max_u32 v37, v37, v39")
    a(f"v_max_u32_dpp v38, v36, v36 quad_perm:[1,0,3,2] {DPP_FULL}")
    a("s_nop 1")
    a(f"v_max_u32_dpp v38, v38, v38 quad_perm:[2,3,0,1] {DPP_FULL}")
    a("s_nop 1")
    a(f"v_max_u32_dpp v38, v38, v38 row_half_mirror {DPP_FULL}")
    a("s_nop 1")
    a(f"v_min_u32_dpp v39, v38, v38 row_mirror {DPP_FULL}")
    a(f"v_max_u32_dpp v38, v38, v38 row_mirror {DPP_FULL}")
    a("s_nop 0")
    a("v_min_u32_dpp v39, v39, v39 row_bcast:15 row_mask:0xa bank_mask:0xf")
    a("v_max_u32_dpp v38, v38, v38 row_bcast:15 row_mask:0xa bank_mask:0xf")
    a("s_nop 0")
    a("v_min_u32_dpp v39, v39, v39 row_bcast:31 row_mask:0xc bank_mask:0xf")
    a("v_max_u32_dpp v38, v38, v38 row_bcast:31 row_mask:0xc bank_mask:0xf")
    a("v_readlane_b32 s6, v39, 63")
    a("v_readlane_b32 s7, v38, 63")
    a("s_sub_u32 s14, s7, s6")
    a("s_lshr_b32 s14, s14, 2")
    a("LM_bis:")
    a("s_add_u32 s14, s14, s6")
    a("v_cmp_le_u32 s[68:69], s14, v36")
    a("v_cmp_le_u32 vcc, s14, v37")
    a("s_bcnt1_i32_b64 s15, s[68:69]")
    a("s_bcnt1_i32_b64 s67, vcc")
    a("s_add_u32 s67, s67, s15")
    a("s_cmp_eq_u32 s67, 8")
    a("s_cbranch_scc1 LM_bis_done")
    a("s_cmp_gt_u32 s67, 8")
    a("s_cselect_b32 s6, s14, s6")
    a("s_cselect_b32 s7, s7, s14")
    a("s_sub_u32 s14, s7, s6")
    a("s_lshr_b32 s14, s14, 1")
    a("s_cbranch_scc1 LM_bis")
    a("s_mov_b32 s14, s6")
    a("v_cmp_le_u32 s[68:69], s14, v36")
    a("v_cmp_le_u32 vcc, s14, v37")
    a("s_bcnt1_i32_b64 s15, s[68:69]")
    a("LM_bis_done:")
    a("v_mbcnt_lo_u32_b32 v38, s68, 0")
    a("v_mov_b32 v39, s15")
    a("v_mbcnt_hi_u32_b32 v38, s69, v38")
    a("v_mbcnt_lo_u32_b32 v39, vcc_lo, v39")
    a("v_lshlrev_b32 v38, 2, v38")
    a("v_mbcnt_hi_u32_b32 v39, vcc_hi, v39")
    a("v_mov_b32 v40, s14")
    a("v_and_b32 v38, 28, v38")
    a("v_lshlrev_b32 v39, 2, v39")
    a(f"ds_write_b32 v12, v40 offset:{L_TAU}")
    a("v_and_b32 v39, 28, v39")
    a("s_mov_b64 exec, s[68:69]")
    a(f"ds_write_b32 v38, v36 offset:{L_SEL}")
    a("s_mov_b64 exec, vcc")
    a(f"ds_write_b32 v39, v37 offset:{L_SEL}")
    a("s_mov_b64 exec, -1")
    a("LM_notopk:")
    a("v_lshlrev_b32 v2, 2, v9")
    a("s_waitcnt lgkmcnt(0)")
    a("s_barrier")
    stamp(a, 6)
    def xsel():
        a(f"ds_read_b32 v36, v2 offset:{L_SEL}")
        a(f"ds_read_b32 v37, v12 offset:{L_TAU}")
        a("v_mov_b32 v39, 0x7ffffff0")
        a("s_waitcnt lgkmcnt(1)")
        a("v_not_b32 v38, v36")
        a("v_and_b32 v38, 2047, v38")
        a("v_lshlrev_b32 v38, 11, v38")
        a("v_lshl_add_u32 v38, v10, 1, v38")
        a("v_cndmask_b32 v40, v39, v38, s[12:13]")
        a("v_cndmask_b32 v41, v38, v39, s[12:13]")
        for kap in range(2):
            for hf in range(2):
                a(f"buffer_load_dwordx4 {vr(B+8*kap+4*hf,4)}, v{40+hf}, {sr(SRD_X,4)}, 0 offen offset:{64*kap}")
    xsel()
    wloads(c["n3"], 16)
    a("v_lshrrev_b32 v42, 5, v1")
    a("v_bfe_u32 v43, v1, 4, 1")
    a("v_lshlrev_b32 v11, 15, v42")
    a("v_lshl_add_u32 v11, v43, 13, v11")
    a("v_and_b32 v44, 15, v1")
    a("v_lshl_add_u32 v11, v44, 3, v11")
    a(f"s_lshl_b32 s70, s{S_G}, 17")
    a(f"s_lshl_b32 s7, s{S_S}, 10")
    a("s_add_u32 s70, s70, s7")
    a("s_lshl_b32 s7, s3, 7")
    a("s_add_u32 s70, s70, s7")
    dl = [(kap, hi, p) for kap in range(2) for hi in range(2) for p in range(4)]
    dnt = "" if c["dpre"] else " nt"
    def dloads(lo, hi_):
        for (kap, hi, p) in dl[lo:hi_]:
            if p % 2 == 0:
                a(f"s_add_u32 s7, s70, {(32*kap+8*hi+p)*2048}")
            a(f"buffer_load_dwordx2 {vr(DR+16*kap+4*p+2*hi,2)}, v11, {sr(SRD_WD,4)}, s7 offen offset:{(p%2)*2048}{dnt}")
    nd1 = c["nd1"]
    assert nd1 % 2 == 0
    dloads(0, nd1)
    a("s_waitcnt lgkmcnt(0)")
    a("s_mov_b32 s6, 0")
    for i in range(4):
        a(f"v_cmp_le_u32 vcc, v37, v{KEY+i}")
        a("s_bcnt1_i32_b64 s7, vcc")
        a("s_add_u32 s6, s6, s7")
    a("v_mov_b32 v45, s6")
    a("s_mov_b64 exec, 1")
    a(f"ds_add_u32 v12, v45 offset:{L_CNT}")
    a("s_mov_b64 exec, -1")
    a("s_waitcnt lgkmcnt(0)")
    a("s_barrier")
    a(f"ds_read_b32 v45, v12 offset:{L_CNT}")
    def perms(kap):
        for e in range(8):
            for p in range(4):
                a(f"v_perm_b32 v{O+32*kap+4*e+p}, v{R+32*kap+4*(2*p+1)+e//2}, v{R+32*kap+4*(2*p)+e//2}, s{64+e%2}")
    assert c["n2"] >= 8
    perms(0)
    a("s_waitcnt lgkmcnt(0)")
    a("v_readfirstlane_b32 s6, v45")
    a("s_cmp_eq_u32 s6, 8")
    a("s_cbranch_scc0 LM_slow")
    a("LM_verified:")
    a("s_add_u32 s6, s2, s3")
    a("s_cmp_lg_u32 s6, 0")
    a("s_cbranch_scc1 LM_nokeys")
    a(f"v_mov_b32 v37, s{S_TAG}")
    a("v_lshlrev_b32 v45, 3, v1")
    a(f"v_add_u32 v45, {WS_KEYS}, v45")
    a(f"v_mov_b32 v46, {WS_E}")
    a("s_mov_b64 exec, 0xffff")
    a(f"global_store_dwordx2 v45, v[36:37], {sr(S_WS,2)} sc1")
    a("s_mov_b64 exec, 1")
    a(f"global_store_dword v46, v37, {sr(S_WS,2)} sc1")
    a("s_mov_b64 exec, -1")
    a(f"s_waitcnt vmcnt({nd1+2})")
    a("s_branch LM_keysdone")
    a("LM_nokeys:")
    a(f"s_waitcnt vmcnt({nd1})")
    a("LM_keysdone:")
    stamp(a, 7)
    a("v_lshlrev_b32 v45, 4, v43")
    a(f"ds_read_b128 v[48:51], v45 offset:{L_SEL}")
    for hf in range(2):
        for j in range(4):
            a(f"v_mfma_f32_16x16x32_bf16 {vr(ACC+4*j,4)}, {vr(O+4*(j+4*hf),4)}, {vr(B+4*hf,4)}, {vr(ACC+4*j,4) if hf else 0}")
            e = j + 4*hf
            for p in range(4):
                a(f"v_perm_b32 v{O+32+4*e+p}, v{R+32+4*(2*p+1)+e//2}, v{R+32+4*(2*p)+e//2}, s{64+e%2}")
    for hf in range(2):
        for j in range(4):
            a(f"v_mfma_f32_16x16x32_bf16 {vr(ACC+4*j,4)}, {vr(O+32+4*(j+4*hf),4)}, {vr(B+8+4*hf,4)}, {vr(ACC+4*j,4)}")
    a("s_lshl_b32 s6, s3, 12")
    a("v_add_u32 v45, s6, v3")
    a("s_and_b32 s6, s3, 3")
    a("s_lshl_b32 s6, s6, 10")
    a("s_lshr_b32 s7, s3, 2")
    a("s_lshl_b32 s71, s7, 3")
    a("s_add_u32 s6, s6, s71")
    a("v_add_u32 v46, s6, v3")
    a("s_waitcnt lgkmcnt(0)")
    for j in range(4):
        a(f"ds_write_b128 v45, {vr(ACC+4*j,4)} offset:{L_RED+1024*j}")
    for r in range(4):
        a(f"v_not_b32 v{52+r}, v{48+r}")
        a(f"v_and_b32 v{52+r}, 2047, v{52+r}")
        a(f"v_lshlrev_b32 v{52+r}, 2, v{52+r}")
    a("s_waitcnt lgkmcnt(0)")
    a("s_barrier")
    for w in range(8):
        a(f"ds_read_b64 {vr(O+2*w,2)}, v46 offset:{L_RED+4096*w}")
    for r in range(4):
        a(f"ds_read_b32 v{52+r}, v{52+r} offset:{L_RG}")
    a(f"s_lshl_b32 s6, s{S_G}, 1")
    a(f"s_add_u32 s6, s6, s{S_S}")
    a("s_lshl_b32 s6, s6, 12")
    a(f"s_add_u32 s6, s6, {WS_PRE}")
    a("v_add_u32 v47, s6, v14")
    a("v_xor_b32 v5, 4096, v47")
    a("s_mov_b32 s67, 0xffffff00")
    a(f"v_mov_b32 v13, s{S_TB}")
    a("s_waitcnt lgkmcnt(8)")
    a(f"v_pk_add_f32 {vr(O,2)}, {vr(O,2)}, {vr(O+2,2)}")
    a(f"v_pk_add_f32 {vr(O+4,2)}, {vr(O+4,2)}, {vr(O+6,2)}")
    a("s_waitcnt lgkmcnt(4)")
    a(f"v_pk_add_f32 {vr(O+8,2)}, {vr(O+8,2)}, {vr(O+10,2)}")
    a(f"v_pk_add_f32 {vr(O+12,2)}, {vr(O+12,2)}, {vr(O+14,2)}")
    a(f"v_pk_add_f32 {vr(O,2)}, {vr(O,2)}, {vr(O+4,2)}")
    a(f"v_pk_add_f32 {vr(O+8,2)}, {vr(O+8,2)}, {vr(O+12,2)}")
    a("s_nop 0")
    a(f"v_pk_add_f32 {vr(O,2)}, {vr(O,2)}, {vr(O+8,2)}")
    a("s_nop 0")
    a(f"v_and_or_b32 v{O+2}, v{O}, s67, v13")
    a(f"v_and_or_b32 v{O+3}, v{O+1}, s67, v13")
    a(f"global_store_dwordx2 v47, {vr(O+2,2)}, {sr(S_WS,2)} sc1")
    stamp(a, 8)
    a("s_waitcnt lgkmcnt(0)")
    for r in range(4):
        a(f"v_ashrrev_i32 v56, 31, v{48+r}")
        a("v_not_b32 v56, v56")
        a("v_or_b32 v56, 0x80000000, v56")
        a(f"v_xor_b32 v{48+r}, v{48+r}, v56")
        a(f"v_and_b32 v{48+r}, 0xffff0000, v{48+r}")
        a(f"v_mul_f32 v{48+r}, 0xbfb8aa3b, v{48+r}")
        a(f"v_exp_f32 v{48+r}, v{48+r}")
        a(f"v_lshlrev_b32 v{52+r}, 16, v{52+r}")
        a(f"v_add_f32 v{48+r}, 1.0, v{48+r}")
        a(f"v_rcp_f32 v{48+r}, v{48+r}")
        a(f"v_sub_f32 v{52+r}, 1.0, v{52+r}")
        a(f"v_cvt_pk_bf16_f32 v{48+r}, v{48+r}, v{48+r}")
        a(f"v_lshlrev_b32 v{48+r}, 16, v{48+r}")
        a(f"v_mul_f32 v{SC+r}, v{48+r}, v{52+r}")
    a("v_mul_u32_u24 v48, 144, v9")
    a("v_lshl_add_u32 v49, v43, 6, v48")
    a("v_bfe_u32 v50, v1, 3, 1")
    a("v_lshl_add_u32 v49, v50, 4, v49")
    a("v_lshl_add_u32 v49, v42, 1, v49")
    a("s_and_b32 s6, s3, 3")
    a("s_add_u32 s6, s6, s71")
    a("s_lshl_b32 s6, s6, 2")
    a("v_add_u32 v49, s6, v49")
    a("v_lshl_add_u32 v48, v8, 4, v48")
    a(f"v_mov_b32 v50, {L_ZERO-L_HB}")
    a("v_cndmask_b32 v51, v50, v48, s[12:13]")
    a("v_cndmask_b32 v52, v48, v50, s[12:13]")
    a("s_mov_b32 s14, 0")
    a("s_waitcnt vmcnt(0)")
    a(f"global_load_dwordx2 v[54:55], v5, {sr(S_WS,2)} sc1")
    dloads(nd1, 16)
    def dperms(kap):
        for e in range(4):
            for p in range(4):
                a(f"v_perm_b32 v{DO+16*kap+4*e+p}, v{DR+16*kap+4*p+2+e//2}, v{DR+16*kap+4*p+e//2}, s{64+e%2}")
    if nd1 >= 8: dperms(0)
    if nd1 >= 16: dperms(1)
    a(f"s_waitcnt vmcnt({16-nd1})")
    a("LM_poll2:")
    a("v_xor_b32 v2, v13, v54")
    a("v_bitop3_b32 v2, v55, v13, v2 bitop3:0xbe")
    a("v_and_b32 v2, 0xff, v2")
    a("v_cmp_ne_u32 vcc, 0, v2")
    a("s_cbranch_vccz LM_poll2_ok")
    a("s_add_u32 s14, s14, 1")
    a(f"s_cmp_ge_u32 s14, {SPIN}")
    a("s_cbranch_scc1 LM_poll2_ok")
    a(f"global_load_dwordx2 v[54:55], v5, {sr(S_WS,2)} sc1")
    a("s_waitcnt vmcnt(0)")
    a("s_branch LM_poll2")
    a("LM_poll2_ok:")
    if STAMP["on"]: a(f"s_mov_b32 s{ST0+22}, s14")
    stamp(a, 9)
    a(f"v_pk_add_f32 v[54:55], v[54:55], {vr(O,2)}")
    a("s_nop 1")
    a("v_permlane32_swap_b32 v54, v55")
    a("s_nop 1")
    a("v_cvt_pk_bf16_f32 v55, v54, v55")
    a("v_lshlrev_b32 v54, 16, v55")
    a("v_mul_f32 v56, 0xbfb8aa3b, v54")
    a("v_exp_f32 v56, v56")
    a("v_and_b32 v55, 0xffff0000, v55")
    a("v_add_f32 v56, 1.0, v56")
    a("v_rcp_f32 v56, v56")
    a("s_nop 0")
    a("v_mul_f32 v54, v54, v56")
    a("v_cvt_pk_bf16_f32 v54, v54, v54")
    a("v_lshlrev_b32 v54, 16, v54")
    a("v_mul_f32 v54, v54, v55")
    a("v_cvt_pk_bf16_f32 v54, v54, v54")
    a(f"ds_write_b16 v49, v54 offset:{L_HB}")
    a("s_waitcnt lgkmcnt(0)")
    a("s_barrier")
    for kap in range(2):
        for hf in range(2):
            a(f"ds_read_b128 {vr(B+8*kap+4*hf,4)}, v{51+hf} offset:{L_HB+64*kap}")
    a(f"s_lshl_b32 s6, s{S_S}, 3")
    a("s_add_u32 s6, s6, s3")
    a("s_lshl_b32 s6, s6, 17")
    a(f"s_lshl_b32 s7, s{S_G}, 8")
    a("s_add_u32 s6, s6, s7")
    a(f"s_add_u32 s6, s6, {WS_PART}")
    a("v_lshrrev_b32 v2, 1, v44")
    a("v_lshl_add_u32 v2, v2, 14, s6")
    a("v_and_b32 v45, 1, v1")
    a("v_lshl_add_u32 v2, v45, 6, v2")
    a("v_lshl_add_u32 v2, v8, 4, v2")
    a("s_waitcnt vmcnt(0)")
    if nd1 < 8: dperms(0)
    if nd1 < 16: dperms(1)
    a("s_waitcnt lgkmcnt(0)")
    a("s_nop 0")
    for kap in range(2):
        for hf in range(2):
            for j in range(2):
                first = kap == 0 and hf == 0
                a(f"v_mfma_f32_16x16x32_bf16 {vr(ACC+4*j,4)}, {vr(B+8*kap+4*hf,4)}, {vr(DO+16*kap+4*(2*j+hf),4)}, {vr(ACC+4*j,4) if not first else 0}")
    a("s_nop 6")
    for j in range(2):
        for r in range(0, 4, 2):
            a(f"v_pk_mul_f32 {vr(ACC+4*j+r,2)}, {vr(ACC+4*j+r,2)}, {vr(SC+r,2)}")
    for j in range(2):
        for r in range(4):
            a(f"v_and_or_b32 v{ACC+4*j+r}, v{ACC+4*j+r}, s67, v13")
        a(f"global_store_dwordx4 v2, {vr(ACC+4*j,4)}, {sr(S_WS,2)} offset:{128*j} sc1")
    stamp(a, 10)
    stamp_dump(a, 0, 13)
    a("s_endpgm")
    a("LM_slow:")
    a("s_waitcnt vmcnt(0)")
    KS = O + 32
    a("v_lshlrev_b32 v45, 4, v1")
    for i in range(8):
        a(f"ds_read_b128 {vr(KS+4*i,4)}, v45 offset:{L_RG+1024*i}")
    a("v_lshlrev_b32 v46, 2, v1")
    a("v_sub_u32 v46, 2047, v46")
    a("s_waitcnt lgkmcnt(0)")
    for i in range(32):
        a(f"v_subrev_u32 v47, {256*(i//4)+i%4}, v46")
        a(f"v_and_or_b32 v{KS+i}, v{KS+i}, s66, v47")
    a("s_mov_b32 s14, -1")
    a("s_mov_b32 s6, 0")
    a("LM_slow_rnd:")
    for i in range(0, 32, 2):
        a(f"v_sub_u32 v46, s14, v{KS+i}")
        a(f"v_sub_u32 v47, s14, v{KS+i+1}")
        a("v_min_u32 v45, v46, v47" if i == 0 else "v_min3_u32 v45, v46, v47, v45")
    for st in (f"row_shr:1 {DPP_FULL}", f"row_shr:2 {DPP_FULL}", f"row_shr:4 {DPP_FULL}", f"row_shr:8 {DPP_FULL}",
               "row_bcast:15 row_mask:0xa bank_mask:0xf", "row_bcast:31 row_mask:0xc bank_mask:0xf"):
        a("s_nop 1")
        a(f"v_min_u32_dpp v45, v45, v45 {st}")
    a("s_nop 0")
    a("v_readlane_b32 s15, v45, 63")
    a("s_sub_u32 s14, s14, s15")
    a("v_mov_b32 v46, s6")
    a("v_mov_b32 v47, s14")
    a(f"ds_write_b32 v46, v47 offset:{L_SEL}")
    a("s_sub_u32 s14, s14, 1")
    a("s_add_u32 s6, s6, 4")
    a("s_cmp_lt_u32 s6, 32")
    a("s_cbranch_scc1 LM_slow_rnd")
    a("s_waitcnt lgkmcnt(0)")
    a("v_lshlrev_b32 v2, 2, v9")
    xsel()
    a("s_waitcnt vmcnt(0) lgkmcnt(0)")
    a("s_branch LM_verified")
    a("LM_spare:")
    a("s_cmp_lg_u32 s2, 112")
    a("s_cbranch_scc1 LM_spare1")
    a("s_cmp_lg_u32 s3, 1")
    a("s_cbranch_scc1 LM_spare1")
    a(f"v_mov_b32 v40, s{S_TAG}")
    a("v_mov_b32 v41, 1")
    a("v_mov_b32 v2, 0")
    a("s_mov_b64 exec, 1")
    a(f"global_store_dwordx2 v2, v[40:41], {sr(S_DBG,2)} sc1")
    a("s_mov_b64 exec, -1")
    a("LM_spare1:")
    if c["sprefetch"]:
        a(f"s_lshr_b32 s6, s{S_WG}, 7")
        a("s_mul_i32 s7, s4, 7")
        a("s_add_u32 s6, s6, s7")
        a("s_sub_u32 s6, 3, s6")
        a("s_and_b32 s6, s6, 7")
        a("s_cmp_eq_u32 s6, 7")
        a("s_cbranch_scc1 LM_spare2")
        a("s_add_u32 s6, s6, s7")
        a("s_lshl_b32 s6, s6, 7")
        a(f"s_lshl_b32 s7, s{S_S}, 3")
        a("s_add_u32 s7, s7, s3")
        a("s_lshl_b32 s7, s7, 6")
        a("s_add_u32 s7, s7, 32")
        a("v_and_b32 v2, 31, v1")
        a("v_add_u32 v2, s7, v2")
        a("v_mul_u32_u24 v2, 7168, v2")
        a("v_add_u32 v2, s6, v2")
        a("s_mov_b32 exec_hi, 0")
        a(f"global_load_dword v40, v2, {sr(S_WG,2)}")
        a(f"global_load_dword v41, v2, {sr(S_WU,2)}")
        a("s_mov_b64 exec, -1")
        a("s_waitcnt vmcnt(0)")
        a("LM_spare2:")
    stamp_dump(a, 0, 13)
    a("s_endpgm")

ROWB = 528
REG = 16960
KE, KO, TB, UB, YB = 32, 1252, 2352, 4096, 8704
GB = 8 * REG
RED2 = GB + 8192
LDS_TOTAL = RED2 + 2048

def conv(a):
    c = CFG
    C3, C5, C7, C9, C2 = 12, 16, 20, 24, 28
    ACC, A, T, BX, BR, EP, SD = 32, 64, 132, 172, 196, 232, 248
    EOP, GOP, U, PL, TG = 64, 132, 196, 212, 220
    S_COL, S_REG, S_TAG = 60, 61, 62
    a("s_and_b32 s4, s2, 7")
    a("s_bfe_u32 s5, s2, 0x40003")
    a("s_lshl_b32 s6, s4, 4")
    a("s_add_u32 s63, s6, s5")
    a(f"s_lshl_b32 s{S_COL}, s63, 4")
    a("s_lshl_b32 s6, s63, 3")
    a("s_add_u32 s6, s6, s3")
    a("s_lshl_b32 s7, s6, 8")
    a("v_lshl_add_u32 v3, v1, 2, s7")
    a("s_lshl_b32 s7, s6, 1")
    a("v_mov_b32 v4, s7")
    a("v_lshlrev_b32 v5, 13, v0")
    a("v_lshlrev_b32 v11, 11, v0")
    a(f"s_mul_i32 s{S_REG}, s3, {REG}")
    a(f"s_mov_b32 m0, s{S_REG}")
    a("s_waitcnt lgkmcnt(0)")
    PR = 64
    for i, s in enumerate((S_LA, S_AI, S_CR, S_CI)):
        a(f"global_load_dword v{PR+i}, v3, {sr(s,2)}")
    a(f"global_load_ushort v{PR+4}, v4, {sr(S_LDT,2)}")
    a(f"global_load_ushort v10, v4, {sr(S_DSK,2)}")
    a.srd(SRD_X, S_X, 4194304)
    a.srd(SRD_OUT, S_OUT, 4194304)
    if c["upre"]:
        a("s_and_b32 s6, s5, 7")
        a("s_lshl_b32 s6, s6, 3")
        a("s_add_u32 s6, s6, s3")
        a("s_lshl_b32 s6, s6, 16")
        a(f"s_add_u32 s6, s6, s{S_COL}")
        a("v_lshlrev_b32 v2, 11, v1")
        a("s_mov_b32 exec_hi, 0")
        a(f"buffer_load_dword v254, v2, {sr(SRD_X,4)}, s6 offen")
        a("s_mov_b64 exec, -1")
    a(f"s_add_u32 s8, s{S_COL}, 4096")
    def uload(e):
        a(f"buffer_load_dwordx4 {vr(U+4*e,4)}, v5, {sr(SRD_X,4)}, s{S_COL if e < 2 else 8} offen offset:{(e%2)*2048}")
    uload(0)
    nafter = 1 + (1 if c["upre"] else 0)
    a("v_and_b32 v6, 15, v1")
    a("v_lshrrev_b32 v7, 4, v1")
    a("v_lshl_add_u32 v2, v7, 3, v6")
    a("v_min_u32 v2, 31, v2")
    a("s_mov_b32 s9, 0x10001")
    for (cr, lo, hi, mul) in ((C3, 18, 20, 0x3f80), (C5, 21, 25, 0x3f80), (C7, 20, 26, 0x3f80), (C9, 19, 27, 0x3f80), (C2, 18, 19, 0xffff)):
        a(f"s_mov_b32 s6, {((1 << (hi+1)) - (1 << lo)):#x}")
        a("v_bfe_u32 v3, s6, v2, 8")
        a("v_lshl_or_b32 v3, v3, 15, v3")
        for p in range(4):
            if p: a(f"v_lshrrev_b32 v{cr+p}, {2*p}, v3")
            a(f"v_and_b32 v{cr+p}, s9, v{cr+p if p else 3}")
            a(f"v_mul_u32_u24 v{cr+p}, {mul:#x}, v{cr+p}")
    nx = [GOP]
    def newp():
        p = (nx[0], nx[0] + 2); nx[0] += 4; return p
    W1, W8, W256, G0 = newp(), newp(), newp(), newp()
    TT = newp()
    PK = [nx[0], nx[0] + 2, nx[0] + 4]; nx[0] += 8
    Z = 72
    stamp(a, 1)
    a(f"s_waitcnt vmcnt({nafter})")
    stamp(a, 2)
    d = PR + 4
    a(f"v_lshlrev_b32 v{d}, 16, v{d}")
    a(f"v_mul_f32 v{d}, {LOG2E}, v{d}")
    a(f"v_lshlrev_b32 v{Z}, 16, v{PR}")
    a(f"v_and_b32 v{Z+2}, 0xffff0000, v{PR}")
    a(f"v_exp_f32 v{d}, v{d}")
    a(f"v_mul_f32 v{Z}, {LOG2E}, v{Z}")
    a(f"v_mul_f32 v{Z+2}, {LOG2E}, v{Z+2}")
    a(f"v_cvt_pk_bf16_f32 v{d}, v{d}, v{d}")
    a(f"v_exp_f32 v{Z}, v{Z}")
    a(f"v_exp_f32 v{Z+2}, v{Z+2}")
    a(f"v_lshlrev_b32 v{d}, 16, v{d}")
    a("v_lshlrev_b32 v10, 16, v10")
    a(f"v_cvt_pk_bf16_f32 v{Z+2}, v{Z}, v{Z+2}")
    a(f"v_mul_f32 v76, 0xbfb8aa3b, v{d}")
    a(f"v_mul_f32 v77, {INV2PI}, v{d}")
    a(f"v_add_f32 v78, v{d}, v{d}")
    a(f"v_lshlrev_b32 v{Z}, 16, v{Z+2}")
    a(f"v_and_b32 v{Z+2}, 0xffff0000, v{Z+2}")
    a(f"v_lshlrev_b32 v{Z+1}, 16, v{PR+1}")
    a(f"v_and_b32 v{Z+3}, 0xffff0000, v{PR+1}")
    a(f"v_pk_mul_f32 {vr(Z,2)}, {vr(Z,2)}, v[76:77]")
    a(f"v_pk_mul_f32 {vr(Z+2,2)}, {vr(Z+2,2)}, v[76:77]")
    a(f"v_lshlrev_b32 v{G0[0]}, 16, v{PR+2}")
    a(f"v_and_b32 v{G0[1]}, 0xffff0000, v{PR+2}")
    a(f"v_lshlrev_b32 v{G0[0]+1}, 16, v{PR+3}")
    a(f"v_and_b32 v{G0[1]+1}, 0xffff0000, v{PR+3}")
    for r in (G0[0], G0[0]+1, G0[1], G0[1]+1):
        a(f"v_mul_f32 v{r}, v{r}, v78")
    for sc, W in (("0x41000000", W8), ("0x43800000", W256), (None, W1)):
        for m in range(2):
            if sc:
                a(f"v_mul_f32 v{80+2*m}, {sc}, v{Z+2*m}")
                a(f"v_mul_f32 v{81+2*m}, {sc}, v{Z+1+2*m}")
        src = 80 if sc else Z
        for m in range(2):
            a(f"v_exp_f32 v{80+2*m}, v{src+2*m}")
            a(f"v_fract_f32 v{81+2*m}, v{src+1+2*m}")
        for m in range(2):
            a(f"v_cos_f32 v{W[m]}, v{81+2*m}")
            a(f"v_sin_f32 v{W[m]+1}, v{81+2*m}")
        a("s_nop 0")
        for m in range(2):
            a(f"v_mul_f32 v{W[m]}, v{W[m]}, v{80+2*m}")
            a(f"v_mul_f32 v{W[m]+1}, v{W[m]+1}, v{80+2*m}")
    uload(1)
    a("v_mov_b32 v84, 0x3f80")
    a("ds_write_addtid_b32 v84")
    a("ds_write_addtid_b32 v84 offset:256")
    kk = [0]
    def run_steps(steps, neg, hooks={}):
        n = "-" if neg else ""
        pend = None; pw = None
        for si, (dst, src, w, rows) in enumerate(steps + [(None,)*4, (None,)*4]):
            x = y = [None, None]
            if w is not None:
                x = cmul(dst[0], src[0], w[0], TT[0]); y = cmul(dst[1], src[1], w[1], TT[1])
            cA = cB = None
            if pend:
                p = PK[kk[0] % 3]; kk[0] += 1
                cA = f"v_cvt_pk_bf16_f32 v{p}, v{pend[0][0]}, {n}v{pend[0][0]+1}"
                cB = f"v_cvt_pk_bf16_f32 v{p+1}, v{pend[0][1]}, {n}v{pend[0][1]+1}"
            wa = [f"ds_write_addtid_b32 v{pw[0]} offset:{r*ROWB}" for r in pw[1]] if pw else []
            wb = [f"ds_write_addtid_b32 v{pw[0]+1} offset:{r*ROWB+256}" for r in pw[1]] if pw else []
            for s in [x[0], y[0]] + wa + [cA, x[1], y[1]] + wb + [cB]:
                if s: a(s)
            pw = (p, pend[1]) if pend else None
            pend = (dst, rows) if rows else None
            if si in hooks: hooks[si]()
    EA, EB = newp(), newp()
    steps = [(W8, None, None, [1])]
    cur = W8
    for b in range(2, 32):
        nxt = EA if b % 2 == 0 else EB
        steps.append((nxt, cur, W8, [b])); cur = nxt
    a(".p2align 3")
    run_steps(steps, False, {10: lambda: uload(2), 24: lambda: uload(3)})
    a("v_and_b32 v2, 31, v1")
    a(f"v_mul_u32_u24 v8, {ROWB}, v2")
    a("v_lshrrev_b32 v3, 5, v1")
    a(f"v_lshl_add_u32 v3, v3, 4, s{S_REG}")
    a("v_add_u32 v8, v8, v3")
    for s in range(16):
        a(f"ds_read_b128 {vr(EOP+4*s,4)}, v8 offset:{32*s}")
    def drow(r, h): return 8*(r//4) + 4*h + (r % 4)
    want = {}
    def put(al, r, h): want.setdefault(al, []).append(drow(r, h))
    for h in range(2):
        for j in range(4): put(4*h + j, j, h)
        for j in range(3): put(256 + 4*h + 2*j, 4 + j, h)
        put(4*h + 4, 7, h)
        for j in range(2): put(512 + 256*h + 4 + 4*j, 8 + j, h)
        for q in range(2): put(1024 + 512*h + 256*q + 8, 10 + q, h)
    keep = {al: newp() for al in (2, 4, 6, 8)}
    tA, tB = EA, EB
    steps = []
    def st(al, dst, src, w): steps.append((dst, src, w, want.pop(al)))
    st(0, G0, None, None)
    cur = G0
    for al in range(1, 9):
        dd = keep.get(al) or (tA if al % 4 == 1 else tB)
        st(al, dd, cur, W1); cur = dd
    c8 = [keep[8], tA]; c4 = [keep[4], tB]
    e1 = newp()
    singles = [(256, G0), (258, keep[2]), (262, keep[6])]
    for k in range(1, 8):
        st(256*k + 8, c8[k % 2], c8[(k-1) % 2], W256)
        if k <= 3: st(256*k + 4, c4[k % 2], c4[(k-1) % 2], W256)
        elif singles:
            al, src = singles.pop(0)
            st(al, e1, src, W256)
    assert not want and not singles and nx[0] <= GOP + 64
    def late_loads():
        if c["dpre"]:
            a("s_mul_i32 s6, s63, 28")
            a("s_lshl_b32 s6, s6, 11")
            a("v_min_u32 v2, 447, v0")
            a("v_lshl_add_u32 v2, v2, 7, s6")
            a(f"global_load_dword v254, v2, {sr(S_WD,2)}")
    def poll_loads():
        a(f"global_load_dwordx2 {vr(TG,2)}, v{TG+2}, {sr(S_DBG,2)} sc1")
        for q in range(2):
            a(f"global_load_dwordx4 {vr(PL+4*q,4)}, v{TG+3}, {sr(S_WS,2)} offset:{1024*q} sc1")
    a(f"v_mov_b32 v{TG+2}, 0")
    a("s_lshl_b32 s6, s3, 11")
    a(f"s_add_u32 s6, s6, {WS_RG}")
    a(f"v_lshl_add_u32 v{TG+3}, v1, 4, s6")
    a(".p2align 3")
    run_steps(steps, True)
    stamp(a, 3)
    poll_loads()
    late_loads()
    nlate = 1 if c["dpre"] else 0
    if STAMP["on"]: a("s_waitcnt lgkmcnt(0)")
    for s in range(16):
        a(f"ds_read_b128 {vr(GOP+4*s,4)}, v8 offset:{32*s}")
    D = 32
    for s in range(16):
        a(f"s_waitcnt lgkmcnt({15-s})")
        a(f"v_mfma_f32_32x32x16_bf16 {vr(D,16)}, {vr(GOP+4*s,4)}, {vr(EOP+4*s,4)}, {vr(D,16) if s else 0}")
    a("s_barrier")
    stamp(a, 4)
    for r in range(4): a(f"v_mov_b32 v{48+r}, 0")
    a(f"v_lshl_add_u32 v2, v1, 4, s{S_REG}")
    a("v_cmp_lt_u32 vcc, 1, v1")
    a("v_mov_b32 v3, 1024")
    a("v_mov_b32 v4, 7680")
    a("v_cndmask_b32 v3, 0, v3, vcc")
    a("v_cmp_lt_u32 vcc, 31, v1")
    a("ds_write_b128 v2, v[48:51] offset:2272")
    a("v_and_b32 v8, 1, v1")
    a("v_cndmask_b32 v3, v3, v4, vcc")
    a("v_cmp_eq_u32 s[14:15], 1, v8")
    a("v_add_u32 v3, v3, v2")
    a("ds_write_b128 v3, v[48:51]")
    a("s_mov_b32 s64, 0x05040100")
    a("s_mov_b32 s65, 0x07060302")
    a("v_lshlrev_b32 v2, 3, v0")
    a(f"v_sub_u32 v2, {UB+4088}, v2")
    a(f"v_add_u32 v3, {4*REG}, v2")
    a(f"s_waitcnt vmcnt({3+nlate})")
    stamp(a, 5)
    for ch in range(8):
        o = EP + 2*ch
        a(f"v_perm_b32 v{o}, v{U+8+ch//2}, v{U+12+ch//2}, s{64+ch%2}")
        a(f"v_perm_b32 v{o+1}, v{U+ch//2}, v{U+4+ch//2}, s{64+ch%2}")
        a(f"ds_write_b64 v{2+ch//4}, {vr(o,2)} offset:{(ch%4)*REG}")
    a("v_and_b32 v2, 31, v1")
    a("v_lshrrev_b32 v3, 5, v1")
    a("v_cmp_eq_u32 vcc, 0, v1")
    a(f"v_lshl_add_u32 v4, v2, 4, s{S_REG}")
    a("v_lshl_add_u32 v4, v3, 3, v4")
    a("v_cndmask_b32 v10, 0, v10, vcc")
    a(f"v_add_f32 v{D}, v{D}, v10")
    t = 48
    a(f"v_cvt_pk_bf16_f32 v{t+1}, v{D+2}, v{D+3}")
    a(f"v_cvt_pk_bf16_f32 v{t}, v{D}, v{D+1}")
    a(f"v_cvt_pk_bf16_f32 v{t+2}, v{D+4}, v{D+4}")
    a(f"v_cvt_pk_bf16_f32 v{t+3}, v{D+5}, v{D+6}")
    a(f"ds_write_b64 v4, {vr(t,2)} offset:{KE}")
    a(f"ds_write_b64 v4, {vr(t+2,2)} offset:{KE+512}")
    a(f"v_cvt_pk_bf16_f32 v{t+4}, v{D+1}, v{D+2}")
    a(f"v_cvt_pk_bf16_f32 v{t+5}, v{D+3}, v{D+7}")
    a(f"v_cvt_pk_bf16_f32 v{t+6}, v{D+4}, v{D+5}")
    a(f"v_cvt_pk_bf16_f32 v{t+7}, v{D+6}, v{D+6}")
    a(f"ds_write_b64 v4, {vr(t+4,2)} offset:{KO+4}")
    a(f"ds_write_b64 v4, {vr(t+6,2)} offset:{KO+4+512}")
    a(f"v_lshlrev_b32 v{t+8}, 16, v{t}")
    a(f"v_mov_b32 v{t+10}, v{t+7}")
    a(f"v_and_b32 v{t+11}, 0xffff, v{t+7}")
    a(f"v_cvt_pk_bf16_f32 v{t+12}, v{D+8}, v{D+9}")
    a(f"v_cvt_pk_bf16_f32 v{t+13}, v{D+10}, v{D+11}")
    a(f"v_cvt_pk_bf16_f32 v{t+14}, v{D+9}, v{D+9}")
    a("s_mov_b64 exec, 1")
    a(f"ds_write_b32 v4, v{t+8} offset:{KO}")
    a("s_mov_b32 exec_lo, 0")
    a("s_mov_b32 exec_hi, 0x80000000")
    a(f"ds_write_b64 v4, {vr(t+10,2)} offset:{KE+1024-504}")
    a(f"ds_write_b32 v4, v{t+10} offset:{KO+1028-504}")
    a("s_mov_b64 exec, -1")
    a(f"v_readlane_b32 s6, v{t+14}, 63")
    a("v_lshrrev_b32 v8, 1, v2")
    a(f"v_lshl_add_u32 v8, v8, 2, s{S_REG}")
    a("v_lshl_add_u32 v8, v3, 6, v8")
    a("v_add_u32 v9, 192, v8")
    a("v_cndmask_b32 v8, v8, v9, s[14:15]")
    a(f"ds_write_b32 v8, v{t+12} offset:{TB+64}")
    a(f"v_lshl_add_u32 v8, v2, 1, s{S_REG}")
    a("v_lshl_add_u32 v8, v3, 7, v8")
    a(f"ds_write_b16 v8, v{t+13} offset:{TB+448}")
    a(f"ds_write_b16_d16_hi v8, v{t+13} offset:{TB+448+64}")
    for p in range(4):
        a(f"v_and_b32 v{C2+p}, s6, v{C2+p}")
    a("v_and_b32 v2, 14, v1")
    a("v_lshlrev_b32 v2, 1, v2")
    a("v_lshl_add_u32 v2, v7, 4, v2")
    a(f"v_mov_b32 v3, {KO-28}")
    a(f"v_mov_b32 v4, {KE-28}")
    a("v_cndmask_b32 v3, v3, v4, s[14:15]")
    a(f"v_add3_u32 v2, v2, v3, s{S_REG}")
    a("v_add_u32 v3, 1024, v2")
    a("v_lshlrev_b32 v4, 4, v7")
    a(f"v_lshl_add_u32 v8, v6, 2, s{S_REG}")
    a("v_sub_u32 v4, v8, v4")
    a(f"v_add_u32 v4, {TB}, v4")
    for tt in range(17):
        base, o = (2, 16*tt) if tt < 16 else (3, 0)
        a(f"ds_read2_b32 {vr(A+4*tt,2)}, v{base} offset0:{o} offset1:{o+1}")
        a(f"ds_read2_b32 {vr(A+4*tt+2,2)}, v{base} offset0:{o+2} offset1:{o+3}")
    TP12 = {dl: T + 4*(dl-2) for dl in (2, 3, 4)}
    TP34 = {dl: T + 12 + 4*(dl-2) for dl in (2, 3, 4)}
    TQ = {dl: T + 24 + 4*(dl-4) for dl in (4, 5, 6, 7)}
    for tab, off in ((TP12, -16), (TP34, 32), (TQ, 48)):
        for dl, r in tab.items():
            o = off + 16*dl
            a(f"ds_read2_b32 {vr(r,2)}, v4 offset0:{o} offset1:{o-1}")
            a(f"ds_read2_b32 {vr(r+2,2)}, v4 offset0:{o-2} offset1:{o-3}")
    a("v_bfe_u32 v2, v1, 1, 2")
    a("v_lshlrev_b32 v2, 8, v2")
    a("v_lshrrev_b32 v3, 3, v1")
    a("v_lshl_add_u32 v2, v3, 4, v2")
    a("v_and_b32 v3, 1, v1")
    a("v_lshl_add_u32 v2, v3, 3, v2")
    a("s_lshl_b32 s6, s3, 10")
    a(f"s_add_u32 s6, s6, {GB}")
    a("v_add_u32 v2, s6, v2")
    a("s_mov_b32 s10, 0")
    a(f"s_waitcnt vmcnt({nlate})")
    a("LC_poll1:")
    a(f"v_xor_b32 v3, 1, v{TG+1}")
    for i in (1, 3, 5, 7):
        a(f"v_bitop3_b32 v3, v{PL+i}, v{TG}, v3 bitop3:0xbe")
    a("v_cmp_ne_u32 vcc, 0, v3")
    a("s_cbranch_vccz LC_poll1_ok")
    a("s_add_u32 s10, s10, 1")
    a(f"s_cmp_ge_u32 s10, {SPIN}")
    a("s_cbranch_scc1 LC_poll1_ok")
    a("s_mov_b64 exec, vcc")
    poll_loads()
    a("s_mov_b64 exec, -1")
    a("s_waitcnt vmcnt(0)")
    a("s_branch LC_poll1")
    a("LC_poll1_ok:")
    if STAMP["on"]: a(f"s_mov_b32 s{ST0+24}, s10")
    a(f"v_readfirstlane_b32 s{S_TAG}, v{TG}")
    for q in range(2):
        a(f"v_lshlrev_b32 v{PL+4*q}, 16, v{PL+4*q}")
        a(f"v_lshlrev_b32 v{PL+4*q+1}, 16, v{PL+4*q+2}")
        a(f"ds_write_b64 v2, {vr(PL+4*q,2)} offset:{128*q}")
    VB, VU, VG, VY, VT0, VT1 = 2, 3, 4, 5, 8, 9
    a("v_lshlrev_b32 v10, 5, v6")
    a(f"v_sub_u32 v10, s{S_REG}, v10")
    a("v_lshl_add_u32 v252, v7, 4, v10")
    a("v_lshlrev_b32 v253, 3, v7")
    a(f"v_sub_u32 v{VU}, v10, v253")
    a(f"v_add_u32 v{VU}, {UB+504}, v{VU}")
    a(f"v_lshlrev_b32 v{VG}, 4, v1")
    a(f"v_add_u32 v{VG}, {GB}, v{VG}")
    a(f"v_lshl_add_u32 v{VY}, v6, 5, v253")
    a(f"v_add_u32 v{VY}, s{S_REG}, v{VY}")
    a("v_bfe_u32 v253, v1, 2, 2")
    a(f"v_mul_u32_u24 v{VT0}, {REG}, v253")
    a("v_and_b32 v253, 3, v1")
    a(f"v_lshl_add_u32 v{VT0}, v253, 3, v{VT0}")
    a(f"v_lshl_add_u32 v{VT0}, v7, 5, v{VT0}")
    a("s_lshl_b32 s6, s3, 7")
    a(f"s_add_u32 s6, s6, {YB}")
    a(f"v_add_u32 v{VT0}, s6, v{VT0}")
    a(f"v_add_u32 v{VT1}, {4*REG}, v{VT0}")
    a("s_waitcnt lgkmcnt(0)")
    a(f"v_add_u32 v{VB}, {UB+480}, v252")
    a("s_barrier")
    stamp(a, 6)
    if STAMP["on"]: a("s_waitcnt lgkmcnt(0)")
    Q = []
    def lds(name, s):
        a(s); Q.append(name)
    def need(*names):
        idx = max(max(i for i, n in enumerate(Q) if n == nm) for nm in names)
        n = len(Q) - 1 - idx
        if need.done >= idx: return
        need.done = idx
        a(f"s_waitcnt lgkmcnt({min(n, 15)})")
    need.done = -1
    def bslot(k): return BR + 4*k
    def bload(cc, k):
        off = 3584 - 512*cc + (64*k if k < 8 else 16)
        lds(("B", cc, k), f"ds_read_b128 {vr(bslot(k),4)}, v{VB} offset:{off}")
    started = set()
    def mm(Tt, ra, rb):
        if Tt > 7: return False
        a(f"v_mfma_f32_16x16x32_bf16 {vr(ACC+4*Tt,4)}, {vr(ra,4)}, {vr(rb,4)}, {vr(ACC+4*Tt,4) if Tt in started else 0}")
        started.add(Tt); return True
    order = [0, 8, 1, 2, 3, 4, 5, 6, 7]
    for k in order: bload(0, k)
    for cc in range(8):
        hasP, hasQ = cc <= 5, cc <= 3
        nxt = (lambda k: bload(cc+1, k) if (cc < 7 and (k < 8 or cc + 1 <= 5)) else None)
        lds(("u", cc), f"ds_read_b64 {vr(EP,2)}, v{VU} offset:{3584-512*cc}")
        lds(("g", cc), f"ds_read_b128 {vr(EP+4,4)}, v{VG} offset:{1024*cc}")
        need(("B", cc, 0))
        box = lambda i, rb, rc: a(f"v_mfma_f32_16x16x32_bf16 {vr(BX+4*i,4)}, {vr(rb,4)}, {vr(rc,4)}, 0")
        if hasP:
            box(0, bslot(0), C3); box(1, bslot(0), C5)
            if hasQ: box(4, bslot(0), C7)
            need(("B", cc, 8))
            box(2, bslot(8), C3); box(3, bslot(8), C5)
            if hasQ: box(5, bslot(8), C9)
        mm(cc, A, bslot(0)); mm(cc+1, A+32, bslot(0)); mm(cc+2, A+64, bslot(0)); mm(cc+4, C2, bslot(0))
        nxt(0); nxt(8)
        cv = []
        if hasP:
            for i in ((0, 2, 4) if hasQ else (0, 2)):
                cv += [f"v_cvt_pk_bf16_f32 v{BX+4*i+p}, v{BX+4*i+p}, v{BX+4*i+4+p}" for p in range(4)]
        un = [f"v_and_b32 v{EP+8}, 0xffff0000, v{EP+1}", f"v_lshlrev_b32 v{EP+9}, 16, v{EP+1}",
              f"v_and_b32 v{EP+10}, 0xffff0000, v{EP}", f"v_lshlrev_b32 v{EP+11}, 16, v{EP}"]
        for t0 in range(1, 8):
            need(("B", cc, t0))
            mm(cc, A+4*t0, bslot(t0))
            if t0 >= 2 and cv: a(cv.pop(0))
            mm(cc+1, A+32+4*t0, bslot(t0))
            if t0 >= 2 and cv: a(cv.pop(0))
            nxt(t0)
        assert not cv
        mains = []
        if hasP:
            for dl in (2, 3, 4):
                if cc + dl <= 7: mains += [(cc+dl, BX, TP12[dl]), (cc+dl, BX+8, TP34[dl])]
        if hasQ:
            for dl in (4, 5, 6, 7):
                if cc + dl <= 7: mains.append((cc+dl, BX+16, TQ[dl]))
        r = ACC + 4*cc
        ep = [f"v_pk_add_f32 {vr(r,2)}, {vr(r,2)}, {vr(EP+8,2)} neg_lo:[0,1] neg_hi:[0,1]",
              f"v_pk_add_f32 {vr(r+2,2)}, {vr(r+2,2)}, {vr(EP+10,2)} neg_lo:[0,1] neg_hi:[0,1]",
              f"v_pk_fma_f32 {vr(r,2)}, {vr(EP+4,2)}, {vr(r,2)}, {vr(EP+8,2)}",
              f"v_pk_fma_f32 {vr(r+2,2)}, {vr(EP+6,2)}, {vr(r+2,2)}, {vr(EP+10,2)}",
              f"v_cvt_pk_bf16_f32 v{EP+12}, v{r}, v{r+1}",
              f"v_cvt_pk_bf16_f32 v{EP+13}, v{r+2}, v{r+3}"]
        need(("g", cc))
        dist = 1 if cc < 7 else 0
        for s in un: a(s); dist += 1
        while mains and dist < 8:
            mm(*mains.pop(0)); dist += 1
        if dist < 8: a(f"s_nop {8-dist-1}")
        while ep:
            a(ep.pop(0))
            if mains: mm(*mains.pop(0))
        lds(("y", cc), f"ds_write_b64 v{VY}, {vr(EP+12,2)} offset:{YB+512*cc}")
        while mains: mm(*mains.pop(0))
        if cc % 2 == 1:
            P = cc // 2
            need(("y", cc))
            a("s_barrier")
            lds(("t0", P), f"ds_read_b64_tr_b16 {vr(SD,2)}, v{VT0} offset:{1024*P}")
            lds(("t1", P), f"ds_read_b64_tr_b16 {vr(SD+2,2)}, v{VT1} offset:{1024*P}")
            a(f"s_add_u32 s6, s{S_COL}, {P << 20}")
            need(("t1", P))
            a(f"buffer_store_dwordx4 {vr(SD,4)}, v11, {sr(SRD_OUT,4)}, s6 offen")
            stamp(a, 7 + P)
            if STAMP["on"]:
                a("s_waitcnt lgkmcnt(0)"); need.done = len(Q) - 1
    a(f"s_and_b32 s7, s{S_TAG}, 0xff")
    a("s_mov_b32 s10, 0")
    a("s_cmp_eq_u32 s3, 7")
    a("s_cbranch_scc1 LC_keys")
    a("s_lshl_b32 s6, s63, 3")
    a("s_add_u32 s6, s6, s3")
    a("s_lshl_b32 s6, s6, 11")
    a(f"s_add_u32 s6, s6, {WS_PART}")
    a("v_lshl_add_u32 v2, v1, 4, s6")
    a("LC_poll3:")
    for q in range(2):
        a(f"global_load_dwordx4 {vr(64+4*q,4)}, v2, {sr(S_WS,2)} offset:{1024*q} sc1")
    a("s_mov_b64 exec, -1")
    a("s_waitcnt vmcnt(0)")
    a("v_xor_b32 v3, s7, v64")
    for i in range(1, 8):
        a(f"v_bitop3_b32 v3, v{64+i}, s7, v3 bitop3:0xbe")
    a("v_and_b32 v3, 0xff, v3")
    a("v_cmp_ne_u32 vcc, 0, v3")
    a("s_cbranch_vccz LC_poll3_ok")
    a("s_add_u32 s10, s10, 1")
    a(f"s_cmp_ge_u32 s10, {SPIN}")
    a("s_cbranch_scc1 LC_poll3_ok")
    a("s_sleep 4")
    a("s_mov_b64 exec, vcc")
    a("s_branch LC_poll3")
    a("LC_poll3_ok:")
    if STAMP["on"]: a(f"s_mov_b32 s{ST0+22}, s10")
    a("v_pk_add_f32 v[64:65], v[64:65], v[68:69]")
    a("v_pk_add_f32 v[66:67], v[66:67], v[70:71]")
    a("s_lshl_b32 s6, s3, 8")
    a(f"s_add_u32 s6, s6, {RED2}")
    a("v_permlane32_swap_b32 v64, v66")
    a("v_permlane32_swap_b32 v65, v67")
    a("v_lshl_add_u32 v2, v1, 2, s6")
    a("s_nop 0")
    a("v_pk_add_f32 v[64:65], v[64:65], v[66:67]")
    a("s_nop 1")
    a("v_permlane16_swap_b32 v64, v65")
    a("s_nop 1")
    a("v_add_f32 v64, v64, v65")
    a("ds_write_b32 v2, v64")
    a("s_waitcnt lgkmcnt(0)")
    a("s_barrier")
    stamp_dump(a, 0, 13)
    a("s_endpgm")
    a("LC_keys:")
    a("v_and_b32 v2, 1, v1")
    a("v_lshl_add_u32 v2, v2, 2, v7")
    a("v_lshlrev_b32 v2, 3, v2")
    a(f"v_add_u32 v2, {WS_KEYS}, v2")
    a("LC_poll4:")
    a(f"global_load_dwordx2 v[64:65], v2, {sr(S_WS,2)} sc1")
    a("v_and_b32 v3, 4, v1")
    a("v_bfe_u32 v4, v1, 3, 1")
    a("v_lshl_add_u32 v3, v4, 1, v3")
    a("v_bfe_u32 v4, v1, 1, 1")
    a("v_add_u32 v3, v3, v4")
    a("s_waitcnt vmcnt(0)")
    a(f"v_cmp_ne_u32 vcc, s{S_TAG}, v65")
    a("s_cbranch_vccz LC_poll4_ok")
    a("s_add_u32 s10, s10, 1")
    a(f"s_cmp_ge_u32 s10, {SPIN}")
    a("s_cbranch_scc1 LC_poll4_ok")
    a("s_sleep 4")
    a("s_branch LC_poll4")
    a("LC_poll4_ok:")
    a("v_not_b32 v64, v64")
    a("v_and_b32 v64, 2047, v64")
    a(f"v_mul_u32_u24 v4, {REG}, v3")
    a("v_lshl_add_u32 v4, v64, 1, v4")
    a(f"ds_read_u16 v66, v4 offset:{YB}")
    a("v_lshlrev_b32 v64, 11, v64")
    a("v_lshl_add_u32 v64, v3, 1, v64")
    a("v_lshlrev_b32 v2, 2, v1")
    a(f"v_add_u32 v2, {RED2}, v2")
    a("s_waitcnt lgkmcnt(0)")
    a("v_lshlrev_b32 v66, 16, v66")
    a("s_barrier")
    for w in range(0, 6, 2):
        a(f"ds_read2st64_b32 {vr(68+w,2)}, v2 offset0:{w} offset1:{w+1}")
    a("ds_read_b32 v67, v2 offset:1536")
    a("s_waitcnt lgkmcnt(2)")
    a("v_pk_add_f32 v[68:69], v[68:69], v[70:71]")
    a("s_waitcnt lgkmcnt(0)")
    a("v_pk_add_f32 v[66:67], v[66:67], v[72:73]")
    a("s_nop 0")
    a("v_pk_add_f32 v[66:67], v[66:67], v[68:69]")
    a("s_nop 0")
    a("v_add_f32 v66, v66, v67")
    a("v_cvt_pk_bf16_f32 v66, v66, v66")
    a(f"buffer_store_short v66, v64, {sr(SRD_OUT,4)}, s{S_COL} offen")
    stamp_dump(a, 0, 13)
    a("s_endpgm")

def build():
    a = Asm()
    stamp_init(a)
    a("s_cmp_ge_u32 s2, 256")
    a("s_cbranch_scc1 L_end")
    a("s_load_dwordx16 s[16:31], s[0:1], 0")
    a("s_load_dwordx16 s[32:47], s[0:1], 64")
    a("v_lshrrev_b32 v2, 6, v0")
    a("v_and_b32 v1, 63, v0")
    a("v_readfirstlane_b32 s3, v2")
    if CFG.get("cpre", 1):
        a("s_cmp_lg_u32 s3, 7")
        a("s_cbranch_scc1 L_nocpre")
        a("s_getpc_b64 s[4:5]")
        a("L_pc:")
        a("s_bfe_u32 s6, s2, 0x20003")
        a("s_lshl_b32 s6, s6, 13")
        a("v_lshl_add_u32 v3, v1, 7, s6")
        a("v_min_u32 v3, L_codeend-L_pc-4, v3")
        a("global_load_dword v255, v3, s[4:5]")
        a("L_nocpre:")
    a("s_cmp_ge_u32 s2, 128")
    a("s_cbranch_scc1 L_conv")
    moe(a)
    a("L_conv:")
    conv(a)
    a("L_end:")
    a("s_endpgm")
    a("L_codeend:")
    return header([f"; @launch grid=(256,1,1) block=(512,1,1) lds={LDS_TOTAL}"]) + kstart(KN) + a.text() + RODATA + kdesc(KN, 256)

if __name__ == "__main__":
    import sys
    for kv in sys.argv[1:]:
        k, v = kv.split("="); CFG[k] = int(v)
    open("v2.s", "w").write(build())
    STAMP["on"] = True
    open("v2_ts.s", "w").write(build())
```

```python
import re, sys
def regs(tok):
    tok = tok.strip().lstrip("-")
    m = re.fullmatch(r"abs\((.*)\)", tok)
    if m: tok = m.group(1)
    m = re.fullmatch(r"([vs])(\d+)", tok)
    if m: return {(m.group(1), int(m.group(2)))}
    m = re.fullmatch(r"([vs])\[(\d+):(\d+)\]", tok)
    if m: return {(m.group(1), i) for i in range(int(m.group(2)), int(m.group(3)) + 1)}
    if tok == "vcc": return {("s", "vcc_lo"), ("s", "vcc_hi")}
    if tok in ("vcc_lo", "vcc_hi"): return {("s", tok)}
    if tok == "m0": return {("s", "m0")}
    if tok == "exec": return {("s", "exec_lo"), ("s", "exec_hi")}
    if tok in ("exec_lo", "exec_hi"): return {("s", tok)}
    return set()
TRANS = ("v_exp_", "v_log_", "v_rcp_", "v_rsq_", "v_sqrt_", "v_sin_", "v_cos_")
class I:
    def __init__(s, text, ln):
        s.text, s.ln = text, ln
        p = text.split(None, 1)
        s.op = p[0]
        rest = p[1] if len(p) > 1 else ""
        ops = [x.strip() for x in re.split(r",(?![^\[]*\])", rest)]
        if ops:
            last = ops[-1].split()
            ops[-1] = last[0] if last else ""
        s.ops = ops
        o = s.op
        s.mfma = o.startswith("v_mfma")
        s.valu = o.startswith("v_") and not s.mfma
        s.ds = o.startswith("ds_")
        s.vmem = o.startswith(("buffer_", "global_"))
        s.salu = o.startswith("s_")
        s.dpp = "_dpp" in o
        s.trans = o.startswith(TRANS)
        s.dot = o.startswith("v_dot")
        s.perml = o.startswith("v_permlane")
        s.defs, s.uses = set(), set()
        R = [regs(x) for x in ops]
        if s.mfma:
            s.defs = R[0]; s.a, s.b, s.c = R[1], R[2], R[3]; s.uses = R[1] | R[2] | R[3]
            s.passes = 8 if "32x32" in o else 4
        elif s.valu:
            s.defs = set(R[0]); s.uses = set().union(*R[1:]) if len(R) > 1 else set()
            if s.perml: s.defs |= R[1]; s.uses |= R[0]
            if o.startswith(("v_fmac", "v_writelane")) or s.dpp: s.uses |= R[0]
            if o.startswith(("v_add_co", "v_addc_co")): s.defs |= R[1]
        elif s.ds:
            if "read" in o: s.defs = R[0]; s.uses = set().union(*R[1:])
            else: s.uses = set().union(*R)
            if "addtid" in o: s.uses |= {("s", "m0")}
        elif s.vmem:
            if "load" in o: s.defs = R[0]; s.uses = set().union(*R[1:])
            else: s.uses = set().union(*R)
            s.wide = ("store" in o) and ("x4" in o or "x3" in o)
            s.data = (R[0] if o.startswith("buffer") else R[1]) if "store" in o else set()
        elif s.salu:
            if o.startswith(("s_cmp", "s_bitcmp", "s_cbranch", "s_branch", "s_waitcnt", "s_nop", "s_barrier", "s_sleep", "s_endpgm", "s_setprio")):
                s.uses = set().union(*R) if R else set()
            else:
                s.defs = R[0]; s.uses = set().union(*R[1:]) if len(R) > 1 else set()
        s.slots = int(ops[0]) + 1 if o == "s_nop" else 1
def V(x): return {r for r in x if r[0] == "v"}
def S(x): return {r for r in x if r[0] == "s"}
def req(p, c):
    n = 0; why = ""
    def up(k, w):
        nonlocal n, why
        if k > n: n, why = k, w
    if p.mfma:
        big = 12 if p.passes == 8 else 8
        if c.mfma:
            if p.defs & (c.a | c.b): up(big, "mfma D -> mfma A/B")
            if p.defs & c.c and not (p.defs == c.c and p.passes == c.passes): up(big - 2, "mfma D -> mfma C partial")
        elif (c.valu or c.ds or c.vmem) and p.defs & (c.uses | c.defs): up(big, "mfma D -> valu/mem")
        if c.valu and V(p.c) & c.defs: up(7 if p.passes == 8 else 3, "mfma C WAR")
    if p.valu:
        if c.mfma and V(p.defs) & c.uses: up(2, "valu -> mfma")
        if c.dpp and V(p.defs) & c.uses: up(2, "valu -> dpp")
        if c.perml and V(p.defs) & c.uses: up(2, "valu -> permlane")
        if c.op.startswith(("v_readlane", "v_readfirstlane")) and V(p.defs) & c.uses: up(1, "valu -> readlane")
        if p.trans and c.valu and not c.trans and p.defs & c.uses: up(1, "trans -> valu")
        if p.dot and (c.valu or c.mfma or c.ds or c.vmem) and p.defs & (c.uses | c.defs):
            if not (c.op == p.op and not (p.defs & (regs(c.ops[1]) | regs(c.ops[2])))): up(3, "dot -> other")
        sd = S(p.defs)
        if c.vmem and sd & c.uses: up(5, "valu sgpr -> vmem")
        if c.valu and sd & c.uses:
            if c.op.startswith(("v_readlane", "v_writelane")) and sd & regs(c.ops[2]): up(4, "valu sgpr -> lane select")
            else: up(2, "valu sgpr -> valu const")
    if p.vmem and getattr(p, "wide", False) and p.data & c.defs: up(2 if c.valu else 1, "wide store WAR")
    if p.salu and ("s", "m0") in p.defs and c.ds and ("s", "m0") in c.uses: up(1, "m0 -> addtid")
    return n, why
def lint(text):
    ins = []; lab = {}
    for ln, l in enumerate(text.split("\n"), 1):
        l = l.split(";")[0].strip()
        if not l or l.startswith("."):
            if l.startswith(".section"): break
            continue
        if l.endswith(":"): lab[l[:-1]] = len(ins); continue
        ins.append(I(l, ln))
    bad = set()
    def walk(i, j, dist):
        p = ins[i]
        while j < len(ins) and dist < 12:
            c = ins[j]
            n, why = req(p, c)
            if dist < n: bad.add((p.ln, c.ln, n, dist, why, p.text, c.text))
            dist += c.slots
            if c.op == "s_endpgm": return
            if c.op.startswith(("s_cbranch", "s_branch")):
                walk(i, lab[c.ops[0]], dist)
                if c.op == "s_branch": return
            j += 1
    for i, p in enumerate(ins):
        if p.mfma or p.valu or p.vmem or (p.salu and ("s", "m0") in p.defs): walk(i, i + 1, 0)
    return sorted(bad)
if __name__ == "__main__":
    for f in sys.argv[1:]:
        b = lint(open(f).read())
        print(f, len(b), "hazards")
        for x in b: print("  line %d -> %d need %d have %d (%s)\n      %s\n      %s" % x)
```

```python
class Op:
    def __init__(s, kind, name, emit, after=(), dist=None, needs=(), at=0, cost=1, dl=10**6):
        s.kind, s.name, s.emit = kind, name, emit
        s.after, s.dist, s.needs, s.at, s.cost = list(after), dict(dist or {}), list(needs), at, cost
        s.dl = dl

class Sched:
    def __init__(s, a, lat=5):
        s.a = a; s.Q = []; s.qm = []; s.done = -1; s.pos = {}; s.n = 0; s.m = 0; s.lat = lat; s.log = []
    def raw(s, t, slots=1):
        s.a(t); s.n += slots
    def lds(s, name, t):
        s.raw(t); s.Q.append(name); s.qm.append(s.m); s.pos[name] = s.n
    def idx(s, names):
        return max([-1] + [max(i for i, n in enumerate(s.Q) if n == nm) for nm in names])
    def need_wait(s, names):
        return s.idx(names) > s.done
    def wait(s, names):
        i = s.idx(names)
        if i <= s.done: return
        while i + 1 < len(s.Q) and s.m - s.qm[i+1] >= s.lat: i += 1
        n = len(s.Q) - 1 - i
        if n > 15: n = 15; i = len(s.Q) - 16
        s.done = i
        s.raw(f"s_waitcnt lgkmcnt({n})"); s.log.append("w")
    def emitted(s, nm): return nm in s.pos
    def slack(s, op):
        return max([0] + [d - (s.n - s.pos[nm]) for nm, d in op.dist.items()])
    def put(s, op):
        s.wait(op.needs)
        k = s.slack(op)
        if k > 0: s.raw(f"s_nop {k-1}", k); s.log.append("n" * k)
        if op.kind == "D": s.lds(op.name, op.emit)
        elif op.kind == "X":
            op.emit(); s.pos[op.name] = s.n
        else:
            s.raw(op.emit); s.pos[op.name] = s.n
        if op.kind == "M": s.m += 1
        s.log.append(op.kind)
    def run(s, ms, fs, budget=lambda i: 2, wfree=0):
        fs = list(fs)
        byname = {f.name: f for f in fs}
        for i, mo in enumerate(ms):
            for d in mo.needs:
                if d in byname: byname[d].dl = min(byname[d].dl, i - s.lat - 2)
            for d in mo.after + list(mo.dist):
                if d in byname: byname[d].dl = min(byname[d].dl, i - 3)
        for _ in range(60):
            for f in fs:
                for d in f.needs:
                    if d in byname: byname[d].dl = min(byname[d].dl, f.dl - s.lat - 1)
                for d in f.after + list(f.dist):
                    if d in byname: byname[d].dl = min(byname[d].dl, f.dl - 0.5)
        fs.sort(key=lambda f: f.dl)
        def force(nm):
            if s.emitted(nm): return
            f = byname[nm]
            for d in f.after + list(f.dist) + f.needs: force(d)
            s.put(f); fs.remove(f)
        for i, mo in enumerate(ms):
            for d in mo.after + list(mo.dist) + mo.needs: force(d)
            s.put(mo)
            b = budget(i)
            nx = ms[i+1] if i + 1 < len(ms) else None
            hadV = False
            while True:
                res = (1 - wfree) if (nx and all(s.emitted(x) for x in nx.needs) and s.need_wait(nx.needs)) else 0
                pick = None
                for f in fs:
                    if f.at > s.m: continue
                    if not all(s.emitted(d) for d in f.after + list(f.dist) + f.needs): continue
                    if s.slack(f) > 0: continue
                    if f.needs and s.need_wait(f.needs) and s.m - s.qm[s.idx(f.needs)] < s.lat: continue
                    c = f.cost + ((1 - wfree) if s.need_wait(f.needs) else 0)
                    if f.kind in "DX" and hadV: continue
                    if c > b - res and not (c > 2 - res and b == budget(i)): continue
                    pick = (f, c); break
                if not pick: break
                f, c = pick
                s.put(f); fs.remove(f); b -= c
                hadV |= f.kind == "V"
                if b <= 0: break
        while fs:
            rdy = [f for f in fs if all(s.emitted(d) for d in f.after + list(f.dist) + f.needs) and s.slack(f) == 0]
            force((rdy or fs)[0].name)
```

```python
from blocks import *
from sched import *

WS_E    = 0xF000
WS_KEYS = 0x20000
SPIN = 40000
SRD_WD = 56

CFG = dict(n1=4, n2=12, nd1=4, dpre=1, sprefetch=1, wpre=4, wpat=27, u1at=5, recat=20, dpat=30, u2at=44, gat=170, b3=22)

DPP_FULL = "row_mask:0xf bank_mask:0xf"

L_REC, L_SEL, L_TAU, L_CNT = 0, 128, 160, 164
L_HB, L_ZERO, L_MB, L_RG, L_RED, L_D = 256, 1536, 2048, 8192, 16384, 49152

def moe(a):
    c = CFG
    R, O, DO, B, ACC = 64, 128, 192, 224, 240
    X, WR, GW = O, O + 16, O + 24
    PL, KEY, IDX, SC = 16, 24, 28, 32
    VW = 6
    S_TAG, S_TB, S_G, S_S = 60, 61, 62, 63
    a("s_and_b32 s4, s2, 7")
    a("s_lshr_b32 s5, s2, 3")
    a(f"s_mul_i32 s{S_G}, s4, 7")
    a("s_lshr_b32 s6, s5, 1")
    a(f"s_add_u32 s{S_G}, s{S_G}, s6")
    a(f"s_and_b32 s{S_S}, s5, 1")
    a("v_lshlrev_b32 v3, 4, v1")
    a("s_lshl_b32 s6, s2, 3")
    a("s_add_u32 s6, s6, s3")
    a("s_lshl_b32 s6, s6, 12")
    a("v_add_u32 v4, s6, v3")
    a(f"s_lshl_b32 s6, s{S_S}, 3")
    a("s_add_u32 s6, s6, s3")
    a("s_lshl_b32 s6, s6, 6")
    a("v_lshrrev_b32 v8, 4, v1")
    a("v_and_b32 v9, 7, v1")
    a("v_lshl_add_u32 v10, v8, 3, s6")
    a("v_mul_u32_u24 v12, 7168, v10")
    a(f"s_lshl_b32 s7, s{S_G}, 7")
    a("v_lshl_add_u32 v13, v9, 4, s7")
    a("v_add_u32 v12, v12, v13")
    a("v_mov_b32 v13, 0")
    a("v_and_b32 v2, 8, v1")
    a("v_cmp_eq_u32 s[12:13], 0, v2")
    a("s_waitcnt lgkmcnt(0)")
    a(f"s_load_dword s{S_TAG}, {sr(S_WS,2)}, {WS_E}")
    for i in range(4):
        a(f"global_load_dwordx4 {vr(X+4*i,4)}, v4, {sr(S_X,2)} offset:{i*1024}")
    for i in range(2):
        a(f"global_load_dwordx4 {vr(WR+4*i,4)}, v3, {sr(S_WR,2)} offset:{i*1024}")
        a(f"global_load_dwordx4 {vr(GW+4*i,4)}, v3, {sr(S_GW,2)} offset:{i*1024}")
    a(f"v_mov_b32 v{VW}, s{S_WU}")
    a(f"v_mov_b32 v{VW+1}, s{S_WU+1}")
    a(f"v_mov_b32 v14, s{S_WG}")
    a(f"v_mov_b32 v15, s{S_WG+1}")
    a(f"v_cndmask_b32 v{VW}, v{VW}, v14, s[12:13]")
    a(f"v_cndmask_b32 v{VW+1}, v{VW+1}, v15, s[12:13]")
    a(f"v_lshl_add_u64 {vr(VW,2)}, {vr(VW,2)}, 0, v[12:13]")
    a("s_mov_b32 s8, 7168")
    a("s_mov_b32 s9, 0")
    a(f"s_mov_b32 s10, {25*7168}")
    a("s_mov_b32 s11, 0")
    def wloads(lo, hi):
        for n in range(lo, hi):
            a(f"global_load_dwordx4 {vr(R+4*n,4)}, {vr(VW,2)}, off nt")
            if n == 7:    a(f"v_lshl_add_u64 {vr(VW,2)}, s[10:11], 0, {vr(VW,2)}")
            elif n < 15:  a(f"v_lshl_add_u64 {vr(VW,2)}, s[8:9], 0, {vr(VW,2)}")
    a("s_cmp_ge_u32 s5, 14")
    a("s_cbranch_scc1 LM_spare0")
    a("s_barrier")
    wloads(0, c["n1"])
    stamp(a, 1)
    for r in range(4): a(f"v_mov_b32 v{40+r}, 0")
    a(f"s_waitcnt vmcnt({c['n1']})")
    a("s_branch LM_rows")
    a("LM_spare0:")
    a("s_cmp_lg_u32 s2, 112")
    a("s_cbranch_scc1 LM_spare1")
    a("s_cmp_lg_u32 s3, 1")
    a("s_cbranch_scc1 LM_spare1")
    a("s_waitcnt lgkmcnt(0)")
    a(f"s_add_u32 s6, s{S_TAG}, 0x01010101")
    a("v_mov_b32 v44, s6")
    a("v_mov_b32 v45, 1")
    a("v_mov_b32 v2, 0")
    a("s_mov_b64 exec, 1")
    a(f"global_store_dwordx2 v2, v[44:45], {sr(S_DBG,2)} sc1")
    a("s_mov_b64 exec, -1")
    a("LM_spare1:")
    for r in range(4): a(f"v_mov_b32 v{40+r}, 0")
    if c["sprefetch"]:
        a(f"s_lshr_b32 s6, s{S_WG}, 7")
        a("s_mul_i32 s7, s4, 7")
        a("s_add_u32 s6, s6, s7")
        a("s_sub_u32 s6, 3, s6")
        a("s_and_b32 s6, s6, 7")
        a("s_cmp_eq_u32 s6, 7")
        a("s_cselect_b32 s6, 0, s6")
        a("s_add_u32 s6, s6, s7")
        a("s_lshl_b32 s6, s6, 7")
        nlo = c.get("snlo", 4)
        a("v_and_b32 v2, 3, v1")
        a(f"v_add_u32 v2, {nlo}, v2")
        a("v_and_b32 v12, 8, v2")
        a("v_mul_u32_u24 v12, 3, v12")
        a("v_add3_u32 v2, v2, v12, v10")
        a("v_mul_u32_u24 v2, 7168, v2")
        a("v_add_u32 v2, s6, v2")
        a("s_barrier")
        a("s_mov_b32 exec_lo, 0x000f000f")
        a("s_mov_b32 exec_hi, 0x000f000f")
        a(f"global_load_dword v60, v2, {sr(S_WG,2)}")
        a(f"global_load_dword v61, v2, {sr(S_WU,2)}")
        a("s_mov_b64 exec, -1")
        a("s_waitcnt vmcnt(2)")
    else:
        a("s_waitcnt vmcnt(0)")
    a("LM_rows:")
    stamp(a, 2)
    for i in range(8):
        a(f"v_dot2_f32_bf16 v40, v{X+i}, v{WR+i}, v40")
        a(f"v_dot2_f32_bf16 v41, v{X+8+i}, v{WR+i}, v41")
        a(f"v_dot2_f32_bf16 v42, v{X+i}, v{GW+i}, v42")
        a(f"v_dot2_f32_bf16 v43, v{X+8+i}, v{GW+i}, v43")
    a("s_waitcnt lgkmcnt(0)")
    a(f"s_add_u32 s{S_TAG}, s{S_TAG}, 0x01010101")
    a(f"s_and_b32 s{S_TB}, s{S_TAG}, 0xff")
    for st in (f"row_shr:1 {DPP_FULL} bound_ctrl:0", f"row_shr:2 {DPP_FULL} bound_ctrl:0",
               f"row_shr:4 {DPP_FULL} bound_ctrl:0", f"row_shr:8 {DPP_FULL} bound_ctrl:0",
               "row_bcast:15 row_mask:0xa bank_mask:0xf", "row_bcast:31 row_mask:0xc bank_mask:0xf"):
        for r in range(4):
            a(f"v_add_f32_dpp v{40+r}, v{40+r}, v{40+r} {st}")
    a("v_cvt_pk_bf16_f32 v45, v42, v43")
    a("v_cvt_pk_bf16_f32 v44, v40, v41")
    a("v_lshlrev_b32 v46, 16, v45")
    a("v_and_b32 v47, 0xffff0000, v45")
    a("v_mul_f32 v46, 0xbfb8aa3b, v46")
    a("v_mul_f32 v47, 0xbfb8aa3b, v47")
    a("v_exp_f32 v46, v46")
    a("v_exp_f32 v47, v47")
    a("v_lshlrev_b32 v48, 16, v44")
    a("v_add_f32 v46, 1.0, v46")
    a("v_add_f32 v47, 1.0, v47")
    a("v_rcp_f32 v46, v46")
    a("v_rcp_f32 v47, v47")
    a("v_ashrrev_i32 v50, 31, v48")
    a("v_ashrrev_i32 v51, 31, v44")
    a("v_cvt_pk_bf16_f32 v45, v46, v47")
    a("v_or_b32 v50, 0x80000000, v50")
    a("v_or_b32 v51, 0x80000000, v51")
    a("v_xor_b32 v48, v48, v50")
    a("v_xor_b32 v49, v44, v51")
    a("s_mov_b32 s6, 0x07060100")
    a("s_mov_b32 s7, 0x07060302")
    a("v_perm_b32 v40, v48, v45, s6")
    a("v_perm_b32 v42, v49, v45, s7")
    a(f"v_mov_b32 v41, s{S_TAG}")
    a(f"v_mov_b32 v43, s{S_TAG}")
    a("s_lshl_b32 s6, s3, 4")
    a("v_mov_b32 v2, s6")
    a("s_mov_b32 exec_lo, 0")
    a("s_mov_b32 exec_hi, 0x80000000")
    a(f"ds_write_b128 v2, v[40:43] offset:{L_REC}")
    a("s_mov_b64 exec, -1")
    a("s_waitcnt lgkmcnt(0)")
    a("s_barrier")
    a("s_cmp_lg_u32 s3, 0")
    a("s_cbranch_scc1 LM_nopub")
    a(f"ds_read_b128 v[44:47], v3 offset:{L_REC}")
    a("s_lshl_b32 s6, s2, 7")
    a(f"s_add_u32 s6, s6, {WS_RG}")
    a("v_add_u32 v2, s6, v3")
    a("s_mov_b64 exec, 0xff")
    a("s_waitcnt lgkmcnt(0)")
    a(f"global_store_dwordx4 v2, v[44:47], {sr(S_WS,2)} sc1")
    a("s_mov_b64 exec, -1")
    a("LM_nopub:")
    stamp(a, 3)
    a("s_cmp_ge_u32 s5, 14")
    a("s_cbranch_scc1 LM_spare")
    a("s_barrier")
    wloads(c["n1"], c["n1"] + 2)
    VDA, VTR, VRD, VPO, VPP, VH, VA, VPT, VSL = 42, 44, 48, 49, 50, 51, 52, 11, 62
    a.srd(SRD_X, S_X, 4194304)
    a.srd(SRD_WD, S_WD, 7340032)
    a("s_lshl_b32 s6, s3, 8")
    a("s_sub_u32 s6, 2047, s6")
    a("v_lshlrev_b32 v2, 1, v1")
    a(f"v_sub_u32 v{IDX}, s6, v2")
    a(f"v_subrev_u32 v{IDX+1}, 1, v{IDX}")
    a(f"v_subrev_u32 v{IDX+2}, 0x80, v{IDX}")
    a(f"v_subrev_u32 v{IDX+3}, 0x81, v{IDX}")
    a("v_mov_b32 v12, 0")
    a("v_lshlrev_b32 v13, 2, v1")
    a(f"ds_write_b32 v13, v12 offset:{L_ZERO}")
    a(f"ds_write_b32 v12, v12 offset:{L_CNT}")
    a("s_lshl_b32 s6, s3, 9")
    a("v_lshl_add_u32 v14, v1, 3, s6")
    a("s_lshl_b32 s6, s3, 10")
    a(f"s_add_u32 s6, s6, {L_RG}")
    a("v_lshl_add_u32 v15, v1, 3, s6")
    a("s_mov_b32 s64, 0x05040100")
    a("s_mov_b32 s65, 0x07060302")
    a("s_mov_b32 s66, 0xffff0000")
    a(f"v_lshlrev_b32 v{VSL}, 2, v9")
    a("v_lshrrev_b32 v56, 5, v1")
    a("v_bfe_u32 v57, v1, 4, 1")
    a("v_bfe_u32 v58, v1, 3, 1")
    a("v_lshlrev_b32 v2, 2, v56")
    a("v_xor_b32 v2, v2, v9")
    a("v_lshrrev_b32 v59, 3, v1")
    a("v_lshlrev_b32 v59, 11, v59")
    a(f"v_lshl_add_u32 v{VDA}, v2, 4, v59")
    a(f"v_xor_b32 v{VDA+1}, 32, v{VDA}")
    a(f"s_lshl_b32 s70, s{S_G}, 17")
    a(f"s_lshl_b32 s7, s{S_S}, 10")
    a("s_add_u32 s70, s70, s7")
    a("s_lshl_b32 s7, s3, 7")
    a("s_add_u32 s70, s70, s7")
    a("s_lshl_b32 s71, s3, 13")
    a(f"s_add_u32 s71, s71, {L_D}")
    a("v_bfe_u32 v59, v1, 2, 1")
    a("v_lshlrev_b32 v2, 11, v56")
    a("v_lshl_add_u32 v2, v57, 9, v2")
    a("v_lshl_add_u32 v2, v58, 7, v2")
    a("v_lshl_add_u32 v2, v59, 10, v2")
    a("v_lshl_add_u32 v2, v59, 5, v2")
    a("v_lshl_add_u32 v2, v57, 6, v2")
    a("v_and_b32 v59, 3, v1")
    a("v_lshl_add_u32 v2, v59, 3, v2")
    a(f"v_add_u32 v{VTR}, s71, v2")
    for t_ in range(1, 4):
        a(f"v_xor_b32 v{VTR+t_}, {32*t_}, v{VTR}")
    a("s_and_b32 s6, s3, 3")
    a("s_lshr_b32 s7, s3, 2")
    a("s_lshl_b32 s15, s6, 1")
    a("s_add_u32 s15, s15, s7")
    a("s_lshl_b32 s15, s15, 9")
    a(f"s_add_u32 s15, s15, {L_RED}")
    a(f"v_add_u32 v{VRD}, s15, v13")
    a("s_lshl_b32 s7, s7, 3")
    a("s_add_u32 s6, s6, s7")
    a("s_lshl_b32 s6, s6, 2")
    a("v_mul_u32_u24 v2, 144, v9")
    a(f"v_lshl_add_u32 v{VH}, v57, 6, v2")
    a(f"v_lshl_add_u32 v{VH}, v58, 4, v{VH}")
    a(f"v_lshl_add_u32 v{VH}, v56, 1, v{VH}")
    a(f"v_add_u32 v{VH}, s6, v{VH}")
    a("v_lshl_add_u32 v2, v8, 4, v2")
    a(f"v_mov_b32 v59, {L_ZERO-L_HB}")
    a(f"v_cndmask_b32 v{VA}, v59, v2, s[12:13]")
    a(f"v_cndmask_b32 v{VA+1}, v2, v59, s[12:13]")
    a(f"s_lshl_b32 s6, s{S_G}, 1")
    a(f"s_add_u32 s6, s6, s{S_S}")
    a("s_lshl_b32 s6, s6, 12")
    a(f"s_add_u32 s6, s6, {WS_PRE}")
    a(f"v_add_u32 v{VPO}, s6, v14")
    a(f"v_xor_b32 v{VPP}, 4096, v{VPO}")
    a(f"s_lshl_b32 s6, s{S_S}, 3")
    a("s_add_u32 s6, s6, s3")
    a("s_lshl_b32 s6, s6, 17")
    a(f"s_lshl_b32 s7, s{S_G}, 8")
    a("s_add_u32 s6, s6, s7")
    a(f"s_add_u32 s6, s6, {WS_PART}")
    a(f"v_lshl_add_u32 v{VPT}, v56, 15, s6")
    a(f"v_lshl_add_u32 v{VPT}, v58, 14, v{VPT}")
    a(f"v_lshl_add_u32 v{VPT}, v57, 7, v{VPT}")
    a(f"v_lshl_add_u32 v{VPT}, v9, 4, v{VPT}")
    a(f"v_add_u32 v4, 0x10000, v{VPT}")
    a(f"v_mov_b32 v13, s{S_TB}")
    a("v_mov_b32 v60, 0x7ffffff0")
    a("s_mov_b32 s14, 0")
    wloads(c["n1"] + 2, c["n2"])
    a("s_lshl_b32 s6, s3, 11")
    a(f"s_add_u32 s6, s6, {WS_RG}")
    a("v_add_u32 v5, s6, v3")
    a("s_barrier")
    for q in range(2):
        a(f"global_load_dwordx4 {vr(PL+4*q,4)}, v5, {sr(S_WS,2)} offset:{1024*q} sc1")
    a("s_barrier")
    n2 = c["n2"]
    assert n2 >= 8 and n2 % 2 == 0
    wloads(n2, 16)
    def perms(kap, ps=(0, 1, 2, 3)):
        for e in range(8):
            for p in ps:
                a(f"v_perm_b32 v{O+32*kap+4*e+p}, v{R+32*kap+4*(2*p+1)+e//2}, v{R+32*kap+4*(2*p)+e//2}, s{64+e%2}")
    pe = list(range((n2-8)//2)); pl = list(range((n2-8)//2, 4))
    a("s_lshl_b32 s11, s3, 12")
    a(f"s_add_u32 s11, s11, {L_RED}")
    a("s_mov_b32 s10, 0xffffff00")
    stamp(a, 4)
    a(f"s_waitcnt vmcnt({16-n2})")
    a("LM_poll1:")
    a(f"v_xor_b32 v2, s{S_TAG}, v{PL+1}")
    for i in (3, 5, 7):
        a(f"v_bitop3_b32 v2, v{PL+i}, s{S_TAG}, v2 bitop3:0xbe")
    a("v_cmp_ne_u32 vcc, 0, v2")
    a("s_cbranch_vccz LM_poll1_ok")
    a("s_add_u32 s14, s14, 1")
    a(f"s_cmp_ge_u32 s14, {SPIN}")
    a("s_cbranch_scc1 LM_poll1_ok")
    a("s_mov_b64 exec, vcc")
    for q in range(2):
        a(f"global_load_dwordx4 {vr(PL+4*q,4)}, v5, {sr(S_WS,2)} offset:{1024*q} sc1")
    a("s_mov_b64 exec, -1")
    a("s_waitcnt vmcnt(0)")
    a("s_branch LM_poll1")
    a("LM_poll1_ok:")
    if STAMP["on"]: a(f"s_mov_b32 s{ST0+24}, s14")
    stamp(a, 5)
    for i in range(4):
        a(f"v_and_or_b32 v{KEY+i}, v{PL+2*i}, s66, v{IDX+i}")
    a(f"v_max_u32 v36, v{KEY}, v{KEY+1}")
    a(f"v_min_u32 v37, v{KEY}, v{KEY+1}")
    a(f"v_med3_u32 v38, v36, v{KEY+2}, v{KEY+3}")
    a(f"v_max3_u32 v36, v36, v{KEY+2}, v{KEY+3}")
    a("v_max_u32 v37, v37, v38")
    a(f"ds_write_b64 v14, v[36:37] offset:{L_MB}")
    a(f"ds_write2_b32 v15, v{PL}, v{PL+2} offset0:0 offset1:1")
    a(f"ds_write2_b32 v15, v{PL+4}, v{PL+6} offset0:128 offset1:129")
    a("s_waitcnt lgkmcnt(2)")
    a("s_barrier")
    a("s_cmp_lg_u32 s3, 0")
    a("s_cbranch_scc1 LM_notopk")
    a("v_lshlrev_b32 v2, 3, v1")
    P = ACC
    for i in range(4):
        a(f"ds_read2st64_b64 {vr(P+4*i,4)}, v2 offset0:{L_MB//512+2*i} offset1:{L_MB//512+2*i+1}")
    a("s_waitcnt lgkmcnt(3)")
    a(f"v_max_u32 v36, v{P}, v{P+2}")
    a(f"v_min_u32 v37, v{P}, v{P+2}")
    a(f"v_max3_u32 v37, v37, v{P+1}, v{P+3}")
    for i in range(1, 4):
        a(f"s_waitcnt lgkmcnt({3-i})")
        a(f"v_med3_u32 v38, v36, v{P+4*i}, v{P+4*i+2}")
        a(f"v_max3_u32 v36, v36, v{P+4*i}, v{P+4*i+2}")
        a(f"v_max3_u32 v39, v38, v{P+4*i+1}, v{P+4*i+3}")
        a("v_max_u32 v37, v37, v39")
    a(f"v_max_u32_dpp v38, v36, v36 quad_perm:[1,0,3,2] {DPP_FULL}")
    a("s_nop 1")
    a(f"v_max_u32_dpp v38, v38, v38 quad_perm:[2,3,0,1] {DPP_FULL}")
    a("s_nop 1")
    a(f"v_max_u32_dpp v38, v38, v38 row_half_mirror {DPP_FULL}")
    a("s_nop 1")
    a(f"v_min_u32_dpp v39, v38, v38 row_mirror {DPP_FULL}")
    a(f"v_max_u32_dpp v38, v38, v38 row_mirror {DPP_FULL}")
    a("s_nop 0")
    a("v_min_u32_dpp v39, v39, v39 row_bcast:15 row_mask:0xa bank_mask:0xf")
    a("v_max_u32_dpp v38, v38, v38 row_bcast:15 row_mask:0xa bank_mask:0xf")
    a("s_nop 0")
    a("v_min_u32_dpp v39, v39, v39 row_bcast:31 row_mask:0xc bank_mask:0xf")
    a("v_max_u32_dpp v38, v38, v38 row_bcast:31 row_mask:0xc bank_mask:0xf")
    a("v_readlane_b32 s6, v39, 63")
    a("v_readlane_b32 s7, v38, 63")
    a("s_sub_u32 s14, s7, s6")
    a("s_lshr_b32 s14, s14, 2")
    a("LM_bis:")
    a("s_add_u32 s14, s14, s6")
    a("v_cmp_le_u32 s[68:69], s14, v36")
    a("v_cmp_le_u32 vcc, s14, v37")
    a("s_bcnt1_i32_b64 s15, s[68:69]")
    a("s_bcnt1_i32_b64 s67, vcc")
    a("s_add_u32 s67, s67, s15")
    a("s_cmp_eq_u32 s67, 8")
    a("s_cbranch_scc1 LM_bis_done")
    a("s_cmp_gt_u32 s67, 8")
    a("s_cselect_b32 s6, s14, s6")
    a("s_cselect_b32 s7, s7, s14")
    a("s_sub_u32 s14, s7, s6")
    a("s_lshr_b32 s14, s14, 1")
    a("s_cbranch_scc1 LM_bis")
    a("s_mov_b32 s14, s6")
    a("v_cmp_le_u32 s[68:69], s14, v36")
    a("v_cmp_le_u32 vcc, s14, v37")
    a("s_bcnt1_i32_b64 s15, s[68:69]")
    a("LM_bis_done:")
    a("v_mbcnt_lo_u32_b32 v38, s68, 0")
    a("v_mov_b32 v39, s15")
    a("v_mbcnt_hi_u32_b32 v38, s69, v38")
    a("v_mbcnt_lo_u32_b32 v39, vcc_lo, v39")
    a("v_lshlrev_b32 v38, 2, v38")
    a("v_mbcnt_hi_u32_b32 v39, vcc_hi, v39")
    a("v_mov_b32 v40, s14")
    a("v_and_b32 v38, 28, v38")
    a("v_lshlrev_b32 v39, 2, v39")
    a(f"ds_write_b32 v12, v40 offset:{L_TAU}")
    a("v_and_b32 v39, 28, v39")
    a("s_mov_b64 exec, s[68:69]")
    a(f"ds_write_b32 v38, v36 offset:{L_SEL}")
    a("s_mov_b64 exec, vcc")
    a(f"ds_write_b32 v39, v37 offset:{L_SEL}")
    a("s_mov_b64 exec, -1")
    a("s_branch LM_topk_done")
    a("LM_notopk:")
    perms(0); perms(1, pe)
    a("LM_topk_done:")
    a("s_waitcnt lgkmcnt(0)")
    a("s_barrier")
    stamp(a, 6)
    def xsel():
        a(f"ds_read_b32 v36, v{VSL} offset:{L_SEL}")
        a(f"ds_read_b32 v37, v12 offset:{L_TAU}")
        a("s_waitcnt lgkmcnt(1)")
        a("v_not_b32 v38, v36")
        a("v_and_b32 v39, 2047, v38")
        a("v_lshlrev_b32 v38, 11, v39")
        a("v_lshl_add_u32 v38, v10, 1, v38")
        a("v_cndmask_b32 v40, v60, v38, s[12:13]")
        a("v_cndmask_b32 v41, v38, v60, s[12:13]")
        a(f"buffer_load_dwordx4 {vr(B,4)}, v40, {sr(SRD_X,4)}, 0 offen")
        a(f"buffer_load_dwordx4 {vr(B+12,4)}, v41, {sr(SRD_X,4)}, 0 offen offset:64")
    xsel()
    dnt = "" if c["dpre"] else " nt"
    def dloads(lo, hi_):
        for i in range(lo, hi_):
            a(f"s_add_u32 m0, s71, {1024*i}")
            a(f"s_add_u32 s7, s70, {8*i*2048}")
            a(f"buffer_load_dwordx4 v{VDA+i%2}, {sr(SRD_WD,4)}, s7 offen{dnt} lds")
    nd1 = c["nd1"]
    a("s_waitcnt lgkmcnt(0)")
    a("s_mov_b32 s6, 0")
    for i in range(4):
        a(f"v_cmp_le_u32 vcc, v37, v{KEY+i}")
        a("s_bcnt1_i32_b64 s7, vcc")
        a("s_add_u32 s6, s6, s7")
    a("v_mov_b32 v2, s6")
    a("s_mov_b64 exec, 1")
    a(f"ds_add_u32 v12, v2 offset:{L_CNT}")
    a("s_mov_b64 exec, -1")
    a("s_waitcnt lgkmcnt(0)")
    a("s_barrier")
    a(f"ds_read_b32 v2, v12 offset:{L_CNT}")
    dloads(0, nd1)
    a("s_cmp_lg_u32 s3, 0")
    a("s_cbranch_scc1 LM_noperm")
    perms(0); perms(1, pe)
    a("LM_noperm:")
    a("s_waitcnt lgkmcnt(0)")
    a("v_readfirstlane_b32 s6, v2")
    a("s_cmp_eq_u32 s6, 8")
    a("s_cbranch_scc0 LM_slow")
    a("LM_verified:")
    a("v_lshlrev_b32 v39, 2, v39")
    a(f"ds_read_b32 v33, v39 offset:{L_RG}")
    a("s_mov_b32 m0, s11")
    a(f"s_waitcnt vmcnt({nd1+2})")
    perms(1, pl)
    a(f"s_waitcnt vmcnt({nd1})")
    stamp(a, 7)
    seen = set()
    def gm(j, kap, hf):
        a(f"v_mfma_f32_16x16x32_bf16 {vr(ACC+4*j,4)}, {vr(O+32*kap+4*(j+4*hf),4)}, {vr(B+8*kap+4*hf,4)}, {vr(ACC+4*j,4) if j in seen else 0}")
        seen.add(j)
    def rw(j, rs):
        for r in rs: a(f"ds_write_addtid_b32 v{ACC+4*j+r} offset:{1024*j+256*r}")
    for n_, (j, kap, hf) in enumerate(((0,0,0), (0,1,1), (1,0,0), (1,1,1))):
        gm(j, kap, hf)
        for q in (2*(n_%2), 2*(n_%2)+1):
            if n_ < 2: a(f"v_mov_b32_dpp v{B+4+q}, v{B+q} row_shr:8 {DPP_FULL} bound_ctrl:0")
            else:      a(f"v_mov_b32_dpp v{B+8+q}, v{B+12+q} row_shl:8 {DPP_FULL} bound_ctrl:0")
    gm(0,0,1); gm(1,0,1); gm(0,1,0); gm(1,1,0)
    for j in (2, 3):
        gm(j,0,0); gm(j,1,1); gm(j,0,1); gm(j,1,0)
    rw(0, range(4)); rw(1, range(4)); rw(2, range(4)); rw(3, range(4))
    a("s_waitcnt lgkmcnt(0)")
    a("s_barrier")
    for w in range(8):
        a(f"ds_read2st64_b32 {vr(O+2*w,2)}, v{VRD} offset0:{16*w} offset1:{16*w+1}")
    a("s_waitcnt lgkmcnt(4)")
    a(f"v_pk_add_f32 {vr(O,2)}, {vr(O,2)}, {vr(O+2,2)}")
    a(f"v_pk_add_f32 {vr(O+4,2)}, {vr(O+4,2)}, {vr(O+6,2)}")
    a("s_waitcnt lgkmcnt(2)")
    a(f"v_pk_add_f32 {vr(O+8,2)}, {vr(O+8,2)}, {vr(O+10,2)}")
    a(f"v_pk_add_f32 {vr(O,2)}, {vr(O,2)}, {vr(O+4,2)}")
    a("s_waitcnt lgkmcnt(0)")
    a(f"v_pk_add_f32 {vr(O+12,2)}, {vr(O+12,2)}, {vr(O+14,2)}")
    a(f"v_pk_add_f32 {vr(O,2)}, {vr(O,2)}, {vr(O+8,2)}")
    a(f"v_pk_add_f32 {vr(O,2)}, {vr(O,2)}, {vr(O+12,2)}")
    a(f"v_and_or_b32 v{O+2}, v{O}, s10, v13")
    a(f"v_and_or_b32 v{O+3}, v{O+1}, s10, v13")
    a(f"global_store_dwordx2 v{VPO}, {vr(O+2,2)}, {sr(S_WS,2)} sc1")
    stamp(a, 8)
    if c.get("ebar", 1): a("s_barrier")
    a("s_add_u32 s6, s2, s3")
    a("s_cmp_lg_u32 s6, 0")
    a("s_cbranch_scc1 LM_nokeys")
    a(f"v_mov_b32 v37, s{S_TAG}")
    a("v_lshlrev_b32 v38, 3, v1")
    a(f"v_add_u32 v38, {WS_KEYS}, v38")
    a(f"v_mov_b32 v39, {WS_E}")
    a("s_mov_b64 exec, 0xffff")
    a(f"global_store_dwordx2 v38, v[36:37], {sr(S_WS,2)} sc1")
    a("s_mov_b64 exec, 1")
    a(f"global_store_dword v39, v37, {sr(S_WS,2)} sc1")
    a("s_mov_b64 exec, -1")
    a("LM_nokeys:")
    nd2 = c.get("nd2", 8)
    dloads(nd1, nd2)
    a("v_ashrrev_i32 v38, 31, v36")
    a("v_not_b32 v38, v38")
    a("v_or_b32 v38, 0x80000000, v38")
    a("v_xor_b32 v32, v36, v38")
    a("v_and_b32 v32, 0xffff0000, v32")
    a("v_mul_f32 v32, 0xbfb8aa3b, v32")
    a("v_exp_f32 v32, v32")
    a("v_lshlrev_b32 v33, 16, v33")
    a("v_add_f32 v32, 1.0, v32")
    a("v_rcp_f32 v32, v32")
    a("v_sub_f32 v33, 1.0, v33")
    a("v_cvt_pk_bf16_f32 v32, v32, v32")
    a("v_lshlrev_b32 v32, 16, v32")
    a("v_mul_f32 v32, v32, v33")
    a("s_mov_b32 s14, 0")
    a(f"s_waitcnt vmcnt({nd2-nd1})")
    a(f"global_load_dwordx2 v[54:55], v{VPP}, {sr(S_WS,2)} sc1")
    dloads(nd2, 8)
    def dreads(kap):
        for t_ in range(4):
            for pp in range(2):
                a(f"ds_read_b64_tr_b16 {vr(DO+16*kap+4*t_+2*pp,2)}, v{VTR+t_} offset:{4096*kap+256*pp}")
    assert nd1 >= 4
    dreads(0)
    if nd2 == 8:
        a("s_waitcnt vmcnt(1)")
        dreads(1)
    a(f"s_waitcnt vmcnt({8-nd2})")
    a("LM_poll2:")
    a("v_xor_b32 v2, v13, v54")
    a("v_bitop3_b32 v2, v55, v13, v2 bitop3:0xbe")
    a("v_and_b32 v2, 0xff, v2")
    a("v_cmp_ne_u32 vcc, 0, v2")
    a("v_and_b32 v56, s10, v54")
    a("v_and_b32 v57, s10, v55")
    a("s_cbranch_vccnz LM_poll2_retry")
    a("LM_poll2_ok:")
    if STAMP["on"]: a(f"s_mov_b32 s{ST0+22}, s14")
    stamp(a, 9)
    a(f"v_pk_add_f32 v[54:55], v[56:57], {vr(O,2)}")
    a("s_nop 1")
    a("v_permlane32_swap_b32 v54, v55")
    a("v_cvt_pk_bf16_f32 v55, v54, v55")
    a("v_lshlrev_b32 v54, 16, v55")
    a("v_mul_f32 v56, 0xbfb8aa3b, v54")
    a("v_exp_f32 v56, v56")
    a("v_and_b32 v55, 0xffff0000, v55")
    a("v_add_f32 v56, 1.0, v56")
    a("v_rcp_f32 v56, v56")
    a("v_mul_f32 v55, v55, v32")
    a("v_mul_f32 v54, v54, v56")
    a("v_mul_f32 v54, v54, v55")
    a("v_cvt_pk_bf16_f32 v54, v54, v54")
    a(f"ds_write_b16 v{VH}, v54 offset:{L_HB}")
    if nd2 < 8:
        a("s_waitcnt vmcnt(0)")
        dreads(1)
        a("s_waitcnt lgkmcnt(8)")
    else:
        a("s_waitcnt lgkmcnt(0)")
    a("s_barrier")
    for kap in range(2):
        for hf in range(2):
            a(f"ds_read_b128 {vr(B+8*kap+4*hf,4)}, v{VA+hf} offset:{L_HB+64*kap}")
    for n_, (kap, hf) in enumerate(((0,0), (0,1), (1,0), (1,1))):
        a(f"s_waitcnt lgkmcnt({3-n_})")
        for j in range(2):
            a(f"v_mfma_f32_16x16x32_bf16 {vr(ACC+4*j,4)}, {vr(B+8*kap+4*hf,4)}, {vr(DO+16*kap+4*(2*j+hf),4)}, {vr(ACC+4*j,4) if n_ else 0}")
    a("s_nop 6")
    for j in range(2):
        for r in range(4):
            a(f"v_and_or_b32 v{ACC+4*j+r}, v{ACC+4*j+r}, s10, v13")
        a(f"global_store_dwordx4 v{(VPT, 4)[j]}, {vr(ACC+4*j,4)}, {sr(S_WS,2)} sc1")
    stamp(a, 10)
    stamp_dump(a, 0, 13)
    a("s_endpgm")
    a("LM_poll2_retry:")
    a("s_add_u32 s14, s14, 1")
    a(f"s_cmp_ge_u32 s14, {SPIN}")
    a("s_cbranch_scc1 LM_poll2_ok")
    a(f"global_load_dwordx2 v[54:55], v{VPP}, {sr(S_WS,2)} sc1")
    a("s_waitcnt vmcnt(0)")
    a("s_branch LM_poll2")
    a("LM_slow:")
    a("s_waitcnt vmcnt(0)")
    KS = DO
    a("v_lshlrev_b32 v56, 4, v1")
    for i in range(8):
        a(f"ds_read_b128 {vr(KS+4*i,4)}, v56 offset:{L_RG+1024*i}")
    a("v_lshlrev_b32 v57, 2, v1")
    a("v_sub_u32 v57, 2047, v57")
    a("s_waitcnt lgkmcnt(0)")
    for i in range(32):
        a(f"v_subrev_u32 v58, {256*(i//4)+i%4}, v57")
        a(f"v_and_or_b32 v{KS+i}, v{KS+i}, s66, v58")
    a("s_mov_b32 s14, -1")
    a("s_mov_b32 s6, 0")
    a("LM_slow_rnd:")
    for i in range(0, 32, 2):
        a(f"v_sub_u32 v57, s14, v{KS+i}")
        a(f"v_sub_u32 v58, s14, v{KS+i+1}")
        a("v_min_u32 v56, v57, v58" if i == 0 else "v_min3_u32 v56, v57, v58, v56")
    for st in (f"row_shr:1 {DPP_FULL}", f"row_shr:2 {DPP_FULL}", f"row_shr:4 {DPP_FULL}", f"row_shr:8 {DPP_FULL}",
               "row_bcast:15 row_mask:0xa bank_mask:0xf", "row_bcast:31 row_mask:0xc bank_mask:0xf"):
        a("s_nop 1")
        a(f"v_min_u32_dpp v56, v56, v56 {st}")
    a("s_nop 0")
    a("v_readlane_b32 s15, v56, 63")
    a("s_sub_u32 s14, s14, s15")
    a("v_mov_b32 v57, s6")
    a("v_mov_b32 v58, s14")
    a(f"ds_write_b32 v57, v58 offset:{L_SEL}")
    a("s_sub_u32 s14, s14, 1")
    a("s_add_u32 s6, s6, 4")
    a("s_cmp_lt_u32 s6, 32")
    a("s_cbranch_scc1 LM_slow_rnd")
    a("s_waitcnt lgkmcnt(0)")
    xsel()
    a("s_waitcnt vmcnt(0) lgkmcnt(0)")
    a("s_branch LM_verified")
    a("LM_spare:")
    a("s_waitcnt vmcnt(0)")
    stamp_dump(a, 0, 13)
    a("s_endpgm")

ROWB = 528
REG = 18368
YB, UB, KB = 0, 10624, 15200
KE, KO, TB = KB + 32, KB + 1252, KB + 2352
GB = 8 * REG
RED2 = GB + 8192
LDS_TOTAL = RED2 + 2048

def conv(a):
    c = CFG
    C3, C5, C7, C9, C2 = 12, 16, 20, 24, 28
    ACC, A, T, BX, BR, EP, SD, U2 = 32, 64, 132, 172, 196, 232, 244, 248
    EOP, GOP, U1 = 64, 132, 232
    PL, TG = EP, SD
    VB, VU, VG, VY, VGW, VT0, VT1 = 2, 3, 4, 5, 6, 8, 9
    VUL, VOP, VK, VTP, VTQ, VDP, VZ, VDS = 48, 49, 50, 51, 52, 53, 54, 55
    VA0, VA1, VT = 60, 61, 62
    S_COL, S_REG, S_TAG = 60, 61, 66
    a("s_and_b32 s4, s2, 7")
    a("s_bfe_u32 s5, s2, 0x40003")
    a("s_lshl_b32 s6, s4, 4")
    a("s_add_u32 s63, s6, s5")
    a(f"s_lshl_b32 s{S_COL}, s63, 4")
    a("s_lshl_b32 s6, s63, 3")
    a("s_add_u32 s6, s6, s3")
    a("s_lshl_b32 s7, s6, 8")
    a("v_lshl_add_u32 v3, v1, 2, s7")
    a("s_lshl_b32 s7, s6, 1")
    a("s_and_b32 s7, s7, 0x7fc")
    a("s_and_b32 s11, s3, 1")
    a("s_lshl_b32 s11, s11, 4")
    a(f"v_lshlrev_b32 v{VUL}, 12, v0")
    a(f"v_sub_u32 v{VUL}, {1022*2048}, v{VUL}")
    a("v_lshlrev_b32 v11, 11, v0")
    a(f"s_mul_i32 s{S_REG}, s3, {REG}")
    a(f"s_mov_b32 m0, s{S_REG}")
    a("s_and_b32 s6, s5, 7")
    a("s_lshl_b32 s6, s6, 3")
    a("s_add_u32 s6, s6, s3")
    a("s_lshl_b32 s6, s6, 16")
    a(f"s_add_u32 s6, s6, s{S_COL}")
    a("v_lshlrev_b32 v2, 11, v1")
    a(f"s_add_u32 s8, s{S_COL}, {1 << 21}")
    a("s_waitcnt lgkmcnt(0)")
    a(f"s_load_dword s66, {sr(S_LDT,2)}, s7")
    a(f"s_load_dword s67, {sr(S_DSK,2)}, s7")
    PR = 196
    for i, s_ in enumerate((S_LA, S_AI, S_CR, S_CI)):
        a(f"global_load_dword v{PR+i}, v3, {sr(s_,2)}")
    a.srd(SRD_X, S_X, 4194304)
    a("s_barrier")
    a("s_mov_b32 exec_hi, 0")
    a(f"buffer_load_dword v10, v2, {sr(SRD_X,4)}, s6 offen")
    a("s_mov_b64 exec, -1")
    a("s_barrier")
    def utext(H, e, va=VUL):
        return f"buffer_load_dwordx4 {vr((U1, U2)[H]+4*e,4)}, v{va}, {sr(SRD_X,4)}, s{(S_COL, 8)[H]} offen offset:{e*2048}"
    def uload(H, e): a(utext(H, e))
    uload(0, 0)
    a.srd(SRD_OUT, S_OUT, 4194304)
    t0_, t1_, t2_, ta = 56, 57, 58, 59
    a(f"v_and_b32 v{ta}, 15, v1")
    a("v_lshrrev_b32 v7, 4, v1")
    a(f"v_lshl_add_u32 v{t0_}, v7, 3, v{ta}")
    a(f"v_min_u32 v{t0_}, 31, v{t0_}")
    a("s_mov_b32 s9, 0x10001")
    for (cr, lo, hi, mul) in ((C3, 18, 20, 0x3f80), (C5, 21, 25, 0x3f80), (C7, 20, 26, 0x3f80), (C9, 19, 27, 0x3f80), (C2, 18, 19, 0xffff)):
        a(f"s_mov_b32 s6, {((1 << (hi+1)) - (1 << lo)):#x}")
        a(f"v_bfe_u32 v{t1_}, s6, v{t0_}, 8")
        a(f"v_lshl_or_b32 v{t1_}, v{t1_}, 15, v{t1_}")
        for p in range(4):
            if p: a(f"v_lshrrev_b32 v{cr+p}, {2*p}, v{t1_}")
            a(f"v_and_b32 v{cr+p}, s9, v{cr+p if p else t1_}")
            a(f"v_mul_u32_u24 v{cr+p}, {mul:#x}, v{cr+p}")
    a(f"v_and_b32 v{t0_}, 31, v1")
    a(f"v_lshrrev_b32 v{t1_}, 5, v1")
    a(f"v_mul_u32_u24 v{VOP}, {ROWB}, v{t0_}")
    a(f"v_lshl_add_u32 v{t2_}, v{t1_}, 4, s{S_REG}")
    a(f"v_add_u32 v{VOP}, v{VOP}, v{t2_}")
    a(f"v_mov_b32 v{VZ}, 0")
    a("s_mov_b32 s14, 0xaaaaaaaa")
    a("s_mov_b32 s15, 0xaaaaaaaa")
    late = f"""
    v_lshlrev_b32 v{t2_}, 5, v{ta}
    s_add_u32 s6, s{S_REG}, {UB+480}
    v_sub_u32 v{VU}, s6, v{t2_}
    v_lshl_add_u32 v{VB}, v7, 4, v{VU}
    v_lshlrev_b32 v{VY}, 3, v7
    v_sub_u32 v{VU}, v{VU}, v{VY}
    v_add3_u32 v{VY}, v{t2_}, v{VY}, s{S_REG}
    v_lshl_add_u32 v{VK}, v{t0_}, 4, s{S_REG}
    v_lshl_add_u32 v{VK}, v{t1_}, 3, v{VK}
    v_lshl_add_u32 v{VTQ}, v{t0_}, 1, s{S_REG}
    v_lshl_add_u32 v{VTQ}, v{t1_}, 7, v{VTQ}
    v_lshrrev_b32 v{t0_}, 1, v{t0_}
    v_lshl_add_u32 v{VTP}, v{t0_}, 2, s{S_REG}
    v_lshl_add_u32 v{VTP}, v{t1_}, 6, v{VTP}
    v_add_u32 v{t0_}, 192, v{VTP}
    v_cndmask_b32 v{VTP}, v{VTP}, v{t0_}, s[14:15]
    v_and_b32 v{t0_}, 14, v1
    v_lshlrev_b32 v{t0_}, 1, v{t0_}
    v_lshl_add_u32 v{t0_}, v7, 4, v{t0_}
    v_mov_b32 v{t1_}, {KO-28}
    v_mov_b32 v{t2_}, {KE-28}
    v_cndmask_b32 v{t1_}, v{t1_}, v{t2_}, s[14:15]
    v_add3_u32 v{VA0}, v{t0_}, v{t1_}, s{S_REG}
    v_add_u32 v{VA1}, 1024, v{VA0}
    v_lshlrev_b32 v{t0_}, 4, v7
    s_add_u32 s6, s{S_REG}, {TB}
    v_lshl_add_u32 v{VT}, v{ta}, 2, s6
    v_sub_u32 v{VT}, v{VT}, v{t0_}
    s_lshl_b32 s6, s3, 11
    s_add_u32 s6, s6, {WS_RG}
    v_lshl_add_u32 v{TG+3}, v1, 4, s6
    s_mov_b32 s6, {GB}
    v_lshl_add_u32 v{VG}, v1, 4, s6
    v_bfe_u32 v{t0_}, v1, 2, 2
    v_mul_u32_u24 v{VT0}, {REG}, v{t0_}
    v_and_b32 v{t0_}, 3, v1
    v_lshl_add_u32 v{VT0}, v{t0_}, 3, v{VT0}
    s_lshl_b32 s6, s3, 7
    v_lshl_add_u32 v{t0_}, v7, 5, s6
    v_add_u32 v{VT0}, v{VT0}, v{t0_}
    v_add_u32 v{VT1}, {4*REG}, v{VT0}
    v_and_b32 v{t0_}, 1, v1
    s_lshl_b32 s6, s3, 10
    s_add_u32 s6, s6, {GB}
    v_lshl_add_u32 v{VGW}, v{t0_}, 3, s6
    v_bfe_u32 v{t0_}, v1, 1, 2
    v_lshl_add_u32 v{VGW}, v{t0_}, 8, v{VGW}
    v_lshrrev_b32 v{t0_}, 3, v1
    v_lshl_add_u32 v{VGW}, v{t0_}, 4, v{VGW}
    """.strip().split("\n")
    if c["dpre"]:
        late += f"""
        s_mul_i32 s6, s5, 7
        s_min_u32 s7, s3, 6
        s_add_u32 s6, s6, s7
        s_lshr_b32 s7, s6, 4
        s_lshl_b32 s7, s7, 4
        s_add_u32 s6, s6, s7
        s_mul_i32 s7, s4, 224
        s_add_u32 s6, s6, s7
        s_lshl_b32 s6, s6, 12
        s_add_u32 s6, s6, {32*2048}
        v_and_b32 v{t0_}, 31, v1
        v_lshl_add_u32 v{TG+2}, v{t0_}, 7, s6
        """.strip().split("\n")
    late = [l.strip() for l in late]
    if c["wpre"]:
        a("s_lshl_b32 s6, s5, 3")
        a("s_lshr_b32 s7, s3, 1")
        a("s_add_u32 s6, s6, s7")
        a("s_lshl_b32 s6, s6, 3")
        a(f"s_add_u32 s6, s6, {32 + 8 - c['wpre']}")
        a("s_mul_i32 s6, s6, 7168")
        a("s_mul_i32 s7, s4, 896")
        a("s_add_u32 s6, s6, s7")
        a(f"s_lshr_b32 s7, s{S_WG}, 7")
        a("s_sub_u32 s7, s4, s7")
        a("s_add_u32 s7, s7, 3")
        a("s_and_b32 s7, s7, 7")
        a("s_min_u32 s7, s7, 6")
        a("s_lshl_b32 s7, s7, 7")
        a(f"s_sub_u32 s7, s7, {4*7168}")
        a("v_and_b32 v2, 7, v1")
        a("v_cmp_eq_u32 vcc, 7, v2")
        a("v_lshlrev_b32 v2, 7, v2")
        a("v_mov_b32 v3, s7")
        a("v_lshrrev_b32 v4, 3, v1")
        a("v_cndmask_b32 v2, v2, v3, vcc")
        a("v_mul_u32_u24 v4, 7168, v4")
        a("v_add3_u32 v0, v2, v4, s6")
        m = sum((0xff if c["wpre"] == 4 else 0x7f) << (8*i) for i in range(c["wpre"]))
        a(f"s_mov_b32 s70, {m & 0xffffffff:#x}")
        a(f"s_mov_b32 s71, {m >> 32:#x}")
        a("s_bitcmp1_b32 s3, 0")
        a(f"s_cselect_b64 s[12:13], {sr(S_WU,2)}, {sr(S_WG,2)}")
    a("s_mov_b32 s64, 0x05040100")
    a("s_mov_b32 s65, 0x07060302")
    a("s_lshl_b32 s68, s3, 8")
    a(f"s_add_u32 s68, s68, {UB}")
    a(f"s_add_u32 s69, s68, {4*REG}")
    a("s_mov_b32 s10, 0")
    a(f"v_mov_b32 v{t2_}, 0x3f80")
    a(f"ds_write_addtid_b32 v{t2_}")
    a(f"ds_write_addtid_b32 v{t2_} offset:256")
    a("s_waitcnt lgkmcnt(0)")
    d = 200
    a("s_lshr_b32 s66, s66, s11")
    a("s_lshr_b32 s67, s67, s11")
    a("s_lshl_b32 s66, s66, 16")
    a("s_lshl_b32 s67, s67, 16")
    a(f"v_mov_b32 v{d}, {LOG2E}")
    a(f"v_mul_f32 v{d}, s66, v{d}")
    a(f"v_exp_f32 v{d}, v{d}")
    a(f"v_mov_b32 v{VDS}, 0")
    a(f"v_cvt_pk_bf16_f32 v{d}, v{d}, v{d}")
    a(f"v_writelane_b32 v{VDS}, s67, 0")
    a(f"v_lshlrev_b32 v{d}, 16, v{d}")
    a(f"v_mul_f32 v202, 0xbfb8aa3b, v{d}")
    a(f"v_mul_f32 v203, {INV2PI}, v{d}")
    a(f"v_add_f32 v{d}, v{d}, v{d}")
    nx = [GOP]
    def newp():
        p = (nx[0], nx[0] + 2); nx[0] += 4; return p
    W1, W8, W256, G0 = newp(), newp(), newp(), newp()
    TT = newp()
    PK = [nx[0], nx[0] + 2, nx[0] + 4]; nx[0] += 8
    Z = 204
    X_ = 208
    stamp(a, 1)
    a("s_waitcnt vmcnt(2)")
    stamp(a, 2)
    a(f"v_lshlrev_b32 v{Z}, 16, v{PR}")
    a(f"v_and_b32 v{Z+2}, 0xffff0000, v{PR}")
    a(f"v_mul_f32 v{Z}, {LOG2E}, v{Z}")
    a(f"v_mul_f32 v{Z+2}, {LOG2E}, v{Z+2}")
    a(f"v_exp_f32 v{Z}, v{Z}")
    a(f"v_exp_f32 v{Z+2}, v{Z+2}")
    a(f"v_lshlrev_b32 v{Z+1}, 16, v{PR+1}")
    a(f"v_cvt_pk_bf16_f32 v{Z+2}, v{Z}, v{Z+2}")
    a(f"v_and_b32 v{Z+3}, 0xffff0000, v{PR+1}")
    a(f"v_lshlrev_b32 v{Z}, 16, v{Z+2}")
    a(f"v_and_b32 v{Z+2}, 0xffff0000, v{Z+2}")
    a(f"v_pk_mul_f32 {vr(Z,2)}, {vr(Z,2)}, v[202:203]")
    a(f"v_pk_mul_f32 {vr(Z+2,2)}, {vr(Z+2,2)}, v[202:203]")
    def wexp(sc, W):
        L = []
        for m in range(2):
            if sc:
                L += [f"v_mul_f32 v{X_+2*m}, {sc}, v{Z+2*m}", f"v_mul_f32 v{X_+1+2*m}, {sc}, v{Z+1+2*m}"]
        src = X_ if sc else Z
        for m in range(2):
            L += [f"v_fract_f32 v{X_+1+2*m}, v{src+1+2*m}"]
        for m in range(2):
            L += [f"v_exp_f32 v{X_+2*m}, v{src+2*m}", f"v_cos_f32 v{W[m]}, v{X_+1+2*m}", f"v_sin_f32 v{W[m]+1}, v{X_+1+2*m}"]
        for m in range(2):
            L += [f"v_pk_mul_f32 {vr(W[m],2)}, {vr(W[m],2)}, {vr(X_+2*m,2)} op_sel:[0,0] op_sel_hi:[1,0]"]
        return L
    for l in wexp("0x41000000", W8): a(l)
    if c.get("kbar", 1): a("s_barrier")
    kk = [0]
    def run_steps(steps, neg, hooks={}):
        n = "-" if neg else ""
        pend = None; pw = None
        for si, (dst, src, w, rows) in enumerate(steps + [(None,)*4, (None,)*4]):
            x = y = [None, None]
            if w is not None:
                x = cmul(dst[0], src[0], w[0], TT[0]); y = cmul(dst[1], src[1], w[1], TT[1])
            cA = cB = None
            if pend:
                p = PK[kk[0] % 3]; kk[0] += 1
                cA = f"v_cvt_pk_bf16_f32 v{p}, v{pend[0][0]}, {n}v{pend[0][0]+1}"
                cB = f"v_cvt_pk_bf16_f32 v{p+1}, v{pend[0][1]}, {n}v{pend[0][1]+1}"
            wa = [f"ds_write_addtid_b32 v{pw[0]} offset:{r*ROWB}" for r in pw[1]] if pw else []
            wb = [f"ds_write_addtid_b32 v{pw[0]+1} offset:{r*ROWB+256}" for r in pw[1]] if pw else []
            for s_ in [x[0], y[0]] + wa + hooks.get(si, []) + [cA, x[1], y[1]] + wb + [cB]:
                if s_: a(s_)
            pw = (p, pend[1]) if pend else None
            pend = (dst, rows) if rows else None
    EA, EB = newp(), newp()
    steps = [(W8, None, None, [1])]
    cur = W8
    for b in range(2, 32):
        nxt = EA if b % 2 == 0 else EB
        steps.append((nxt, cur, W8, [b])); cur = nxt
    eh = {c["u1at"]: [utext(0, 1)]}
    if c["wpre"]:
        eh[c["wpat"]] = [f"s_mov_b64 exec, s[70:71]", f"global_load_dword v10, v0, s[12:13]", "s_mov_b64 exec, -1"]
    a(".p2align 3")
    run_steps(steps, False, eh)
    sb = [f"v_lshlrev_b32 v{G0[0]}, 16, v{PR+2}", f"v_and_b32 v{G0[1]}, 0xffff0000, v{PR+2}",
          f"v_lshlrev_b32 v{G0[0]+1}, 16, v{PR+3}", f"v_and_b32 v{G0[1]+1}, 0xffff0000, v{PR+3}",
          f"v_pk_mul_f32 {vr(G0[0],2)}, {vr(G0[0],2)}, {vr(d,2)} op_sel:[0,0] op_sel_hi:[1,0]",
          f"v_pk_mul_f32 {vr(G0[1],2)}, {vr(G0[1],2)}, {vr(d,2)} op_sel:[0,0] op_sel_hi:[1,0]"]
    sb += wexp(None, W1) + wexp("0x43800000", W256)
    for s_ in range(16):
        a(f"ds_read_b128 {vr(EOP+4*s_,4)}, v{VOP} offset:{32*s_}")
        if s_ % 2 == 1 and s_ >= 3:
            for _ in range(5):
                if sb: a(sb.pop(0))
    assert not sb
    def drow(r, h): return 8*(r//4) + 4*h + (r % 4)
    want = {}
    def put(al, r, h): want.setdefault(al, []).append(drow(r, h))
    for h in range(2):
        for j in range(4): put(4*h + j, j, h)
        for j in range(3): put(256 + 4*h + 2*j, 4 + j, h)
        put(4*h + 4, 7, h)
        for j in range(2): put(512 + 256*h + 4 + 4*j, 8 + j, h)
        for q in range(2): put(1024 + 512*h + 256*q + 8, 10 + q, h)
    keep = {al: newp() for al in (2, 4, 6, 8)}
    tA, tB = EA, EB
    steps = []
    def st(al, dst, src, w): steps.append((dst, src, w, want.pop(al)))
    st(0, G0, None, None)
    cur = G0
    for al in range(1, 9):
        dd = keep.get(al) or (tA if al % 4 == 1 else tB)
        st(al, dd, cur, W1); cur = dd
    c8 = [keep[8], tA]; c4 = [keep[4], tB]
    e1 = newp()
    singles = [(256, G0), (258, keep[2]), (262, keep[6])]
    for k in range(1, 8):
        st(256*k + 8, c8[k % 2], c8[(k-1) % 2], W256)
        if k <= 3: st(256*k + 4, c4[k % 2], c4[(k-1) % 2], W256)
        elif singles:
            al, src = singles.pop(0)
            st(al, e1, src, W256)
    assert not want and not singles and nx[0] <= GOP + 64
    zs = [UB+4096, UB+4096+256, KB+1056, KB+2288, KB+2288+256]
    hooks = {8 + 2*i: [f"ds_write_addtid_b32 v{VZ} offset:{z}"] for i, z in enumerate(zs)}
    hooks[1] = [f"s_load_dwordx2 s[66:67], {sr(S_DBG,2)}, 0"]
    hooks[7] = ["s_waitcnt lgkmcnt(8)", "s_barrier"]
    a(".p2align 3")
    run_steps(steps, True, hooks)
    stamp(a, 3)
    S = Sched(a, lat=c.get("lat", 5))
    def uwrite(H, tmp):
        U = (U1, U2)[H]
        for ch in range(8):
            S.raw(f"v_perm_b32 v{tmp+ch}, v{U+ch//2}, v{U+4+ch//2}, s{64+ch%2}")
        for ch in range(8):
            if ch % 4 == 0:
                S.raw(f"s_mov_b32 m0, s{68+ch//4}"); S.raw("s_nop 0" if ch else "s_waitcnt lgkmcnt(0)")
            S.lds(("uw", H, ch), f"ds_write_addtid_b32 v{tmp+ch} offset:{(ch%4)*REG+2048*(1-H)}")
    a(f"s_waitcnt vmcnt({1 if c['wpre'] else 0})")
    stamp(a, 4)
    uload(1, 0)
    a(f"v_mov_b32 v0, v{VUL}")
    uwrite(0, BR)
    gtext = lambda s_: f"ds_read_b128 {vr(GOP+4*s_,4)}, v{VOP} offset:{32*s_}"
    NG = 5
    for s_ in range(NG): S.lds(("G", s_), gtext(s_))
    S.raw(f"s_waitcnt lgkmcnt({NG})"); S.done = len(S.Q) - 1 - NG
    S.raw("s_barrier")
    stamp(a, 5)
    def rec_loads():
        for q in range(2):
            a(f"global_load_dwordx4 {vr(PL+4*q,4)}, v{TG+3}, {sr(S_WS,2)} offset:{1024*q} sc1")
    def bslot(k): return BR + 4*k
    def btext(cc, k):
        return f"ds_read_b128 {vr(bslot(k),4)}, v{VB} offset:{3584 - 512*cc + (64*k if k < 8 else 16)}"
    D = 32
    lat0, S.lat = S.lat, 99
    dsq = [(("G", s_), gtext(s_)) for s_ in range(NG, 16)] + [(("B", 0, k), btext(0, k)) for k in (0, 8, 1, 2, 3, 4, 5, 6, 7)]
    for s_ in range(16):
        S.wait([("G", s_)])
        S.raw(f"v_mfma_f32_32x32x16_bf16 {vr(D,16)}, {vr(GOP+4*s_,4)}, {vr(EOP+4*s_,4)}, {vr(D,16) if s_ else 0}")
        nd_ = 2 if s_ < 6 else 1
        for _ in range(nd_):
            if dsq: S.lds(*dsq.pop(0))
        for _ in range(5 - nd_ if s_ < 15 else 99):
            if late: S.raw(late.pop(0))
    assert not dsq and not late
    rec_loads(); S.n += 2
    S.lat = lat0
    mtext = lambda dd, ra, rb, cin: f"v_mfma_f32_16x16x32_bf16 {vr(dd,4)}, {vr(ra,4)}, {vr(rb,4)}, {cin}"
    boxes = ((0, 0, C3), (1, 0, C5), (4, 0, C7), (2, 8, C3), (3, 8, C5), (5, 8, C9))
    S.wait([("B", 0, 8)])
    for (i, k, rc) in boxes:
        S.put(Op("M", ("box", 0, i), mtext(BX+4*i, bslot(k), rc, 0)))
    S.raw("s_nop 3", 4)
    t = 64
    r_ = S.raw
    r_(f"v_add_f32 v{D}, v{D}, v{VDS}")
    r_(f"v_cvt_pk_bf16_f32 v{t+1}, v{D+2}, v{D+3}")
    r_(f"v_cvt_pk_bf16_f32 v{t}, v{D}, v{D+1}")
    r_(f"v_cvt_pk_bf16_f32 v{t+2}, v{D+4}, v{D+4}")
    r_(f"v_cvt_pk_bf16_f32 v{t+3}, v{D+5}, v{D+6}")
    r_(f"v_cvt_pk_bf16_f32 v{t+4}, v{D+1}, v{D+2}")
    r_(f"v_cvt_pk_bf16_f32 v{t+5}, v{D+3}, v{D+7}")
    r_(f"v_cvt_pk_bf16_f32 v{t+6}, v{D+4}, v{D+5}")
    r_(f"v_cvt_pk_bf16_f32 v{t+7}, v{D+6}, v{D+6}")
    r_(f"v_lshlrev_b32 v{t+8}, 16, v{t}")
    r_(f"v_mov_b32 v{t+10}, v{t+7}")
    r_(f"v_and_b32 v{t+11}, 0xffff, v{t+7}")
    S.lds("k0", f"ds_write_b64 v{VK}, {vr(t,2)} offset:{KE}")
    S.lds("k1", f"ds_write_b64 v{VK}, {vr(t+4,2)} offset:{KO+4}")
    S.lds("k2", f"ds_write_b64 v{VK}, {vr(t+2,2)} offset:{KE+512}")
    S.lds("k3", f"ds_write_b64 v{VK}, {vr(t+6,2)} offset:{KO+4+512}")
    r_("s_mov_b64 exec, 1")
    S.lds("k4", f"ds_write_b32 v{VK}, v{t+8} offset:{KO}")
    r_("s_mov_b32 exec_lo, 0")
    r_("s_mov_b32 exec_hi, 0x80000000")
    S.lds("k5", f"ds_write_b64 v{VK}, {vr(t+10,2)} offset:{KE+1024-504}")
    S.lds("k6", f"ds_write_b32 v{VK}, v{t+10} offset:{KO+1028-504}")
    S.lds("k7", f"ds_write_b32 v{VK}, v{VZ} offset:{KO+1032-504}")
    r_("s_mov_b64 exec, -1")
    def atext(tt, hf):
        base, o = (VA0, 16*tt) if tt < 16 else (VA1, 0)
        return f"ds_read2_b32 {vr(A+4*tt+2*hf,2)}, v{base} offset0:{o+2*hf} offset1:{o+2*hf+1}"
    aorder = [0, 8, 16] + [x for t0 in range(1, 8) for x in (t0, t0+8)]
    npre = 3
    for tt in aorder[:npre]:
        for hf in range(2): S.lds(("A", tt, hf), atext(tt, hf))
    u = 56
    r_(f"v_cvt_pk_bf16_f32 v{u+2}, v{D+9}, v{D+9}")
    r_(f"v_cvt_pk_bf16_f32 v{u}, v{D+8}, v{D+9}")
    r_(f"v_cvt_pk_bf16_f32 v{u+1}, v{D+10}, v{D+11}")
    r_(f"v_readlane_b32 s6, v{u+2}, 63")
    S.lds("k8", f"ds_write_b32 v{VTP}, v{u} offset:{TB+64}")
    S.lds("k9", f"ds_write_b16 v{VTQ}, v{u+1} offset:{TB+448}")
    S.lds("k10", f"ds_write_b16_d16_hi v{VTQ}, v{u+1} offset:{TB+448+64}")
    for tt in aorder[npre:npre+2]:
        for hf in range(2): S.lds(("A", tt, hf), atext(tt, hf))
    for p in range(4):
        r_(f"v_and_b32 v{C2+p}, s6, v{C2+p}")
    for i in (0, 2, 4):
        for p in range(4):
            S.put(Op("V", ("cv", 0, i, p), f"v_cvt_pk_bf16_f32 v{BX+4*i+p}, v{BX+4*i+p}, v{BX+4*i+4+p}"))
    stamp(a, 6)
    TP12 = {dl: T + 4*(dl-2) for dl in (2, 3, 4)}
    TP34 = {dl: T + 12 + 4*(dl-2) for dl in (2, 3, 4)}
    TQ = {dl: T + 24 + 4*(dl-4) for dl in (4, 5, 6, 7)}
    ms, fs = [], []
    M0_ = S.m
    started = set(); lastacc = {}
    def mm(cc, Tt, ra, rb, needs, dist=None):
        if Tt > 7: return None
        nm = ("m", len(ms))
        ms.append(Op("M", nm, mtext(ACC+4*Tt, ra, rb, vr(ACC+4*Tt,4) if Tt in started else 0), needs=needs, dist=dist))
        started.add(Tt); lastacc[Tt] = nm
        return nm
    for tt in aorder[npre+2:]:
        for hf in range(2): fs.append(Op("D", ("A", tt, hf), atext(tt, hf), after=[("A", tt, 0)] if hf else []))
    tnames = {}
    for dl in (2, 3, 4, 5, 6, 7):
        for tab, off, nm in ((TP12, -16, "p"), (TP34, 32, "q"), (TQ, 48, "r")):
            if dl in tab:
                o = off + 16*dl; r = tab[dl]
                fs.append(Op("D", ("T", r, 0), f"ds_read2_b32 {vr(r,2)}, v{VT} offset0:{o} offset1:{o-1}"))
                fs.append(Op("D", ("T", r, 1), f"ds_read2_b32 {vr(r+2,2)}, v{VT} offset0:{o-2} offset1:{o-3}", after=[("T", r, 0)]))
    vm = ["rec"]
    def vmwait(nm): return f"s_waitcnt vmcnt({len(vm) - 1 - max(i for i, x in enumerate(vm) if x == nm)})"
    def records():
        a(vmwait("rec"))
        a("s_xor_b32 s67, s67, 1")
        a("LC_poll1:")
        a(f"v_xor_b32 v{EP+8}, s66, v{PL+1}")
        for i in (3, 5, 7):
            a(f"v_bitop3_b32 v{EP+8}, v{PL+i}, s66, v{EP+8} bitop3:0xbe")
        a(f"v_or_b32 v{EP+8}, s67, v{EP+8}")
        a(f"v_cmp_ne_u32 vcc, 0, v{EP+8}")
        a("s_cbranch_vccnz LC_poll1_retry")
        a("LC_poll1_ok:")
        if STAMP["on"]: a(f"s_mov_b32 s{ST0+24}, s10")
        S.n += 9
    def epilogue(t_, after):
        r = ACC + 4*t_
        alt = t_ >= 3 and t_ % 2 == 1
        E = U2 if alt else EP
        N = C7 if (alt and t_ >= 5) else EP + 8
        pl = {0: None, 1: 0, 2: 1, 3: None, 4: 2, 5: 3, 6: 4, 7: 5}[t_]
        pn = {0: None, 1: 0, 2: 1, 3: 2, 4: 3, 5: None, 6: 4, 7: 5}[t_]
        af = list(after) + ([("e", pl, 11)] if pl is not None else [])
        if t_ == 3: af += [("up", k) for k in range(8)]
        if t_ >= 4: af.append(("bar", 0))
        fs.append(Op("D", ("u", t_), f"ds_read_b64 {vr(E,2)}, v{VU} offset:{3584-512*t_+24}", after=af))
        fs.append(Op("D", ("g", t_), f"ds_read_b128 {vr(E+4,4)}, v{VG} offset:{1024*t_}", after=af + [("u", t_)]))
        L = [f"v_and_b32 v{N}, 0xffff0000, v{E+1}", f"v_lshlrev_b32_e64 v{N+1}, 16, v{E+1}",
             f"v_and_b32 v{N+2}, 0xffff0000, v{E}", f"v_lshlrev_b32_e64 v{N+3}, 16, v{E}"]
        L += [f"v_sub_f32_e64 v{r+i}, v{r+i}, v{N+i}" for i in range(4)]
        L += [f"v_fma_f32 v{r+i}, v{E+4+i}, v{r+i}, v{N+i}" for i in range(4)]
        L += [f"v_cvt_pk_bf16_f32 v{E+2}, v{r}, v{r+1}", f"v_cvt_pk_bf16_f32 v{E+3}, v{r+2}, v{r+3}"]
        for i, l in enumerate(L):
            af = [("e", t_, i-1)] if i else ([("e", pn, 11)] if pn is not None else [])
            if i == 0 and t_ == 5: af.append(("box", 3, 4))
            if i == 12 and pl is not None: af.append(("y", pl))
            fs.append(Op("V", ("e", t_, i), l, after=af, needs=[("g", t_)] if i == 0 else [], dist={lastacc[t_]: 8} if i == 4 else None))
        fs.append(Op("D", ("y", t_), f"ds_write_b64 v{VY}, {vr(E+2,2)} offset:{YB+512*t_}", after=[("e", t_, 13)] + ([("y", t_-1)] if t_ else []),
                     cost=3, dl=lastacc[t_][1] + (c.get("epdl", 14) if t_ else 45)))
    def store(P, extra, half=None):
        k = P if half is None else P + half
        ytile = 2*P + 1 if half is None else 2*P + half
        fs.append(Op("X", ("bar", k), lambda: S.raw("s_barrier"), needs=[("y", ytile)] + extra))
        fs.append(Op("D", ("t0", k), f"ds_read_b64_tr_b16 {vr(SD,2)}, v{VT0} offset:{YB+1024*P}", after=[("bar", k)] + ([("st", k-1)] if k else [])))
        fs.append(Op("D", ("t1", k), f"ds_read_b64_tr_b16 {vr(SD+2,2)}, v{VT1} offset:{YB+1024*P}", after=[("t0", k)]))
        def emit():
            if half is not None:
                S.raw("s_bitcmp1_b32 s3, 2")
                S.raw(f"s_cbranch_scc{1-half} LC_skipst{half}")
            S.raw(f"buffer_store_dwordx4 {vr(SD,4)}, v11, {sr(SRD_OUT,4)}, s{S_COL} offen", 1 if half is None else 0)
            if half is not None: a(f"LC_skipst{half}:")
            if P < 3: S.raw(f"v_add_u32 v11, {1 << 20}, v11")
            if half != 0:
                vm.append(("st", P)); stamp(a, 7 + P)
        fs.append(Op("X", ("st", k), emit, needs=[("t1", k)], after=["gat"] if half is not None else [], cost=3, dl=lastacc[ytile][1] + c.get("stdl", 22)))
    GA = T + 24
    def gather_loads():
        for q in range(2):
            a(f"global_load_dwordx4 {vr(GA+4*q,4)}, v{VGW}, {sr(S_WS,2)} offset:{1024*q} sc1")
    for cc in range(8):
        hasP, hasQ = cc <= 5, cc <= 3
        def nxt(k, after):
            if cc < 7 and (k < 8 or cc + 1 <= 5):
                fs.insert(nB[0], Op("D", ("B", cc+1, k), btext(cc+1, k), after=[after] + ([("bar", 0)] if cc + 1 >= 4 else []))); nB[0] += 1
        nB = [len(fs)]
        an = (lambda tt: [("A", tt, 1)]) if cc == 0 else (lambda tt: [])
        tn = (lambda r: [("T", r, 1)]) if cc == 0 else (lambda r: [])
        last8 = ("box", 0, 5)
        if cc and hasP:
            for (i, k, rc) in boxes:
                if i < 4 or hasQ:
                    ms.append(Op("M", ("box", cc, i), mtext(BX+4*i, bslot(k), rc, 0), needs=[("B", cc, k)]))
                    last8 = ("box", cc, i)
        if hasP: nxt(8, last8)
        l = None
        for (dl, ra, tt) in ((0, A, 0), (1, A+32, 8), (2, A+64, 16), (4, C2, None)):
            l = mm(cc, cc+dl, ra, bslot(0), [("B", cc, 0)] + (an(tt) if tt is not None else [])) or l
        nxt(0, l)
        if hasP and cc:
            for i in ((0, 2, 4) if hasQ else (0, 2)):
                for p in range(4):
                    fs.append(Op("V", ("cv", cc, i, p), f"v_cvt_pk_bf16_f32 v{BX+4*i+p}, v{BX+4*i+p}, v{BX+4*i+4+p}",
                                 dist={("box", cc, i): 8, ("box", cc, i+1): 8}))
        if cc >= c.get("split", 5):
            for t0 in range(1, 8): mm(cc, cc, A+4*t0, bslot(t0), [("B", cc, t0)])
            for t0 in range(1, 8):
                if cc < 7: nxt(t0, mm(cc, cc+1, A+32+4*t0, bslot(t0), []))
        else:
            for t0 in range(1, 8):
                l = mm(cc, cc, A+4*t0, bslot(t0), [("B", cc, t0)] + an(t0))
                l = mm(cc, cc+1, A+32+4*t0, bslot(t0), an(t0+8)) or l
                nxt(t0, l)
        if cc == 0:
            at = M0_ + len(ms) + c.get("recat", 6)
            fs.append(Op("X", "rec", records, at=at, cost=8))
            def vmop(nm, txt):
                def f():
                    for t_ in txt: S.raw(t_)
                    vm.append(nm)
                return f
            if c["dpre"]:
                fs.append(Op("X", "dpre", vmop("dpre", ["s_mov_b32 exec_hi, 0", f"global_load_dword v10, v{TG+2}, {sr(S_WD,2)}", "s_mov_b32 exec_hi, -1"]), at=M0_ + c["dpat"], dl=c["dpat"], cost=3))
            fs.append(Op("X", "u2b", vmop("u2b", [utext(1, 1, 0)]), at=M0_ + c["u2at"], dl=c["u2at"], cost=2))
            fs.append(Op("X", "u2w", lambda: S.raw(vmwait("u2b")), after=["u2b", "gbar"] + (["dpre"] if c["dpre"] else []), at=M0_ + c.get("u2wat", 70)))
            for q in range(2):
                fs.append(Op("V", ("g0", q), f"v_lshlrev_b32_e64 v{PL+4*q}, 16, v{PL+4*q}", after=["rec"]))
                fs.append(Op("V", ("g1", q), f"v_lshlrev_b32_e64 v{PL+4*q+1}, 16, v{PL+4*q+2}", after=["rec"]))
                fs.append(Op("D", ("gw", q), f"ds_write_b64 v{VGW}, {vr(PL+4*q,2)} offset:{128*q}", after=[("g0", q), ("g1", q)], cost=3))
            fs.append(Op("X", "gbar", lambda: S.raw("s_barrier"), needs=[("gw", 0), ("gw", 1)]))
            epilogue(0, ["gbar"])
            for hf in range(2):
                for k in range(4):
                    ch = 4*hf + k
                    fs.append(Op("V", ("up", ch), f"v_perm_b32 v{SD+k}, v{U2+ch//2}, v{U2+4+ch//2}, s{64+ch%2}",
                                 after=["u2w"] + ([("uw", 1, ch-4)] if hf else [])))
                fs.append(Op("X", ("um", hf), (lambda hf=hf: S.raw(f"s_mov_b32 m0, s{68+hf}")), after=["gbar"] + ([("uw", 1, 3)] if hf else [])))
                for k in range(4):
                    ch = 4*hf + k
                    fs.append(Op("D", ("uw", 1, ch), f"ds_write_addtid_b32 v{SD+k} offset:{k*REG}",
                                 after=[("up", ch)] + ([("uw", 1, ch-1)] if ch else []), dist={("um", hf): 1}))
        else:
            epilogue(cc, [])
        if cc >= 6: store(3, [], cc - 6)
        elif cc % 2 == 1: store(cc//2, [("uw", 1, 7)] if cc == 1 else [])
        if cc == 4:
            L = ["s_lshl_b32 s6, s63, 3", "s_add_u32 s6, s6, s3", "s_lshl_b32 s6, s6, 11", f"s_add_u32 s6, s6, {WS_PART}"]
            for i, t_ in enumerate(L): fs.append(Op("X", ("gs", i), (lambda t_=t_: S.raw(t_)), after=[("gs", i-1)] if i else []))
            fs.append(Op("X", ("ga", 0), lambda: [S.raw("s_cmp_eq_u32 s3, 7"), S.raw("s_cselect_b64 vcc, -1, 0")], after=["gbar", "u2b", ("gs", 3)], cost=2))
            L = [f"v_lshl_add_u32 v{VGW}, v1, 4, s6", "v_bfe_u32 v0, v1, 3, 1", "v_lshl_add_u32 v0, v0, 2, v7",
                 "v_lshlrev_b32_e64 v0, 3, v0", f"v_add_u32 v0, {WS_KEYS}, v0", f"v_cndmask_b32_e64 v{VGW}, v{VGW}, v0, vcc"]
            for i, t_ in enumerate(L): fs.append(Op("V", ("ga", i+1), t_, after=[("ga", i)]))
            def gat():
                gather_loads(); S.n += 2; vm.append("gat0"); vm.append("gat")
            fs.append(Op("X", "gat", gat, after=[("ga", 6), ms[-1].name], at=M0_ + c["gat"], dl=c["gat"], cost=3))
        if hasP:
            for dl in (2, 3, 4):
                mm(cc, cc+dl, BX, TP12[dl], tn(TP12[dl]), {("cv", cc, 0, p): 2 for p in range(4)})
                mm(cc, cc+dl, BX+8, TP34[dl], tn(TP34[dl]), {("cv", cc, 2, p): 2 for p in range(4)})
        if hasQ:
            for dl in (4, 5, 6, 7):
                mm(cc, cc+dl, BX+16, TQ[dl], tn(TQ[dl]), {("cv", cc, 4, p): 2 for p in range(4)})
    S.run(ms, fs, budget=lambda i: 3 if (i < c["b3"] or i >= c.get("b3l", 999)) else 2, wfree=c.get("wfree", 1))
    if c.get("log"): print("".join(S.log))
    a(f"s_and_b32 s7, s{S_TAG}, 0xff")
    a("s_mov_b32 s10, 0")
    a("s_cmp_eq_u32 s3, 7")
    a(vmwait("gat"))
    a("s_cbranch_scc1 LC_poll4")
    a("LC_poll3:")
    a(f"v_xor_b32 v3, s7, v{GA}")
    for i in range(1, 8):
        a(f"v_bitop3_b32 v3, v{GA+i}, s7, v3 bitop3:0xbe")
    a("v_and_b32 v3, 0xff, v3")
    a("v_cmp_ne_u32 vcc, 0, v3")
    a("s_cbranch_vccnz LC_poll3_retry")
    a("LC_poll3_ok:")
    if STAMP["on"]: a(f"s_mov_b32 s{ST0+22}, s10")
    for i in range(8):
        a(f"v_xor_b32 v{GA+i}, s7, v{GA+i}")
    a(f"v_pk_add_f32 {vr(GA,2)}, {vr(GA,2)}, {vr(GA+4,2)}")
    a(f"v_pk_add_f32 {vr(GA+2,2)}, {vr(GA+2,2)}, {vr(GA+6,2)}")
    a("s_lshl_b32 s6, s3, 8")
    a(f"s_add_u32 m0, s6, {RED2}")
    a(f"v_permlane32_swap_b32 v{GA}, v{GA+2}")
    a(f"v_permlane32_swap_b32 v{GA+1}, v{GA+3}")
    a(f"v_pk_add_f32 {vr(GA,2)}, {vr(GA,2)}, {vr(GA+2,2)}")
    a("s_nop 1")
    a(f"v_permlane16_swap_b32 v{GA}, v{GA+1}")
    a(f"v_add_f32 v{GA}, v{GA}, v{GA+1}")
    a(f"ds_write_addtid_b32 v{GA}")
    a("s_waitcnt lgkmcnt(0)")
    a("s_barrier")
    stamp_dump(a, 0, 13)
    a("s_endpgm")
    a("LC_poll4:")
    a(f"v_cmp_ne_u32 vcc, s{S_TAG}, v{GA+1}")
    a("v_and_b32 v3, 7, v1")
    a("s_cbranch_vccnz LC_poll4_retry")
    a("LC_poll4_ok:")
    a(f"v_not_b32 v64, v{GA}")
    a("v_and_b32 v64, 2047, v64")
    a(f"v_mul_u32_u24 v4, {REG}, v3")
    a("v_lshl_add_u32 v4, v64, 1, v4")
    a(f"ds_read_u16 v66, v4 offset:{YB}")
    a("v_lshlrev_b32 v64, 11, v64")
    a("v_lshl_add_u32 v64, v3, 1, v64")
    a("v_lshlrev_b32 v2, 2, v1")
    a(f"v_add_u32 v2, {RED2}, v2")
    a("s_waitcnt lgkmcnt(0)")
    a("v_lshlrev_b32 v66, 16, v66")
    a("s_barrier")
    for w in range(0, 6, 2):
        a(f"ds_read2st64_b32 {vr(68+w,2)}, v2 offset0:{w} offset1:{w+1}")
    a("ds_read_b32 v67, v2 offset:1536")
    a("s_waitcnt lgkmcnt(2)")
    a("v_pk_add_f32 v[68:69], v[68:69], v[70:71]")
    a("s_waitcnt lgkmcnt(0)")
    a("v_pk_add_f32 v[66:67], v[66:67], v[72:73]")
    a("v_pk_add_f32 v[66:67], v[66:67], v[68:69]")
    a("v_add_f32 v66, v66, v67")
    a("v_cvt_pk_bf16_f32 v66, v66, v66")
    a(f"buffer_store_short v66, v64, {sr(SRD_OUT,4)}, s{S_COL} offen")
    stamp_dump(a, 0, 13)
    a("s_endpgm")
    for k in (3, 4):
        a(f"LC_poll{k}_retry:")
        a("s_add_u32 s10, s10, 1")
        a(f"s_cmp_ge_u32 s10, {SPIN}")
        a(f"s_cbranch_scc1 LC_poll{k}_ok")
        a("s_sleep 2")
        a("s_mov_b64 exec, vcc")
        gather_loads()
        a("s_mov_b64 exec, -1")
        a("s_waitcnt vmcnt(0)")
        a(f"s_branch LC_poll{k}")
    a("LC_poll1_retry:")
    a("s_add_u32 s10, s10, 1")
    a(f"s_cmp_ge_u32 s10, {SPIN}")
    a("s_cbranch_scc1 LC_poll1_ok")
    a(f"v_mov_b32 v{EP+9}, 0")
    a(f"global_load_dwordx2 {vr(TG,2)}, v{EP+9}, {sr(S_DBG,2)} sc1")
    a("s_mov_b64 exec, vcc")
    rec_loads()
    a("s_mov_b64 exec, -1")
    a("s_waitcnt vmcnt(0)")
    a(f"v_readfirstlane_b32 s66, v{TG}")
    a(f"v_readfirstlane_b32 s67, v{TG+1}")
    a("s_xor_b32 s67, s67, 1")
    a("s_branch LC_poll1")

def build():
    a = Asm()
    stamp_init(a)
    a("s_cmp_ge_u32 s2, 256")
    a("s_cbranch_scc1 L_end")
    a("s_load_dwordx16 s[16:31], s[0:1], 0")
    a("s_load_dwordx16 s[32:47], s[0:1], 64")
    a("v_lshrrev_b32 v2, 6, v0")
    a("v_and_b32 v1, 63, v0")
    a("v_readfirstlane_b32 s3, v2")
    if CFG.get("cpre", 1):
        a("s_cmp_lg_u32 s3, 7")
        a("s_cbranch_scc1 L_nocpre")
        a("s_getpc_b64 s[4:5]")
        a("L_pc:")
        a("s_bfe_u32 s6, s2, 0x20003")
        a("s_lshl_b32 s6, s6, 13")
        a("v_lshl_add_u32 v3, v1, 7, s6")
        a("v_min_u32 v3, L_codeend-L_pc-4, v3")
        a("global_load_dword v63, v3, s[4:5]")
        a("L_nocpre:")
    a("s_cmp_ge_u32 s2, 128")
    a("s_cbranch_scc1 L_conv")
    moe(a)
    a("L_conv:")
    conv(a)
    a("L_end:")
    a("s_endpgm")
    a("L_codeend:")
    return header([f"; @launch grid=(256,1,1) block=(512,1,1) lds={LDS_TOTAL}"]) + kstart(KN) + a.text() + RODATA + kdesc(KN, 256)

if __name__ == "__main__":
    import sys
    from lint import lint
    name = "v6"
    for kv in sys.argv[1:]:
        if "=" in kv:
            k, v = kv.split("="); CFG[k] = int(v)
        else: name = kv
    t = build()
    assert not lint(t), lint(t)
    open(f"gen/{name}.s", "w").write(t)
    CFG["log"] = 0
    STAMP["on"] = True
    open(f"gen/{name}_ts.s", "w").write(build())
    STAMP["clk"] = True
    open(f"gen/{name}_clk.s", "w").write(build())
```

```python
class Op:
    def __init__(s, kind, name, emit, after=(), dist=None, needs=(), at=0, cost=1, dl=10**6):
        s.kind, s.name, s.emit = kind, name, emit
        s.after, s.dist, s.needs, s.at, s.cost = list(after), dict(dist or {}), list(needs), at, cost
        s.dl = dl

class Sched:
    def __init__(s, a, lat=5):
        s.a = a; s.Q = []; s.qm = []; s.done = -1; s.pos = {}; s.n = 0; s.m = 0; s.lat = lat; s.log = []
    def raw(s, t, slots=1):
        s.a(t); s.n += slots
    def lds(s, name, t):
        s.raw(t); s.Q.append(name); s.qm.append(s.m); s.pos[name] = s.n
    def idx(s, names):
        return max([-1] + [max(i for i, n in enumerate(s.Q) if n == nm) for nm in names])
    def need_wait(s, names):
        return s.idx(names) > s.done
    def wait(s, names):
        i = s.idx(names)
        if i <= s.done: return
        while i + 1 < len(s.Q) and s.m - s.qm[i+1] >= s.lat: i += 1
        n = len(s.Q) - 1 - i
        if n > 15: n = 15; i = len(s.Q) - 16
        s.done = i
        s.raw(f"s_waitcnt lgkmcnt({n})"); s.log.append("w")
    def emitted(s, nm): return nm in s.pos
    def slack(s, op):
        return max([0] + [d - (s.n - s.pos[nm]) for nm, d in op.dist.items()])
    def put(s, op):
        s.wait(op.needs)
        k = s.slack(op)
        if k > 0: s.raw(f"s_nop {k-1}", k); s.log.append("n" * k)
        if op.kind == "D": s.lds(op.name, op.emit)
        elif op.kind == "X":
            op.emit(); s.pos[op.name] = s.n
        else:
            s.raw(op.emit); s.pos[op.name] = s.n
        if op.kind == "M": s.m += 1
        s.log.append(op.kind)
    def run(s, ms, fs, budget=lambda i: 2, wfree=0, pre=(), npre=2, lead={}):
        fs = list(fs)
        byname = {f.name: f for f in fs}
        for i, mo in enumerate(ms):
            for d in mo.needs:
                if d in byname: byname[d].dl = min(byname[d].dl, i - s.lat - 2 - lead.get(d[0], 0))
            for d in mo.after + list(mo.dist):
                if d in byname: byname[d].dl = min(byname[d].dl, i - 3 - lead.get(d[0], 0))
        for _ in range(60):
            for f in fs:
                for d in f.needs:
                    if d in byname: byname[d].dl = min(byname[d].dl, f.dl - s.lat - 1)
                for d in f.after + list(f.dist):
                    if d in byname: byname[d].dl = min(byname[d].dl, f.dl - 0.5)
        fs.sort(key=lambda f: f.dl)
        def force(nm):
            if s.emitted(nm): return
            f = byname[nm]
            for d in f.after + list(f.dist) + f.needs: force(d)
            s.put(f); fs.remove(f)
        for i, mo in enumerate(ms):
            for d in mo.after + list(mo.dist) + mo.needs: force(d)
            s.put(mo)
            for _ in range(npre):
                nxp = [p for p in pre if not s.emitted(p)]
                if nxp: force(nxp[0])
            b = budget(i)
            nx = ms[i+1] if i + 1 < len(ms) else None
            hadV = False
            while True:
                res = (1 - wfree) if (nx and all(s.emitted(x) for x in nx.needs) and s.need_wait(nx.needs)) else 0
                pick = None
                for f in fs:
                    if f.at > s.m or f.name in pre: continue
                    if not all(s.emitted(d) for d in f.after + list(f.dist) + f.needs): continue
                    if s.slack(f) > 0: continue
                    if f.needs and s.need_wait(f.needs) and s.m - s.qm[s.idx(f.needs)] < s.lat: continue
                    c = f.cost + ((1 - wfree) if s.need_wait(f.needs) else 0)
                    if f.kind in "DX" and hadV: continue
                    if c > b - res and not (c > 2 - res and b == budget(i)): continue
                    pick = (f, c); break
                if not pick: break
                f, c = pick
                s.put(f); fs.remove(f); b -= c
                hadV |= f.kind == "V"
                if b <= 0: break
        while fs:
            rdy = [f for f in fs if all(s.emitted(d) for d in f.after + list(f.dist) + f.needs) and s.slack(f) == 0]
            force((rdy or fs)[0].name)
```

```python
from blocks import *
from sched import *

WS_E    = 0xF000
WS_KEYS = 0x20000
SPIN = 40000
SRD_WD = 56

CFG = dict(n0=2, n1=4, n2=10, n3=14, nd1=4, dpre=1, sprefetch=1, wpre=4, wpat=3, u1at=22, gb=2, wfree=0, blead=14,
           xrec=36, xgb=50, xdp=54, xb0=84, xuw=0, xgat=196,
           yrec=10, yb2=0, xT=0, xu1=0, tat=2, ydp=20, yb0=0, yuw=0, ygat=196, yprio=1)

DPP_FULL = "row_mask:0xf bank_mask:0xf"

L_REC, L_SEL, L_TAU, L_CNT = 0, 128, 160, 164
L_HB, L_ZERO, L_MB, L_RG, L_RED, L_D = 256, 1536, 2048, 8192, 16384, 49152

def moe(a):
    c = CFG
    R, O, DO, B, ACC = 64, 128, 192, 224, 240
    X, WR, GW = O, O + 16, O + 24
    PL, KEY, IDX, SC = 16, 24, 28, 32
    VW = 6
    S_TAG, S_TB, S_G, S_S = 60, 61, 62, 63
    a("s_and_b32 s4, s2, 7")
    a("s_lshr_b32 s5, s2, 3")
    a(f"s_mul_i32 s{S_G}, s4, 7")
    a("s_lshr_b32 s6, s5, 1")
    a(f"s_add_u32 s{S_G}, s{S_G}, s6")
    a(f"s_and_b32 s{S_S}, s5, 1")
    a("v_lshlrev_b32 v3, 4, v1")
    a("s_lshl_b32 s6, s2, 3")
    a("s_add_u32 s6, s6, s3")
    a("s_lshl_b32 s6, s6, 12")
    a("v_add_u32 v4, s6, v3")
    a(f"s_lshl_b32 s6, s{S_S}, 3")
    a("s_add_u32 s6, s6, s3")
    a("s_lshl_b32 s6, s6, 6")
    a("v_lshrrev_b32 v8, 4, v1")
    a("v_and_b32 v9, 7, v1")
    a("v_lshl_add_u32 v10, v8, 3, s6")
    a("v_mul_u32_u24 v12, 7168, v10")
    a(f"s_lshl_b32 s7, s{S_G}, 7")
    a("v_lshl_add_u32 v13, v9, 4, s7")
    a("v_add_u32 v12, v12, v13")
    a("v_mov_b32 v13, 0")
    a("v_and_b32 v2, 8, v1")
    a("v_cmp_eq_u32 s[12:13], 0, v2")
    a("s_waitcnt lgkmcnt(0)")
    a(f"s_load_dword s{S_TAG}, {sr(S_WS,2)}, {WS_E}")
    a("s_bitcmp1_b32 s3, 2")
    a(f"s_cselect_b64 s[14:15], {sr(S_GW,2)}, {sr(S_WR,2)}")
    a("s_and_b32 s6, s3, 3")
    a("s_lshl_b32 s6, s6, 9")
    a("v_add_u32 v2, s6, v3")
    a("s_lshl_b32 s6, s3, 9")
    a(f"s_add_u32 m0, s6, {L_RED}")
    a("s_mov_b32 exec_hi, 0")
    a("global_load_lds_dwordx4 v2, s[14:15]")
    a("s_mov_b32 exec_hi, -1")
    for i in range(4):
        a(f"global_load_dwordx4 {vr(X+4*i,4)}, v4, {sr(S_X,2)} offset:{i*1024}")
    a(f"v_mov_b32 v{VW}, s{S_WU}")
    a(f"v_mov_b32 v{VW+1}, s{S_WU+1}")
    a(f"v_mov_b32 v14, s{S_WG}")
    a(f"v_mov_b32 v15, s{S_WG+1}")
    a(f"v_cndmask_b32 v{VW}, v{VW}, v14, s[12:13]")
    a(f"v_cndmask_b32 v{VW+1}, v{VW+1}, v15, s[12:13]")
    a(f"v_lshl_add_u64 {vr(VW,2)}, {vr(VW,2)}, 0, v[12:13]")
    a("s_lshl_b32 s6, s3, 4")
    a("v_mov_b32 v44, s6")
    a("v_lshlrev_b32 v45, 3, v1")
    a("s_mov_b32 s8, 7168")
    a("s_mov_b32 s9, 0")
    a(f"s_mov_b32 s10, {25*7168}")
    a("s_mov_b32 s11, 0")
    def wloads(lo, hi):
        for n in range(lo, hi):
            a(f"global_load_dwordx4 {vr(R+4*n,4)}, {vr(VW,2)}, off nt")
            if n == 7:    a(f"v_lshl_add_u64 {vr(VW,2)}, s[10:11], 0, {vr(VW,2)}")
            elif n < 15:  a(f"v_lshl_add_u64 {vr(VW,2)}, s[8:9], 0, {vr(VW,2)}")
    a("s_cmp_ge_u32 s5, 14")
    a("s_cbranch_scc1 LM_spare0")
    a("s_barrier")
    wloads(0, c["n0"])
    stamp(a, 1)
    for r in range(4): a(f"v_mov_b32 v{40+r}, 0")
    def wfetch(nafter):
        a(f"s_waitcnt vmcnt({nafter+4})")
        a("s_barrier")
        for i in range(4):
            a(f"ds_read_b128 {vr(WR+4*i,4)}, v3 offset:{L_RED+1024*i}")
        a(f"s_waitcnt vmcnt({nafter}) lgkmcnt(0)")
    wfetch(c["n0"])
    wloads(c["n0"], c["n1"])
    a("s_branch LM_rows")
    a("LM_spare0:")
    a("s_cmp_lg_u32 s2, 112")
    a("s_cbranch_scc1 LM_spare1")
    a("s_cmp_lg_u32 s3, 1")
    a("s_cbranch_scc1 LM_spare1")
    a("s_waitcnt lgkmcnt(0)")
    a(f"s_add_u32 s6, s{S_TAG}, 0x01010101")
    a("v_mov_b32 v46, s6")
    a("v_mov_b32 v47, 1")
    a("v_mov_b32 v2, 0")
    a("s_mov_b64 exec, 1")
    a(f"global_store_dwordx2 v2, v[46:47], {sr(S_DBG,2)} sc1")
    a("s_mov_b64 exec, -1")
    a("LM_spare1:")
    for r in range(4): a(f"v_mov_b32 v{40+r}, 0")
    if c["sprefetch"]:
        a(f"s_lshr_b32 s6, s{S_WG}, 7")
        a("s_mul_i32 s7, s4, 7")
        a("s_add_u32 s6, s6, s7")
        a("s_sub_u32 s6, 3, s6")
        a("s_and_b32 s6, s6, 7")
        a("s_cmp_eq_u32 s6, 7")
        a("s_cselect_b32 s6, 0, s6")
        a("s_add_u32 s6, s6, s7")
        a("s_lshl_b32 s6, s6, 7")
        nlo = c.get("snlo", 4)
        a("v_and_b32 v2, 3, v1")
        a(f"v_add_u32 v2, {nlo}, v2")
        a("v_and_b32 v12, 8, v2")
        a("v_mul_u32_u24 v12, 3, v12")
        a("v_add3_u32 v2, v2, v12, v10")
        a("v_mul_u32_u24 v2, 7168, v2")
        a("v_add_u32 v2, s6, v2")
        a("s_barrier")
        a("s_mov_b32 exec_lo, 0x000f000f")
        a("s_mov_b32 exec_hi, 0x000f000f")
        a(f"global_load_dword v60, v2, {sr(S_WG,2)}")
        a(f"global_load_dword v61, v2, {sr(S_WU,2)}")
        a("s_mov_b64 exec, -1")
        wfetch(2)
    else:
        wfetch(0)
    a("LM_rows:")
    stamp(a, 2)
    for i in range(8):
        a(f"v_dot2_f32_bf16 v40, v{X+i}, v{WR+i}, v40")
        a(f"v_dot2_f32_bf16 v41, v{X+i}, v{GW+i}, v41")
        a(f"v_dot2_f32_bf16 v42, v{X+8+i}, v{WR+i}, v42")
        a(f"v_dot2_f32_bf16 v43, v{X+8+i}, v{GW+i}, v43")
    a("s_waitcnt lgkmcnt(0)")
    a(f"s_add_u32 s{S_TAG}, s{S_TAG}, 0x01010101")
    a(f"s_and_b32 s{S_TB}, s{S_TAG}, 0xff")
    for st in (f"row_shr:1 {DPP_FULL} bound_ctrl:0", f"row_shr:2 {DPP_FULL} bound_ctrl:0",
               f"row_shr:4 {DPP_FULL} bound_ctrl:0", f"row_shr:8 {DPP_FULL} bound_ctrl:0",
               "row_bcast:15 row_mask:0xa bank_mask:0xf", "row_bcast:31 row_mask:0xc bank_mask:0xf"):
        for r in range(4):
            a(f"v_add_f32_dpp v{40+r}, v{40+r}, v{40+r} {st}")
    a("s_mov_b32 exec_lo, 0")
    a("s_mov_b32 exec_hi, 0x80000000")
    a(f"ds_write_b128 v44, v[40:43] offset:{L_REC}")
    a("s_mov_b64 exec, -1")
    a("s_waitcnt lgkmcnt(0)")
    a("s_barrier")
    a("s_cmp_lg_u32 s3, 0")
    a("s_cbranch_scc1 LM_nopub")
    a(f"ds_read_b64 v[46:47], v45 offset:{L_REC}")
    a("s_lshl_b32 s6, s2, 7")
    a(f"s_add_u32 s6, s6, {WS_RG}")
    a("v_add_u32 v2, s6, v45")
    a(f"v_mov_b32 v49, s{S_TAG}")
    a("s_mov_b32 s6, 0x07060100")
    a("s_mov_b64 exec, 0xffff")
    a("s_waitcnt lgkmcnt(0)")
    a("v_cvt_pk_bf16_f32 v46, v47, v46")
    a("v_lshlrev_b32 v47, 16, v46")
    a("v_mul_f32 v47, 0xbfb8aa3b, v47")
    a("v_exp_f32 v47, v47")
    a("v_ashrrev_i32 v50, 31, v46")
    a("v_add_f32 v47, 1.0, v47")
    a("v_rcp_f32 v47, v47")
    a("v_or_b32 v50, 0x80000000, v50")
    a("v_cvt_pk_bf16_f32 v47, v47, v47")
    a("v_xor_b32 v46, v46, v50")
    a("v_perm_b32 v48, v46, v47, s6")
    a(f"global_store_dwordx2 v2, v[48:49], {sr(S_WS,2)} sc1")
    a("s_mov_b64 exec, -1")
    a("LM_nopub:")
    stamp(a, 3)
    a("s_cmp_ge_u32 s5, 14")
    a("s_cbranch_scc1 LM_spare")
    a("s_barrier")
    wloads(c["n1"], c["n1"] + 2)
    VDA, VTR, VRD, VPO, VPP, VH, VA, VPT, VSL = 42, 44, 48, 49, 50, 51, 52, 11, 62
    a.srd(SRD_X, S_X, 4194304)
    a.srd(SRD_WD, S_WD, 7340032)
    a("s_lshl_b32 s6, s3, 8")
    a("s_sub_u32 s6, 2047, s6")
    a("v_lshlrev_b32 v2, 1, v1")
    a(f"v_sub_u32 v{IDX}, s6, v2")
    a(f"v_subrev_u32 v{IDX+1}, 1, v{IDX}")
    a(f"v_subrev_u32 v{IDX+2}, 0x80, v{IDX}")
    a(f"v_subrev_u32 v{IDX+3}, 0x81, v{IDX}")
    a("v_mov_b32 v12, 0")
    a("v_lshlrev_b32 v13, 2, v1")
    a(f"ds_write_b32 v13, v12 offset:{L_ZERO}")
    a(f"ds_write_b32 v12, v12 offset:{L_CNT}")
    a("s_lshl_b32 s6, s3, 9")
    a("v_lshl_add_u32 v14, v1, 3, s6")
    a("s_lshl_b32 s6, s3, 10")
    a(f"s_add_u32 s6, s6, {L_RG}")
    a("v_lshl_add_u32 v15, v1, 3, s6")
    a("s_mov_b32 s64, 0x05040100")
    a("s_mov_b32 s65, 0x07060302")
    a("s_mov_b32 s66, 0xffff0000")
    a(f"v_lshlrev_b32 v{VSL}, 2, v9")
    a("v_lshrrev_b32 v56, 5, v1")
    a("v_bfe_u32 v57, v1, 4, 1")
    a("v_bfe_u32 v58, v1, 3, 1")
    a("v_lshlrev_b32 v2, 2, v56")
    a("v_xor_b32 v2, v2, v9")
    a("v_lshrrev_b32 v59, 3, v1")
    a("v_lshlrev_b32 v59, 11, v59")
    a(f"v_lshl_add_u32 v{VDA}, v2, 4, v59")
    a(f"v_xor_b32 v{VDA+1}, 32, v{VDA}")
    a(f"s_lshl_b32 s70, s{S_G}, 17")
    a(f"s_lshl_b32 s7, s{S_S}, 10")
    a("s_add_u32 s70, s70, s7")
    a("s_lshl_b32 s7, s3, 7")
    a("s_add_u32 s70, s70, s7")
    a("s_lshl_b32 s71, s3, 13")
    a(f"s_add_u32 s71, s71, {L_D}")
    a("v_bfe_u32 v59, v1, 2, 1")
    a("v_lshlrev_b32 v2, 11, v56")
    a("v_lshl_add_u32 v2, v57, 9, v2")
    a("v_lshl_add_u32 v2, v58, 7, v2")
    a("v_lshl_add_u32 v2, v59, 10, v2")
    a("v_lshl_add_u32 v2, v59, 5, v2")
    a("v_lshl_add_u32 v2, v57, 6, v2")
    a("v_and_b32 v59, 3, v1")
    a("v_lshl_add_u32 v2, v59, 3, v2")
    a(f"v_add_u32 v{VTR}, s71, v2")
    for t_ in range(1, 4):
        a(f"v_xor_b32 v{VTR+t_}, {32*t_}, v{VTR}")
    a("s_and_b32 s6, s3, 3")
    a("s_lshr_b32 s7, s3, 2")
    a("s_lshl_b32 s15, s6, 1")
    a("s_add_u32 s15, s15, s7")
    a("s_lshl_b32 s15, s15, 9")
    a(f"s_add_u32 s15, s15, {L_RED}")
    a(f"v_add_u32 v{VRD}, s15, v13")
    a("s_lshl_b32 s7, s7, 3")
    a("s_add_u32 s6, s6, s7")
    a("s_lshl_b32 s6, s6, 2")
    a("v_mul_u32_u24 v2, 144, v9")
    a(f"v_lshl_add_u32 v{VH}, v57, 6, v2")
    a(f"v_lshl_add_u32 v{VH}, v58, 4, v{VH}")
    a(f"v_lshl_add_u32 v{VH}, v56, 1, v{VH}")
    a(f"v_add_u32 v{VH}, s6, v{VH}")
    a("v_lshl_add_u32 v2, v8, 4, v2")
    a(f"v_mov_b32 v59, {L_ZERO-L_HB}")
    a(f"v_cndmask_b32 v{VA}, v59, v2, s[12:13]")
    a(f"v_cndmask_b32 v{VA+1}, v2, v59, s[12:13]")
    a(f"s_lshl_b32 s6, s{S_G}, 1")
    a(f"s_add_u32 s6, s6, s{S_S}")
    a("s_lshl_b32 s6, s6, 12")
    a(f"s_add_u32 s6, s6, {WS_PRE}")
    a(f"v_add_u32 v{VPO}, s6, v14")
    a(f"v_xor_b32 v{VPP}, 4096, v{VPO}")
    a(f"s_lshl_b32 s6, s{S_S}, 3")
    a("s_add_u32 s6, s6, s3")
    a("s_lshl_b32 s6, s6, 17")
    a(f"s_lshl_b32 s7, s{S_G}, 8")
    a("s_add_u32 s6, s6, s7")
    a(f"s_add_u32 s6, s6, {WS_PART}")
    a(f"v_lshl_add_u32 v{VPT}, v56, 15, s6")
    a(f"v_lshl_add_u32 v{VPT}, v58, 14, v{VPT}")
    a(f"v_lshl_add_u32 v{VPT}, v57, 7, v{VPT}")
    a(f"v_lshl_add_u32 v{VPT}, v9, 4, v{VPT}")
    a(f"v_add_u32 v4, 0x10000, v{VPT}")
    a(f"v_mov_b32 v13, s{S_TB}")
    a("v_mov_b32 v60, 0x7ffffff0")
    a("s_mov_b32 s14, 0")
    wloads(c["n1"] + 2, c["n2"])
    a("s_lshl_b32 s6, s3, 11")
    a(f"s_add_u32 s6, s6, {WS_RG}")
    a("v_add_u32 v5, s6, v3")
    a("s_barrier")
    for q in range(2):
        a(f"global_load_dwordx4 {vr(PL+4*q,4)}, v5, {sr(S_WS,2)} offset:{1024*q} sc1")
    a("s_barrier")
    n2 = c["n2"]
    assert n2 >= 8 and n2 % 2 == 0
    n3 = c["n3"]
    wloads(n2, n3)
    def perms(kap, ps=(0, 1, 2, 3)):
        for e in range(8):
            for p in ps:
                a(f"v_perm_b32 v{O+32*kap+4*e+p}, v{R+32*kap+4*(2*p+1)+e//2}, v{R+32*kap+4*(2*p)+e//2}, s{64+e%2}")
    pe = list(range((n2-8)//2)); pl = list(range((n2-8)//2, 4))
    a("s_lshl_b32 s11, s3, 12")
    a(f"s_add_u32 s11, s11, {L_RED}")
    a("s_mov_b32 s10, 0xffffff00")
    stamp(a, 4)
    a(f"s_waitcnt vmcnt({n3-n2})")
    a("LM_poll1:")
    a(f"v_xor_b32 v2, s{S_TAG}, v{PL+1}")
    for i in (3, 5, 7):
        a(f"v_bitop3_b32 v2, v{PL+i}, s{S_TAG}, v2 bitop3:0xbe")
    a("v_cmp_ne_u32 vcc, 0, v2")
    a("s_cbranch_vccz LM_poll1_ok")
    a("s_add_u32 s14, s14, 1")
    a(f"s_cmp_ge_u32 s14, {SPIN}")
    a("s_cbranch_scc1 LM_poll1_ok")
    a("s_mov_b64 exec, vcc")
    for q in range(2):
        a(f"global_load_dwordx4 {vr(PL+4*q,4)}, v5, {sr(S_WS,2)} offset:{1024*q} sc1")
    a("s_mov_b64 exec, -1")
    a("s_waitcnt vmcnt(0)")
    a("s_branch LM_poll1")
    a("LM_poll1_ok:")
    if STAMP["on"]: a(f"s_mov_b32 s{ST0+24}, s14")
    stamp(a, 5)
    for i in range(4):
        a(f"v_and_or_b32 v{KEY+i}, v{PL+2*i}, s66, v{IDX+i}")
    a(f"v_max_u32 v36, v{KEY}, v{KEY+1}")
    a(f"v_min_u32 v37, v{KEY}, v{KEY+1}")
    a(f"v_med3_u32 v38, v36, v{KEY+2}, v{KEY+3}")
    a(f"v_max3_u32 v36, v36, v{KEY+2}, v{KEY+3}")
    a("v_max_u32 v37, v37, v38")
    a(f"ds_write_b64 v14, v[36:37] offset:{L_MB}")
    a(f"ds_write2_b32 v15, v{PL}, v{PL+2} offset0:0 offset1:1")
    a(f"ds_write2_b32 v15, v{PL+4}, v{PL+6} offset0:128 offset1:129")
    a("s_waitcnt lgkmcnt(2)")
    a("s_barrier")
    a("s_cmp_lg_u32 s3, 0")
    a("s_cbranch_scc1 LM_notopk")
    a("v_lshlrev_b32 v2, 3, v1")
    P = ACC
    for i in range(4):
        a(f"ds_read2st64_b64 {vr(P+4*i,4)}, v2 offset0:{L_MB//512+2*i} offset1:{L_MB//512+2*i+1}")
    a("s_waitcnt lgkmcnt(3)")
    a(f"v_max_u32 v36, v{P}, v{P+2}")
    a(f"v_min_u32 v37, v{P}, v{P+2}")
    a(f"v_max3_u32 v37, v37, v{P+1}, v{P+3}")
    for i in range(1, 4):
        a(f"s_waitcnt lgkmcnt({3-i})")
        a(f"v_med3_u32 v38, v36, v{P+4*i}, v{P+4*i+2}")
        a(f"v_max3_u32 v36, v36, v{P+4*i}, v{P+4*i+2}")
        a(f"v_max3_u32 v39, v38, v{P+4*i+1}, v{P+4*i+3}")
        a("v_max_u32 v37, v37, v39")
    a(f"v_max_u32_dpp v38, v36, v36 quad_perm:[1,0,3,2] {DPP_FULL}")
    a("s_nop 1")
    a(f"v_max_u32_dpp v38, v38, v38 quad_perm:[2,3,0,1] {DPP_FULL}")
    a("s_nop 1")
    a(f"v_max_u32_dpp v38, v38, v38 row_half_mirror {DPP_FULL}")
    a("s_nop 1")
    a(f"v_min_u32_dpp v39, v38, v38 row_mirror {DPP_FULL}")
    a(f"v_max_u32_dpp v38, v38, v38 row_mirror {DPP_FULL}")
    a("s_nop 0")
    a("v_min_u32_dpp v39, v39, v39 row_bcast:15 row_mask:0xa bank_mask:0xf")
    a("v_max_u32_dpp v38, v38, v38 row_bcast:15 row_mask:0xa bank_mask:0xf")
    a("s_nop 0")
    a("v_min_u32_dpp v39, v39, v39 row_bcast:31 row_mask:0xc bank_mask:0xf")
    a("v_max_u32_dpp v38, v38, v38 row_bcast:31 row_mask:0xc bank_mask:0xf")
    a("v_readlane_b32 s6, v39, 63")
    a("v_readlane_b32 s7, v38, 63")
    a("s_sub_u32 s14, s7, s6")
    a("s_lshr_b32 s14, s14, 2")
    a("LM_bis:")
    a("s_add_u32 s14, s14, s6")
    a("v_cmp_le_u32 s[68:69], s14, v36")
    a("v_cmp_le_u32 vcc, s14, v37")
    a("s_bcnt1_i32_b64 s15, s[68:69]")
    a("s_bcnt1_i32_b64 s67, vcc")
    a("s_add_u32 s67, s67, s15")
    a("s_cmp_eq_u32 s67, 8")
    a("s_cbranch_scc1 LM_bis_done")
    a("s_cmp_gt_u32 s67, 8")
    a("s_cselect_b32 s6, s14, s6")
    a("s_cselect_b32 s7, s7, s14")
    a("s_sub_u32 s14, s7, s6")
    a("s_lshr_b32 s14, s14, 1")
    a("s_cbranch_scc1 LM_bis")
    a("s_mov_b32 s14, s6")
    a("v_cmp_le_u32 s[68:69], s14, v36")
    a("v_cmp_le_u32 vcc, s14, v37")
    a("s_bcnt1_i32_b64 s15, s[68:69]")
    a("LM_bis_done:")
    a("v_mbcnt_lo_u32_b32 v38, s68, 0")
    a("v_mov_b32 v39, s15")
    a("v_mbcnt_hi_u32_b32 v38, s69, v38")
    a("v_mbcnt_lo_u32_b32 v39, vcc_lo, v39")
    a("v_lshlrev_b32 v38, 2, v38")
    a("v_mbcnt_hi_u32_b32 v39, vcc_hi, v39")
    a("v_mov_b32 v40, s14")
    a("v_and_b32 v38, 28, v38")
    a("v_lshlrev_b32 v39, 2, v39")
    a(f"ds_write_b32 v12, v40 offset:{L_TAU}")
    a("v_and_b32 v39, 28, v39")
    a("s_mov_b64 exec, s[68:69]")
    a(f"ds_write_b32 v38, v36 offset:{L_SEL}")
    a("s_mov_b64 exec, vcc")
    a(f"ds_write_b32 v39, v37 offset:{L_SEL}")
    a("s_mov_b64 exec, -1")
    a("s_branch LM_topk_done")
    a("LM_notopk:")
    perms(0); perms(1, pe)
    a("LM_topk_done:")
    a("s_waitcnt lgkmcnt(0)")
    a("s_barrier")
    stamp(a, 6)
    def xsel():
        a(f"ds_read_b32 v36, v{VSL} offset:{L_SEL}")
        a(f"ds_read_b32 v37, v12 offset:{L_TAU}")
        a("s_waitcnt lgkmcnt(1)")
        a("v_not_b32 v38, v36")
        a("v_and_b32 v39, 2047, v38")
        a("v_lshlrev_b32 v38, 11, v39")
        a("v_lshl_add_u32 v38, v10, 1, v38")
        a("v_cndmask_b32 v40, v60, v38, s[12:13]")
        a("v_cndmask_b32 v41, v38, v60, s[12:13]")
        a(f"buffer_load_dwordx4 {vr(B,4)}, v40, {sr(SRD_X,4)}, 0 offen")
        a(f"buffer_load_dwordx4 {vr(B+12,4)}, v41, {sr(SRD_X,4)}, 0 offen offset:64")
    xsel()
    dnt = "" if c["dpre"] else " nt"
    def dloads(lo, hi_):
        for i in range(lo, hi_):
            a(f"s_add_u32 m0, s71, {1024*i}")
            a(f"s_add_u32 s7, s70, {8*i*2048}")
            a(f"buffer_load_dwordx4 v{VDA+i%2}, {sr(SRD_WD,4)}, s7 offen{dnt} lds")
    nd1 = c["nd1"]
    a("s_waitcnt lgkmcnt(0)")
    a("s_mov_b32 s6, 0")
    for i in range(4):
        a(f"v_cmp_le_u32 vcc, v37, v{KEY+i}")
        a("s_bcnt1_i32_b64 s7, vcc")
        a("s_add_u32 s6, s6, s7")
    a("v_mov_b32 v2, s6")
    a("s_mov_b64 exec, 1")
    a(f"ds_add_u32 v12, v2 offset:{L_CNT}")
    a("s_mov_b64 exec, -1")
    a("s_waitcnt lgkmcnt(0)")
    a("s_barrier")
    a(f"ds_read_b32 v2, v12 offset:{L_CNT}")
    if n3 < 16:
        wloads(n3, 16)
        a("s_barrier")
    dloads(0, nd1)
    a("s_cmp_lg_u32 s3, 0")
    a("s_cbranch_scc1 LM_noperm")
    perms(0); perms(1, pe)
    a("LM_noperm:")
    a("s_waitcnt lgkmcnt(0)")
    a("v_readfirstlane_b32 s6, v2")
    a("s_cmp_eq_u32 s6, 8")
    a("s_cbranch_scc0 LM_slow")
    a("LM_verified:")
    a("v_lshlrev_b32 v39, 2, v39")
    a(f"ds_read_b32 v33, v39 offset:{L_RG}")
    a("s_mov_b32 m0, s11")
    pm = [p for p in pl if 8 + 2*p < n3]
    a(f"s_waitcnt vmcnt({nd1+2+16-n3})")
    perms(1, pm)
    a(f"s_waitcnt vmcnt({nd1})")
    perms(1, [p for p in pl if p not in pm])
    stamp(a, 7)
    seen = set()
    def gm(j, kap, hf):
        a(f"v_mfma_f32_16x16x32_bf16 {vr(ACC+4*j,4)}, {vr(O+32*kap+4*(j+4*hf),4)}, {vr(B+8*kap+4*hf,4)}, {vr(ACC+4*j,4) if j in seen else 0}")
        seen.add(j)
    def rw(j, rs):
        for r in rs: a(f"ds_write_addtid_b32 v{ACC+4*j+r} offset:{1024*j+256*r}")
    for n_, (j, kap, hf) in enumerate(((0,0,0), (0,1,1), (1,0,0), (1,1,1))):
        gm(j, kap, hf)
        for q in (2*(n_%2), 2*(n_%2)+1):
            if n_ < 2: a(f"v_mov_b32_dpp v{B+4+q}, v{B+q} row_shr:8 {DPP_FULL} bound_ctrl:0")
            else:      a(f"v_mov_b32_dpp v{B+8+q}, v{B+12+q} row_shl:8 {DPP_FULL} bound_ctrl:0")
    gm(0,0,1); gm(1,0,1); gm(0,1,0); gm(1,1,0)
    for j in (2, 3):
        gm(j,0,0); gm(j,1,1); gm(j,0,1); gm(j,1,0)
    rw(0, range(4)); rw(1, range(4)); rw(2, range(4)); rw(3, range(4))
    a("s_waitcnt lgkmcnt(0)")
    a("s_barrier")
    for w in range(8):
        a(f"ds_read2st64_b32 {vr(O+2*w,2)}, v{VRD} offset0:{16*w} offset1:{16*w+1}")
    a("s_waitcnt lgkmcnt(4)")
    a(f"v_pk_add_f32 {vr(O,2)}, {vr(O,2)}, {vr(O+2,2)}")
    a(f"v_pk_add_f32 {vr(O+4,2)}, {vr(O+4,2)}, {vr(O+6,2)}")
    a("s_waitcnt lgkmcnt(2)")
    a(f"v_pk_add_f32 {vr(O+8,2)}, {vr(O+8,2)}, {vr(O+10,2)}")
    a(f"v_pk_add_f32 {vr(O,2)}, {vr(O,2)}, {vr(O+4,2)}")
    a("s_waitcnt lgkmcnt(0)")
    a(f"v_pk_add_f32 {vr(O+12,2)}, {vr(O+12,2)}, {vr(O+14,2)}")
    a(f"v_pk_add_f32 {vr(O,2)}, {vr(O,2)}, {vr(O+8,2)}")
    a(f"v_pk_add_f32 {vr(O,2)}, {vr(O,2)}, {vr(O+12,2)}")
    a(f"v_and_or_b32 v{O+2}, v{O}, s10, v13")
    a(f"v_and_or_b32 v{O+3}, v{O+1}, s10, v13")
    a(f"global_store_dwordx2 v{VPO}, {vr(O+2,2)}, {sr(S_WS,2)} sc1")
    stamp(a, 8)
    if c.get("ebar", 1): a("s_barrier")
    a("s_add_u32 s6, s2, s3")
    a("s_cmp_lg_u32 s6, 0")
    a("s_cbranch_scc1 LM_nokeys")
    a(f"v_mov_b32 v37, s{S_TAG}")
    a("v_lshlrev_b32 v38, 3, v1")
    a(f"v_add_u32 v38, {WS_KEYS}, v38")
    a(f"v_mov_b32 v39, {WS_E}")
    a("s_mov_b64 exec, 0xffff")
    a(f"global_store_dwordx2 v38, v[36:37], {sr(S_WS,2)} sc1")
    a("s_mov_b64 exec, 1")
    a(f"global_store_dword v39, v37, {sr(S_WS,2)} sc1")
    a("s_mov_b64 exec, -1")
    a("LM_nokeys:")
    nd2 = c.get("nd2", 8)
    dloads(nd1, nd2)
    a("v_ashrrev_i32 v38, 31, v36")
    a("v_not_b32 v38, v38")
    a("v_or_b32 v38, 0x80000000, v38")
    a("v_xor_b32 v32, v36, v38")
    a("v_and_b32 v32, 0xffff0000, v32")
    a("v_mul_f32 v32, 0xbfb8aa3b, v32")
    a("v_exp_f32 v32, v32")
    a("v_lshlrev_b32 v33, 16, v33")
    a("v_add_f32 v32, 1.0, v32")
    a("v_rcp_f32 v32, v32")
    a("v_sub_f32 v33, 1.0, v33")
    a("v_cvt_pk_bf16_f32 v32, v32, v32")
    a("v_lshlrev_b32 v32, 16, v32")
    a("v_mul_f32 v32, v32, v33")
    a("s_mov_b32 s14, 0")
    a(f"s_waitcnt vmcnt({nd2-nd1})")
    a(f"global_load_dwordx2 v[54:55], v{VPP}, {sr(S_WS,2)} sc1")
    dloads(nd2, 8)
    def dreads(kap):
        for t_ in range(4):
            for pp in range(2):
                a(f"ds_read_b64_tr_b16 {vr(DO+16*kap+4*t_+2*pp,2)}, v{VTR+t_} offset:{4096*kap+256*pp}")
    assert nd1 >= 4
    dreads(0)
    if nd2 == 8:
        a("s_waitcnt vmcnt(1)")
        dreads(1)
    a(f"s_waitcnt vmcnt({8-nd2})")
    a("LM_poll2:")
    a("v_xor_b32 v2, v13, v54")
    a("v_bitop3_b32 v2, v55, v13, v2 bitop3:0xbe")
    a("v_and_b32 v2, 0xff, v2")
    a("v_cmp_ne_u32 vcc, 0, v2")
    a("v_and_b32 v56, s10, v54")
    a("v_and_b32 v57, s10, v55")
    a("s_cbranch_vccnz LM_poll2_retry")
    a("LM_poll2_ok:")
    if STAMP["on"]: a(f"s_mov_b32 s{ST0+22}, s14")
    stamp(a, 9)
    a(f"v_pk_add_f32 v[54:55], v[56:57], {vr(O,2)}")
    a("s_nop 1")
    a("v_permlane32_swap_b32 v54, v55")
    a("v_cvt_pk_bf16_f32 v55, v54, v55")
    a("v_lshlrev_b32 v54, 16, v55")
    a("v_mul_f32 v56, 0xbfb8aa3b, v54")
    a("v_exp_f32 v56, v56")
    a("v_and_b32 v55, 0xffff0000, v55")
    a("v_add_f32 v56, 1.0, v56")
    a("v_rcp_f32 v56, v56")
    a("v_mul_f32 v55, v55, v32")
    a("v_mul_f32 v54, v54, v56")
    a("v_mul_f32 v54, v54, v55")
    a("v_cvt_pk_bf16_f32 v54, v54, v54")
    a(f"ds_write_b16 v{VH}, v54 offset:{L_HB}")
    if nd2 < 8:
        a("s_waitcnt vmcnt(0)")
        dreads(1)
        a("s_waitcnt lgkmcnt(8)")
    else:
        a("s_waitcnt lgkmcnt(0)")
    a("s_barrier")
    for kap in range(2):
        for hf in range(2):
            a(f"ds_read_b128 {vr(B+8*kap+4*hf,4)}, v{VA+hf} offset:{L_HB+64*kap}")
    for n_, (kap, hf) in enumerate(((0,0), (0,1), (1,0), (1,1))):
        a(f"s_waitcnt lgkmcnt({3-n_})")
        for j in range(2):
            a(f"v_mfma_f32_16x16x32_bf16 {vr(ACC+4*j,4)}, {vr(B+8*kap+4*hf,4)}, {vr(DO+16*kap+4*(2*j+hf),4)}, {vr(ACC+4*j,4) if n_ else 0}")
    a("s_nop 6")
    for j in range(2):
        for r in range(4):
            a(f"v_and_or_b32 v{ACC+4*j+r}, v{ACC+4*j+r}, s10, v13")
        a(f"global_store_dwordx4 v{(VPT, 4)[j]}, {vr(ACC+4*j,4)}, {sr(S_WS,2)} sc1")
    stamp(a, 10)
    stamp_dump(a, 0, 13)
    a("s_endpgm")
    a("LM_poll2_retry:")
    a("s_add_u32 s14, s14, 1")
    a(f"s_cmp_ge_u32 s14, {SPIN}")
    a("s_cbranch_scc1 LM_poll2_ok")
    a(f"global_load_dwordx2 v[54:55], v{VPP}, {sr(S_WS,2)} sc1")
    a("s_waitcnt vmcnt(0)")
    a("s_branch LM_poll2")
    a("LM_slow:")
    a("s_waitcnt vmcnt(0)")
    KS = DO
    a("v_lshlrev_b32 v56, 4, v1")
    for i in range(8):
        a(f"ds_read_b128 {vr(KS+4*i,4)}, v56 offset:{L_RG+1024*i}")
    a("v_lshlrev_b32 v57, 2, v1")
    a("v_sub_u32 v57, 2047, v57")
    a("s_waitcnt lgkmcnt(0)")
    for i in range(32):
        a(f"v_subrev_u32 v58, {256*(i//4)+i%4}, v57")
        a(f"v_and_or_b32 v{KS+i}, v{KS+i}, s66, v58")
    a("s_mov_b32 s14, -1")
    a("s_mov_b32 s6, 0")
    a("LM_slow_rnd:")
    for i in range(0, 32, 2):
        a(f"v_sub_u32 v57, s14, v{KS+i}")
        a(f"v_sub_u32 v58, s14, v{KS+i+1}")
        a("v_min_u32 v56, v57, v58" if i == 0 else "v_min3_u32 v56, v57, v58, v56")
    for st in (f"row_shr:1 {DPP_FULL}", f"row_shr:2 {DPP_FULL}", f"row_shr:4 {DPP_FULL}", f"row_shr:8 {DPP_FULL}",
               "row_bcast:15 row_mask:0xa bank_mask:0xf", "row_bcast:31 row_mask:0xc bank_mask:0xf"):
        a("s_nop 1")
        a(f"v_min_u32_dpp v56, v56, v56 {st}")
    a("s_nop 0")
    a("v_readlane_b32 s15, v56, 63")
    a("s_sub_u32 s14, s14, s15")
    a("v_mov_b32 v57, s6")
    a("v_mov_b32 v58, s14")
    a(f"ds_write_b32 v57, v58 offset:{L_SEL}")
    a("s_sub_u32 s14, s14, 1")
    a("s_add_u32 s6, s6, 4")
    a("s_cmp_lt_u32 s6, 32")
    a("s_cbranch_scc1 LM_slow_rnd")
    a("s_waitcnt lgkmcnt(0)")
    xsel()
    a("s_waitcnt vmcnt(0) lgkmcnt(0)")
    a("s_branch LM_verified")
    a("LM_spare:")
    a("s_waitcnt vmcnt(0)")
    stamp_dump(a, 0, 13)
    a("s_endpgm")

ROWB = 528
REG = 19008
YB, KB, UB = 0, 4608, 14320
KE, KO, TB = KB + 32, KB + 1252, KB + 2352
GB = 8 * REG
RED2 = GB + 8192
LDS_TOTAL = RED2 + 2048

def conv(a):
    c = CFG
    SETS = [dict(fill=1, par=2, gend=3, u1=4, bar2=5, tail=6, st0=7, st1=8, st2=9, st3=10),
            dict(karg=1, fill=2, par=3, kbar=4, eend=5, erd=6, gend=7, bar2=8, kmf=9, tail=10),
            dict(bar2=1, tail=2, rec=3, gb0=4, gb1=5, ba0=6, ba1=7, ba2=8, ba3=9, ba4=10)]
    def cst(nm):
        k = SETS[c.get("fine", 0)].get(nm)
        if k: stamp(a, k)
    C3, C5, C7, C9, C2 = 12, 16, 20, 24, 28
    ACC, A, T, BX, BR, EP, SD, U2 = 32, 64, 132, 172, 196, 232, 244, 248
    EOP, GOP, U1 = 64, 132, 232
    PL, TG = EP, SD
    VB, VU, VG, VY, VGW, VT0, VT1 = 2, 3, 4, 5, 6, 8, 9
    VUL, VOP, VK, VTP, VTQ, VOE, VZ, VDS = 48, 49, 50, 51, 52, 53, 54, 55
    VA0, VA1, VT = 60, 61, 62
    S_COL, S_REG, S_TAG = 60, 61, 66
    a("s_and_b32 s4, s2, 7")
    a("s_bfe_u32 s5, s2, 0x40003")
    a("s_lshl_b32 s6, s4, 4")
    a("s_add_u32 s63, s6, s5")
    a(f"s_lshl_b32 s{S_COL}, s63, 4")
    a("s_lshl_b32 s6, s63, 3")
    a("s_add_u32 s6, s6, s3")
    a("s_lshl_b32 s7, s6, 8")
    a("v_lshl_add_u32 v3, v1, 2, s7")
    a("s_lshl_b32 s7, s6, 1")
    a("s_and_b32 s7, s7, 0x7fc")
    a("s_and_b32 s11, s3, 1")
    a("s_lshl_b32 s11, s11, 4")
    a(f"v_lshlrev_b32 v{VUL}, 12, v0")
    a(f"v_sub_u32 v{VUL}, {1022*2048}, v{VUL}")
    a("v_lshlrev_b32 v11, 11, v0")
    a(f"s_mul_i32 s{S_REG}, s3, {REG}")
    a(f"s_mov_b32 m0, s{S_REG}")
    a("s_and_b32 s6, s5, 7")
    a("s_lshl_b32 s6, s6, 3")
    a("s_add_u32 s6, s6, s3")
    a("s_lshl_b32 s6, s6, 16")
    a(f"s_add_u32 s6, s6, s{S_COL}")
    a("v_lshlrev_b32 v2, 11, v1")
    a(f"s_add_u32 s8, s{S_COL}, {1 << 21}")
    a("s_waitcnt lgkmcnt(0)")
    cst("karg")
    a(f"s_load_dword s66, {sr(S_LDT,2)}, s7")
    a(f"s_load_dword s67, {sr(S_DSK,2)}, s7")
    PR = 196
    for i, s_ in enumerate((S_LA, S_AI, S_CR, S_CI)):
        a(f"global_load_dword v{PR+i}, v3, {sr(s_,2)}")
    a.srd(SRD_X, S_X, 4194304)
    a("s_barrier")
    a("s_mov_b32 exec_hi, 0")
    a(f"buffer_load_dword v10, v2, {sr(SRD_X,4)}, s6 offen")
    a("s_mov_b64 exec, -1")
    a("s_barrier")
    def utext(H, e, va=VUL):
        return f"buffer_load_dwordx4 {vr((U1, U2)[H]+4*e,4)}, v{va}, {sr(SRD_X,4)}, s{(S_COL, 8)[H]} offen offset:{e*2048}"
    def uload(H, e): a(utext(H, e))
    uload(0, 0)
    a.srd(SRD_OUT, S_OUT, 4194304)
    t0_, t1_, t2_, ta = 56, 57, 58, 59
    a(f"v_and_b32 v{ta}, 15, v1")
    a("v_lshrrev_b32 v7, 4, v1")
    a(f"v_lshl_add_u32 v{t0_}, v7, 3, v{ta}")
    a(f"v_min_u32 v{t0_}, 31, v{t0_}")
    a("s_lshl_b32 s9, s3, 2")
    a("s_lshr_b32 s6, 0x23452, s9")
    a("s_lshr_b32 s7, 0x29753, s9")
    a("s_and_b32 s6, s6, 15")
    a("s_and_b32 s7, s7, 15")
    a("s_add_u32 s6, s6, 16")
    a("s_bfm_b32 s6, s7, s6")
    a("s_cmp_eq_u32 s3, 4")
    a("s_movk_i32 s7, 0x3f80")
    a("s_cselect_b32 s7, 0xffff, s7")
    a(f"v_bfe_u32 v{t1_}, s6, v{t0_}, 8")
    a(f"v_lshl_or_b32 v{t1_}, v{t1_}, 15, v{t1_}")
    for p in range(4):
        if p: a(f"v_lshrrev_b32 v{C3+p}, {2*p}, v{t1_}")
        a(f"v_and_b32 v{C3+p}, 0x10001, v{C3+p if p else t1_}")
        a(f"v_mul_u32_u24 v{C3+p}, s7, v{C3+p}")
    a(f"s_mov_b32 s6, {GB}")
    a(f"v_lshl_add_u32 v{VG}, v1, 4, s6")
    a("s_lshl_b32 s6, s3, 10")
    a(f"v_add_u32 v{t1_}, s6, v{VG}")
    a(f"ds_write_b128 v{t1_}, {vr(C3,4)}")
    a(f"v_and_b32 v{t0_}, 31, v1")
    a(f"v_lshrrev_b32 v{t1_}, 5, v1")
    a(f"v_mul_u32_u24 v{VOP}, {ROWB}, v{t0_}")
    a(f"v_lshl_add_u32 v{t2_}, v{t1_}, 4, s{S_REG}")
    a(f"v_add_u32 v{VOP}, v{VOP}, v{t2_}")
    a(f"v_subrev_u32 v{VOE}, {ROWB}, v{VOP}")
    a(f"v_cmp_eq_u32 vcc, 0, v{t0_}")
    a(f"v_and_b32 v{t2_}, 0xff, v{VOE}")
    a(f"v_add_u32 v{t2_}, {RED2}, v{t2_}")
    a(f"v_cndmask_b32 v{VOE}, v{VOE}, v{t2_}, vcc")
    a(f"v_mov_b32 v{VZ}, 0")
    a("s_mov_b32 s14, 0xaaaaaaaa")
    a("s_mov_b32 s15, 0xaaaaaaaa")
    late = f"""
    v_lshlrev_b32 v{t2_}, 5, v{ta}
    s_add_u32 s6, s{S_REG}, {UB+480}
    v_sub_u32 v{VU}, s6, v{t2_}
    v_lshl_add_u32 v{VB}, v7, 4, v{VU}
    v_lshlrev_b32 v{VY}, 3, v7
    v_sub_u32 v{VU}, v{VU}, v{VY}
    v_mul_u32_u24 v{VY}, 144, v7
    v_lshl_add_u32 v{t2_}, v{ta}, 3, s{S_REG}
    v_add_u32 v{VY}, v{VY}, v{t2_}
    v_lshl_add_u32 v{VK}, v{t0_}, 4, s{S_REG}
    v_lshl_add_u32 v{VK}, v{t1_}, 3, v{VK}
    v_lshl_add_u32 v{VTQ}, v{t0_}, 1, s{S_REG}
    v_lshl_add_u32 v{VTQ}, v{t1_}, 7, v{VTQ}
    v_lshrrev_b32 v{t0_}, 1, v{t0_}
    v_lshl_add_u32 v{VTP}, v{t0_}, 2, s{S_REG}
    v_lshl_add_u32 v{VTP}, v{t1_}, 6, v{VTP}
    v_add_u32 v{t0_}, 192, v{VTP}
    v_cndmask_b32 v{VTP}, v{VTP}, v{t0_}, s[14:15]
    v_and_b32 v{t0_}, 14, v1
    v_lshlrev_b32 v{t0_}, 1, v{t0_}
    v_lshl_add_u32 v{t0_}, v7, 4, v{t0_}
    v_mov_b32 v{t1_}, {KO-28}
    v_mov_b32 v{t2_}, {KE-28}
    v_cndmask_b32 v{t1_}, v{t1_}, v{t2_}, s[14:15]
    v_add3_u32 v{VA0}, v{t0_}, v{t1_}, s{S_REG}
    v_add_u32 v{VA1}, 1024, v{VA0}
    v_lshlrev_b32 v{t0_}, 4, v7
    s_add_u32 s6, s{S_REG}, {TB}
    v_lshl_add_u32 v{VT}, v{ta}, 2, s6
    v_sub_u32 v{VT}, v{VT}, v{t0_}
    s_lshl_b32 s6, s3, 11
    s_add_u32 s6, s6, {WS_RG}
    v_lshl_add_u32 v{TG+3}, v1, 4, s6
    v_bfe_u32 v{t0_}, v1, 2, 2
    v_mul_u32_u24 v{VT0}, {REG}, v{t0_}
    v_and_b32 v{t0_}, 3, v1
    v_mul_u32_u24 v{t0_}, 144, v{t0_}
    s_lshr_b32 s6, s3, 2
    s_mul_i32 s6, s6, {576-128}
    s_lshl_b32 s7, s3, 5
    s_add_u32 s6, s6, s7
    v_lshl_add_u32 v{t1_}, v7, 3, s6
    v_add3_u32 v{VT0}, v{VT0}, v{t0_}, v{t1_}
    v_add_u32 v{VT1}, {4*REG}, v{VT0}
    v_and_b32 v{t0_}, 1, v1
    s_lshl_b32 s6, s3, 10
    s_add_u32 s6, s6, {GB}
    v_lshl_add_u32 v{VGW}, v{t0_}, 3, s6
    v_bfe_u32 v{t0_}, v1, 1, 2
    v_lshl_add_u32 v{VGW}, v{t0_}, 8, v{VGW}
    v_lshrrev_b32 v{t0_}, 3, v1
    v_lshl_add_u32 v{VGW}, v{t0_}, 4, v{VGW}
    """.strip().split("\n")
    if c["dpre"]:
        late += f"""
        s_mul_i32 s6, s5, 7
        s_min_u32 s7, s3, 6
        s_add_u32 s6, s6, s7
        s_lshr_b32 s7, s6, 4
        s_lshl_b32 s7, s7, 4
        s_add_u32 s6, s6, s7
        s_mul_i32 s7, s4, 224
        s_add_u32 s6, s6, s7
        s_lshl_b32 s6, s6, 12
        s_add_u32 s6, s6, {32*2048}
        v_and_b32 v{t0_}, 31, v1
        v_lshl_add_u32 v{TG+2}, v{t0_}, 7, s6
        """.strip().split("\n")
    late += f"""
    s_lshl_b32 s6, s63, 3
    s_add_u32 s6, s6, s3
    s_lshl_b32 s6, s6, 11
    s_add_u32 s6, s6, {WS_PART}
    v_bfe_u32 v{t0_}, v1, 3, 1
    v_lshl_add_u32 v{t0_}, v{t0_}, 2, v7
    v_lshlrev_b32 v{t0_}, 3, v{t0_}
    v_add_u32 v{t0_}, {WS_KEYS}, v{t0_}
    v_lshl_add_u32 v7, v1, 4, s6
    s_cmp_eq_u32 s3, 7
    s_cselect_b64 vcc, -1, 0
    v_cndmask_b32 v7, v7, v{t0_}, vcc
    s_add_u32 s9, s{S_COL}, {1 << 20}
    s_add_u32 s62, s{S_COL}, {3 << 20}
    """.strip().split("\n")
    for l in late: a(l.strip())
    late = []
    if c["wpre"]:
        a("s_lshl_b32 s6, s5, 3")
        a("s_lshr_b32 s7, s3, 1")
        a("s_add_u32 s6, s6, s7")
        a("s_lshl_b32 s6, s6, 3")
        a(f"s_add_u32 s6, s6, {32 + 8 - c['wpre']}")
        a("s_mul_i32 s6, s6, 7168")
        a("s_mul_i32 s7, s4, 896")
        a("s_add_u32 s6, s6, s7")
        a(f"s_lshr_b32 s7, s{S_WG}, 7")
        a("s_sub_u32 s7, s4, s7")
        a("s_add_u32 s7, s7, 3")
        a("s_and_b32 s7, s7, 7")
        a("s_min_u32 s7, s7, 6")
        a("s_lshl_b32 s7, s7, 7")
        a(f"s_sub_u32 s7, s7, {4*7168}")
        a("v_and_b32 v56, 7, v1")
        a("v_cmp_eq_u32 vcc, 7, v56")
        a("v_lshlrev_b32 v56, 7, v56")
        a("v_mov_b32 v57, s7")
        a("v_lshrrev_b32 v58, 3, v1")
        a("v_cndmask_b32 v56, v56, v57, vcc")
        a("v_mul_u32_u24 v58, 7168, v58")
        a("v_add3_u32 v0, v56, v58, s6")
        m = sum((0xff if c["wpre"] == 4 else 0x7f) << (8*i) for i in range(c["wpre"]))
        a(f"s_mov_b32 s70, {m & 0xffffffff:#x}")
        a(f"s_mov_b32 s71, {m >> 32:#x}")
        a("s_bitcmp1_b32 s3, 0")
        a(f"s_cselect_b64 s[12:13], {sr(S_WU,2)}, {sr(S_WG,2)}")
    a("s_mov_b32 s64, 0x05040100")
    a("s_mov_b32 s65, 0x07060302")
    a("s_lshl_b32 s68, s3, 8")
    a(f"s_add_u32 s68, s68, {UB}")
    a(f"s_add_u32 s69, s68, {4*REG}")
    a("s_mov_b32 s10, 0")
    a(f"v_mov_b32 v{t2_}, 0x3f80")
    a(f"ds_write_addtid_b32 v{VZ} offset:{UB+4096}")
    a(f"ds_write_addtid_b32 v{VZ} offset:{UB+4096+256}")
    a("s_lshl_b32 s6, s3, 8")
    a(f"s_add_u32 s6, s6, {RED2}")
    a(f"v_lshl_add_u32 v{t1_}, v1, 2, s6")
    a(f"ds_write_b32 v{t1_}, v{t2_}")
    a("s_waitcnt lgkmcnt(0)")
    d = 200
    a("s_lshr_b32 s66, s66, s11")
    a("s_lshr_b32 s67, s67, s11")
    a("s_lshl_b32 s66, s66, 16")
    a("s_lshl_b32 s67, s67, 16")
    a(f"v_mov_b32 v{d}, {LOG2E}")
    a(f"v_mul_f32 v{d}, s66, v{d}")
    a(f"v_exp_f32 v{d}, v{d}")
    a(f"v_mov_b32 v{VDS}, 0")
    a(f"v_cvt_pk_bf16_f32 v{d}, v{d}, v{d}")
    a(f"v_writelane_b32 v{VDS}, s67, 0")
    a("s_mov_b64 exec, 1")
    a(f"v_add_f32 v{VDS}, -1.0, v{VDS}")
    a("s_mov_b64 exec, -1")
    a(f"v_lshlrev_b32 v{d}, 16, v{d}")
    a(f"v_mul_f32 v202, 0xbfb8aa3b, v{d}")
    a(f"v_mul_f32 v203, {INV2PI}, v{d}")
    a(f"v_add_f32 v{d}, v{d}, v{d}")
    nx = [GOP]
    def newp():
        p = (nx[0], nx[0] + 2); nx[0] += 4; return p
    W1, W8, W256, G0 = newp(), newp(), newp(), newp()
    TT = newp()
    PK = [nx[0], nx[0] + 2, nx[0] + 4]; nx[0] += 8
    Z = 204
    X_ = 208
    cst("fill")
    a("s_waitcnt vmcnt(2)")
    cst("par")
    a(f"v_lshlrev_b32 v{Z}, 16, v{PR}")
    a(f"v_and_b32 v{Z+2}, 0xffff0000, v{PR}")
    a(f"v_mul_f32 v{Z}, {LOG2E}, v{Z}")
    a(f"v_mul_f32 v{Z+2}, {LOG2E}, v{Z+2}")
    a(f"v_exp_f32 v{Z}, v{Z}")
    a(f"v_exp_f32 v{Z+2}, v{Z+2}")
    a(f"v_lshlrev_b32 v{Z+1}, 16, v{PR+1}")
    a(f"v_cvt_pk_bf16_f32 v{Z+2}, v{Z}, v{Z+2}")
    a(f"v_and_b32 v{Z+3}, 0xffff0000, v{PR+1}")
    a(f"v_lshlrev_b32 v{Z}, 16, v{Z+2}")
    a(f"v_and_b32 v{Z+2}, 0xffff0000, v{Z+2}")
    a(f"v_pk_mul_f32 {vr(Z,2)}, {vr(Z,2)}, v[202:203]")
    a(f"v_pk_mul_f32 {vr(Z+2,2)}, {vr(Z+2,2)}, v[202:203]")
    def wexp(sc, W):
        L = []
        for m in range(2):
            if sc:
                L += [f"v_mul_f32 v{X_+2*m}, {sc}, v{Z+2*m}", f"v_mul_f32 v{X_+1+2*m}, {sc}, v{Z+1+2*m}"]
        src = X_ if sc else Z
        for m in range(2):
            L += [f"v_fract_f32 v{X_+1+2*m}, v{src+1+2*m}"]
        for m in range(2):
            L += [f"v_exp_f32 v{X_+2*m}, v{src+2*m}", f"v_cos_f32 v{W[m]}, v{X_+1+2*m}", f"v_sin_f32 v{W[m]+1}, v{X_+1+2*m}"]
        for m in range(2):
            L += [f"v_pk_mul_f32 {vr(W[m],2)}, {vr(W[m],2)}, {vr(X_+2*m,2)} op_sel:[0,0] op_sel_hi:[1,0]"]
        return L
    for l in wexp("0x41000000", W8): a(l)
    if c.get("kbar", 1): a("s_barrier")
    cst("kbar")
    kk = [0]
    def run_steps(steps, neg, hooks={}):
        n = "-" if neg else ""
        pend = None; pw = None
        for si, (dst, src, w, rows) in enumerate(steps + [(None,)*4, (None,)*4]):
            x = y = [None, None]
            if w is not None:
                x = cmul(dst[0], src[0], w[0], TT[0]); y = cmul(dst[1], src[1], w[1], TT[1])
            cA = cB = None
            if pend:
                p = PK[kk[0] % 3]; kk[0] += 1
                cA = f"v_cvt_pk_bf16_f32 v{p}, v{pend[0][0]}, {n}v{pend[0][0]+1}"
                cB = f"v_cvt_pk_bf16_f32 v{p+1}, v{pend[0][1]}, {n}v{pend[0][1]+1}"
            wa = [f"ds_write_addtid_b32 v{pw[0]} offset:{r*ROWB}" for r in pw[1]] if pw else []
            wb = [f"ds_write_addtid_b32 v{pw[0]+1} offset:{r*ROWB+256}" for r in pw[1]] if pw else []
            for s_ in [x[0], y[0]] + wa + hooks.get(si, []) + [cA, x[1], y[1]] + wb + [cB]:
                if s_: a(s_)
            pw = (p, pend[1]) if pend else None
            pend = (dst, rows) if rows else None
    EA, EB = newp(), newp()
    steps = [(W8, None, None, [0])]
    cur = W8
    for b in range(2, 32):
        nxt = EA if b % 2 == 0 else EB
        steps.append((nxt, cur, W8, [b-1])); cur = nxt
    eh = {c["u1at"]: [utext(0, 1)]}
    assert c.get("kbar", 1)
    for i in range(5):
        eh.setdefault(8 + 3*i, []).append(f"ds_read_b128 {vr(C3+4*i,4)}, v{VG} offset:{1024*i}")
    if c["wpre"]:
        pass
    a(".p2align 3")
    run_steps(steps, False, eh)
    cst("eend")
    sb = [f"v_lshlrev_b32 v{G0[0]}, 16, v{PR+2}", f"v_and_b32 v{G0[1]}, 0xffff0000, v{PR+2}",
          f"v_lshlrev_b32 v{G0[0]+1}, 16, v{PR+3}", f"v_and_b32 v{G0[1]+1}, 0xffff0000, v{PR+3}",
          f"v_pk_mul_f32 {vr(G0[0],2)}, {vr(G0[0],2)}, {vr(d,2)} op_sel:[0,0] op_sel_hi:[1,0]",
          f"v_pk_mul_f32 {vr(G0[1],2)}, {vr(G0[1],2)}, {vr(d,2)} op_sel:[0,0] op_sel_hi:[1,0]"]
    sb += wexp(None, W1) + wexp("0x43800000", W256)
    for s_ in range(16):
        a(f"ds_read_b128 {vr(EOP+4*s_,4)}, v{VOE} offset:{32*s_}")
        if s_ % 2 == 1 and s_ >= 3:
            for _ in range(5):
                if sb: a(sb.pop(0))
    assert not sb
    cst("erd")
    if c.get("gprio", 1): a("s_setprio 1")
    if c.get("gsync", 0): a("s_barrier")
    def drow(r, h): return 8*(r//4) + 4*h + (r % 4)
    want = {}
    def put(al, r, h): want.setdefault(al, []).append(drow(r, h))
    for h in range(2):
        for j in range(4): put(4*h + j, j, h)
        for j in range(3): put(256 + 4*h + 2*j, 4 + j, h)
        put(4*h + 4, 7, h)
        for j in range(2): put(512 + 256*h + 4 + 4*j, 8 + j, h)
        for q in range(2): put(1024 + 512*h + 256*q + 8, 10 + q, h)
    keep = {al: newp() for al in (2, 4, 6, 8)}
    tA, tB = EA, EB
    steps = []
    def st(al, dst, src, w): steps.append((dst, src, w, want.pop(al)))
    st(0, G0, None, None)
    cur = G0
    for al in range(1, 9):
        dd = keep.get(al) or (tA if al % 4 == 1 else tB)
        st(al, dd, cur, W1); cur = dd
    c8 = [keep[8], tA]; c4 = [keep[4], tB]
    e1 = newp()
    singles = [(256, G0), (258, keep[2]), (262, keep[6])]
    for k in range(1, 8):
        st(256*k + 8, c8[k % 2], c8[(k-1) % 2], W256)
        if k <= 3: st(256*k + 4, c4[k % 2], c4[(k-1) % 2], W256)
        elif singles:
            al, src = singles.pop(0)
            st(al, e1, src, W256)
    assert not want and not singles and nx[0] <= GOP + 64
    hooks = {1: [f"s_load_dwordx2 s[66:67], {sr(S_DBG,2)}, 0"]}
    if c["wpre"]:
        hooks.setdefault(c["wpat"], []).extend(["s_mov_b64 exec, s[70:71]", "global_load_dword v10, v0, s[12:13]", "s_mov_b64 exec, -1"])
    a(".p2align 3")
    if c["gb"] == 0:
        run_steps(steps, True, hooks)
    else:
        ring = [212 + 2*i for i in range(10)]; k = 0; pend = None; ready = []
        for si, (dst, src, w, rows) in enumerate(steps + [(None,)*4]):
            x = y = [None, None]
            if w is not None:
                x = cmul(dst[0], src[0], w[0], TT[0]); y = cmul(dst[1], src[1], w[1], TT[1])
            cA = cB = None
            if pend:
                p = ring[k % 10]; k += 1
                cA = f"v_cvt_pk_bf16_f32 v{p}, v{pend[0][0]}, -v{pend[0][0]+1}"
                cB = f"v_cvt_pk_bf16_f32 v{p+1}, v{pend[0][1]}, -v{pend[0][1]+1}"
                ready.append((p, pend[1]))
            for s_ in [x[0], y[0], cA, x[1], y[1], cB]:
                if s_: a(s_)
            if len(ready) >= c["gb"] or dst is None:
                for p, rows_ in ready:
                    for r in rows_:
                        a(f"ds_write_addtid_b32 v{p} offset:{r*ROWB}")
                        a(f"ds_write_addtid_b32 v{p+1} offset:{r*ROWB+256}")
                ready = []
            for h_ in hooks.get(si, []): a(h_)
            pend = (dst, rows) if rows else None
    cst("gend")
    uload(1, 0)
    a(f"v_mov_b32 v0, v{VUL}")
    nv0 = 1 + (1 if c["wpre"] else 0)
    def rec_loads():
        for q in range(2):
            a(f"global_load_dwordx4 {vr(PL+4*q,4)}, v{TG+3}, {sr(S_WS,2)} offset:{1024*q} sc1")
    GA = T + 24
    def gather_loads():
        for q in range(2):
            a(f"global_load_dwordx4 {vr(GA+4*q,4)}, v7, {sr(S_WS,2)} offset:{1024*q} sc1")
    def bslot(k): return BR + 4*k
    def btext(cc, k):
        return f"ds_read_b128 {vr(bslot(k),4)}, v{VB} offset:{3584 - 512*cc + (64*k if k < 8 else 16)}"
    def atext(tt, hf):
        base, o = (VA0, 16*tt) if tt < 16 else (VA1, 0)
        return f"ds_read2_b32 {vr(A+4*tt+2*hf,2)}, v{base} offset0:{o+2*hf} offset1:{o+2*hf+1}"
    aorder = [x for t0 in range(1, 8) for x in (t0, t0+8)] + [0, 8, 16]
    border = (1, 2, 3, 4, 5, 6, 7, 0, 8)
    TP12 = {dl: T + 4*(dl-2) for dl in (2, 3, 4)}
    TP34 = {dl: T + 12 + 4*(dl-2) for dl in (2, 3, 4)}
    TQ = {dl: T + 24 + 4*(dl-4) for dl in (4, 5, 6, 7)}
    tl = []
    for tab, off, dls in ((TP12, -16, 2), (TP34, 32, 2), (TP12, -16, 3), (TP34, 32, 3), (TP12, -16, 4), (TP34, 32, 4),
                          (TQ, 48, 4), (TQ, 48, 5), (TQ, 48, 6), (TQ, 48, 7)):
        o = off + 16*dls; r = tab[dls]
        tl.append((("T", r, 0), f"ds_read2_b32 {vr(r,2)}, v{VT} offset0:{o} offset1:{o-1}"))
        tl.append((("T", r, 1), f"ds_read2_b32 {vr(r+2,2)}, v{VT} offset0:{o-2} offset1:{o-3}"))
    mtext = lambda dd, ra, rb, cin: f"v_mfma_f32_16x16x32_bf16 {vr(dd,4)}, {vr(ra,4)}, {vr(rb,4)}, {cin}"
    boxes = ((0, 0, C3), (1, 0, C5), (4, 0, C7), (2, 8, C3), (3, 8, C5), (5, 8, C9))
    D = 32

    def path(Y):
        n_ = "xy"[Y]
        P_ = lambda k: c[n_ + k]
        S = Sched(a, lat=c.get("lat", 5))
        r_ = S.raw
        vm = []
        def vmwait(nm): return f"s_waitcnt vmcnt({len(vm) - 1 - max(i for i, x in enumerate(vm) if x == nm)})"
        def u1block():
            r_(f"s_waitcnt vmcnt({nv0})")
            cst("u1")
            for ch in range(8):
                r_(f"v_perm_b32 v{BR+ch}, v{U1+ch//2}, v{U1+4+ch//2}, s{64+ch%2}")
            for ch in range(8):
                if ch % 4 == 0:
                    r_(f"s_mov_b32 m0, s{68+ch//4}"); r_("s_nop 0")
                S.lds(("uw", 0, ch), f"ds_write_addtid_b32 v{BR+ch} offset:{(ch%4)*REG+2048}")
        def bar2():
            r_("s_barrier")
            cst("bar2")
            rec_loads(); r_(utext(1, 1, 0), 3); vm.extend(["rec", "u2b"])
        def records():
            cst("rec")
            a(vmwait("rec"))
            a("s_xor_b32 s67, s67, 1")
            a(f"LC_poll1{n_}:")
            a(f"v_xor_b32 v{EP+8}, s66, v{PL+1}")
            for i in (3, 5, 7):
                a(f"v_bitop3_b32 v{EP+8}, v{PL+i}, s66, v{EP+8} bitop3:0xbe")
            a(f"v_or_b32 v{EP+8}, s67, v{EP+8}")
            a(f"v_cmp_ne_u32 vcc, 0, v{EP+8}")
            a(f"s_cbranch_vccnz LC_poll1{n_}_retry")
            a(f"LC_poll1{n_}_ok:")
            if STAMP["on"]: a(f"s_mov_b32 s{ST0+24}, s10")
            S.n += 9
        gv = [(("g", 2*q+i), f"v_lshlrev_b32_e64 v{PL+4*q+i}, 16, v{PL+4*q+2*i}") for q in range(2) for i in range(2)]
        gw = [(("gw", q), f"ds_write_b64 v{VGW}, {vr(PL+4*q,2)} offset:{128*q}") for q in range(2)]
        def gbar():
            cst("gb0"); r_("s_barrier"); cst("gb1")
        gtext = lambda s_: f"ds_read_b128 {vr(GOP+4*s_,4)}, v{VOP} offset:{32*s_}"
        zq = [(("z", z), f"ds_write_addtid_b32 v{VZ} offset:{z}") for z in (KB, KB+1056, KB+2288, KB+2288+256)]
        lat0, S.lat = S.lat, 99
        NG = 6
        if Y:
            u1block()
            r_(f"s_mov_b32 m0, s{S_REG}")
        for s_ in range(NG): S.lds(("G", s_), gtext(s_))
        dsq = [(("G", s_), gtext(s_)) for s_ in range(NG, 16)] + zq
        for s_ in range(16):
            S.wait([("G", s_)])
            r_(f"v_mfma_f32_32x32x16_bf16 {vr(D,16)}, {vr(GOP+4*s_,4)}, {vr(EOP+4*s_,4)}, {vr(D,16) if s_ else 0}")
            for _ in range(2):
                if dsq: S.lds(*dsq.pop(0))
        assert not dsq
        cst("kmf")
        if (Y and c["yprio"] == 1) or not Y: r_("s_setprio 0")
        r_("s_waitcnt lgkmcnt(0)"); S.done = len(S.Q) - 1
        if Y and c["yb2"] == 0:
            bar2(); r_("s_nop 6", 7)
        else:
            r_("s_nop 10", 11)
        t = 64
        r_(f"v_add_f32 v{D}, v{D}, v{VDS}")
        r_(f"v_cvt_pk_bf16_f32 v{t+1}, v{D+2}, v{D+3}")
        r_(f"v_cvt_pk_bf16_f32 v{t}, v{D}, v{D+1}")
        r_(f"v_cvt_pk_bf16_f32 v{t+2}, v{D+4}, v{D+4}")
        r_(f"v_cvt_pk_bf16_f32 v{t+3}, v{D+5}, v{D+6}")
        r_(f"v_cvt_pk_bf16_f32 v{t+4}, v{D+1}, v{D+2}")
        r_(f"v_cvt_pk_bf16_f32 v{t+5}, v{D+3}, v{D+7}")
        r_(f"v_cvt_pk_bf16_f32 v{t+6}, v{D+4}, v{D+5}")
        r_(f"v_cvt_pk_bf16_f32 v{t+7}, v{D+6}, v{D+6}")
        r_(f"v_lshlrev_b32 v{t+8}, 16, v{t}")
        r_(f"v_mov_b32 v{t+10}, v{t+7}")
        r_(f"v_and_b32 v{t+11}, 0xffff, v{t+7}")
        u = 56
        r_(f"v_cvt_pk_bf16_f32 v{u+2}, v{D+9}, v{D+9}")
        r_(f"v_cvt_pk_bf16_f32 v{u}, v{D+8}, v{D+9}")
        r_(f"v_cvt_pk_bf16_f32 v{u+1}, v{D+10}, v{D+11}")
        r_(f"v_readlane_b32 s6, v{u+2}, 63")
        S.lds("k0", f"ds_write_b64 v{VK}, {vr(t,2)} offset:{KE}")
        S.lds("k1", f"ds_write_b64 v{VK}, {vr(t+4,2)} offset:{KO+4}")
        S.lds("k2", f"ds_write_b64 v{VK}, {vr(t+2,2)} offset:{KE+512}")
        S.lds("k3", f"ds_write_b64 v{VK}, {vr(t+6,2)} offset:{KO+4+512}")
        S.lds("k8", f"ds_write_b32 v{VTP}, v{u} offset:{TB+64}")
        S.lds("k9", f"ds_write_b16 v{VTQ}, v{u+1} offset:{TB+448}")
        S.lds("k10", f"ds_write_b16_d16_hi v{VTQ}, v{u+1} offset:{TB+448+64}")
        r_("s_mov_b64 exec, 1")
        S.lds("k4", f"ds_write_b32 v{VK}, v{t+8} offset:{KO}")
        r_("s_mov_b32 exec_lo, 0")
        r_("s_mov_b32 exec_hi, 0x80000000")
        S.lds("k5", f"ds_write_b64 v{VK}, {vr(t+10,2)} offset:{KE+1024-504}")
        S.lds("k6", f"ds_write_b32 v{VK}, v{t+10} offset:{KO+1028-504}")
        S.lds("k7", f"ds_write_b32 v{VK}, v{VZ} offset:{KO+1032-504}")
        r_("s_mov_b64 exec, -1")
        for p in range(4):
            r_(f"v_and_b32 v{C2+p}, s6, v{C2+p}")
        nA = 17
        if Y and c["yb2"] == 1: bar2()
        if not Y and c["xu1"] == 0: u1block()
        for i, tt in enumerate(aorder):
            if Y and i == c["yrec"]:
                records()
                for _, t_ in gv: r_(t_)
                for w_ in gw: S.lds(*w_)
            for hf in range(2): S.lds(("A", tt, hf), atext(tt, hf))
            if Y and i == min(c["yrec"] + 3, 16):
                S.wait([("gw", 1)]); gbar(); S.pos["gbar"] = S.n
        if Y and c["yprio"] == 2: r_("s_setprio 0")
        cst("tail")
        if not Y:
            if c["xT"] == 1:
                for w_ in tl: S.lds(*w_)
            if c["xu1"] == 1: u1block()
            S.wait([("uw", 0, 7)])
            bar2()
        for k in border: S.lds(("B", 0, k), btext(0, k))
        S.lat = lat0
        S.m = 50
        S.qm = [S.m] * len(S.Q)
        ms, fs = [], []
        M0_ = S.m
        started = set(); lastacc = {}
        def mm(cc, Tt, ra, rb, needs, dist=None):
            if Tt > 7: return None
            nm = ("m", len(ms))
            ms.append(Op("M", nm, mtext(ACC+4*Tt, ra, rb, vr(ACC+4*Tt,4) if Tt in started else 0), needs=needs, dist=dist))
            started.add(Tt); lastacc[Tt] = nm
            return nm
        for tt in aorder[nA:]:
            for hf in range(2): fs.append(Op("D", ("A", tt, hf), atext(tt, hf), after=[("A", tt, 0)] if hf else []))
        if Y or c["xT"] == 0:
            for nm, t_ in tl: fs.append(Op("D", nm, t_, after=[("T", nm[1], 0)] if nm[2] else [], at=M0_ + c.get("tat", 10)))
        def epilogue(t_, after):
            r = ACC + 4*t_
            alt = t_ >= 3 and t_ % 2 == 1
            E = U2 if alt else EP
            N = C7 if (alt and t_ >= 5) else EP + 8
            pl = {0: None, 1: 0, 2: 1, 3: None, 4: 2, 5: 3, 6: 4, 7: 5}[t_]
            pn = {0: None, 1: 0, 2: 1, 3: 2, 4: 3, 5: None, 6: 4, 7: 5}[t_]
            af = list(after) + ([("e", pl, 7)] if pl is not None else [])
            if t_ == 3: af += [("up", k) for k in range(8)]
            if t_ >= 4: af.append("ubar")
            fs.append(Op("D", ("u", t_), f"ds_read_b64 {vr(E,2)}, v{VU} offset:{3584-512*t_+24}", after=af))
            fs.append(Op("D", ("gl", t_), f"ds_read_b128 {vr(E+4,4)}, v{VG} offset:{1024*t_}", after=af + [("u", t_)]))
            L = [f"v_and_b32 v{N}, 0xffff0000, v{E+1}", f"v_lshlrev_b32_e64 v{N+1}, 16, v{E+1}",
                 f"v_and_b32 v{N+2}, 0xffff0000, v{E}", f"v_lshlrev_b32_e64 v{N+3}, 16, v{E}"]
            L += [f"v_fma_f32 v{r+i}, v{E+4+i}, v{r+i}, v{N+i}" for i in range(4)]
            L += [f"v_cvt_pk_bf16_f32 v{E+2}, v{r}, v{r+1}", f"v_cvt_pk_bf16_f32 v{E+3}, v{r+2}, v{r+3}"]
            for i, l in enumerate(L):
                af = [("e", t_, i-1)] if i else ([("e", pn, 7)] if pn is not None else [])
                if i == 0 and t_ == 5: af.append(("box", 3, 4))
                if i == 8 and pl is not None: af.append(("y", pl))
                fs.append(Op("V", ("e", t_, i), l, after=af, needs=[("gl", t_)] if i == 0 else [], dist={lastacc[t_]: 8} if i == 4 else None))
            fs.append(Op("D", ("y", t_), f"ds_write_b64 v{VY}, {vr(E+2,2)} offset:{YB+576*t_}", after=[("e", t_, 9)] + ([("y", t_-1)] if t_ else []),
                         cost=3, dl=lastacc[t_][1] + (c.get("epdl", 14) if t_ else 30)))
        nst = [0]; lastq = []; lastst = []
        def store(P, half=None):
            k = nst[0]; nst[0] += 1
            ytile = 2*P + 1 if half is None else 2*P + half
            prevbar = "gbar" if k == 0 else "ubar" if k == 1 else ("bar", k-1)
            fs.append(Op("X", ("bar", k), lambda: [r_("s_barrier"), cst(f"ba{ {1:0, 3:1, 5:2, 6:3, 7:4}.get(ytile) }")], needs=[("y", ytile)],
                         after=[prevbar], at=M0_ + c.get(f"{n_}b{k}", 0), dl=lastacc[ytile][1] + c.get("stdl", 22) - 7))
            if half is not None and half != Y: return
            fs.append(Op("D", ("t0", k), f"ds_read_b64_tr_b16 {vr(SD,2)}, v{VT0} offset:{YB+1152*P}", after=[("bar", k)] + lastst[-1:] + (["dpre"] if c["dpre"] else [])))
            fs.append(Op("D", ("t1", k), f"ds_read_b64_tr_b16 {vr(SD+2,2)}, v{VT1} offset:{YB+1152*P}", after=[("t0", k)]))
            def emit():
                r_(f"buffer_store_dwordx4 {vr(SD,4)}, v11, {sr(SRD_OUT,4)}, s{(S_COL, 9, 8, 62)[P]} offen")
                vm.append(("st", k)); cst(f"st{P}")
            fs.append(Op("X", ("st", k), emit, needs=[("t1", k)], cost=2, dl=lastacc[ytile][1] + c.get("stdl", 22)))
            lastst.append(("st", k))
        for cc in range(8):
            hasP, hasQ = cc <= 5, cc <= 3
            def nxt(k, after):
                if cc < 7 and (k < 8 or cc + 1 <= 5):
                    fs.append(Op("D", ("B", cc+1, k), btext(cc+1, k), after=[after] + (["ubar"] if cc + 1 >= 4 else [])))
            an = (lambda tt: [("A", tt, 1)]) if cc == 0 else (lambda tt: [])
            tn = (lambda r: [("T", r, 1)]) if cc == 1 else (lambda r: [])
            zero = ((0, A, 0), (1, A+32, 8), (2, A+64, 16), (4, C2, None))
            mz = lambda dl, ra, tt: mm(cc, cc+dl, ra, bslot(0), [("B", cc, 0)] + (an(tt) if tt is not None else []))
            l0 = None
            if cc >= c.get("split", 5):
                for t0 in range(1, 8): mm(cc, cc, A+4*t0, bslot(t0), [("B", cc, t0)])
                l0 = mz(*zero[0])
                for t0 in range(1, 8):
                    if cc < 7: nxt(t0, mm(cc, cc+1, A+32+4*t0, bslot(t0), []))
                for z in zero[1:]: l0 = mz(*z) or l0
            else:
                for t0 in range(1, 8):
                    l = mm(cc, cc, A+4*t0, bslot(t0), [("B", cc, t0)] + an(t0))
                    l = mm(cc, cc+1, A+32+4*t0, bslot(t0), an(t0+8)) or l
                    nxt(t0, l)
                for z in zero: l0 = mz(*z) or l0
            if cc == 0:
                if not Y:
                    fs.append(Op("X", "rec", records, at=M0_ + c["xrec"], dl=-50, cost=8))
                    for nm, t_ in gv: fs.append(Op("V", nm, t_, after=["rec"]))
                    for q, (nm, t_) in enumerate(gw): fs.append(Op("D", nm, t_, after=[("g", 2*q), ("g", 2*q+1)], cost=3))
                    fs.append(Op("X", "gbar", gbar, needs=[("gw", 0), ("gw", 1)], at=M0_ + c["xgb"], dl=c["xgb"] - 20))
                if c["dpre"]:
                    def dp():
                        r_("s_mov_b32 exec_hi, 0"); r_(f"global_load_dword v10, v{TG+2}, {sr(S_WD,2)}"); r_("s_mov_b32 exec_hi, -1"); vm.append("dpre")
                    fs.append(Op("X", "dpre", dp, at=M0_ + P_("dp"), dl=P_("dp") - 20, cost=3))
                fs.append(Op("X", "u2w", lambda: r_(vmwait("u2b")), after=[("st", 0)], at=M0_ + P_("uw")))
                epilogue(0, ["gbar"])
                for hf in range(2):
                    for k in range(4):
                        ch = 4*hf + k
                        fs.append(Op("V", ("up", ch), f"v_perm_b32 v{SD+k}, v{U2+ch//2}, v{U2+4+ch//2}, s{64+ch%2}",
                                     after=["u2w"] + ([("uw", 1, ch-4)] if hf else []), dist={("st", 0): 2}))
                    fs.append(Op("X", ("um", hf), (lambda hf=hf: r_(f"s_mov_b32 m0, s{68+hf}")), after=[("uw", 1, 3)] if hf else []))
                    for k in range(4):
                        ch = 4*hf + k
                        fs.append(Op("D", ("uw", 1, ch), f"ds_write_addtid_b32 v{SD+k} offset:{k*REG}",
                                     after=[("up", ch)] + ([("uw", 1, ch-1)] if ch else []), dist={("um", hf): 1}))
                fs.append(Op("X", "ubar", lambda: r_("s_barrier"), needs=[("uw", 1, 7)], at=M0_ + c.get(n_ + "ub", 0)))
            else:
                epilogue(cc, [])
            if cc >= 4: store(cc//2, cc % 2)
            elif cc % 2 == 1: store(cc//2)
            if cc == 4:
                def gat():
                    gather_loads(); S.n += 2; vm.append("gat0"); vm.append("gat")
                fs.append(Op("X", "gat", gat, at=M0_ + P_("gat"), dl=P_("gat"), cost=3))
            pc = cc - 1
            if 0 <= pc <= 5:
                for dl in (2, 3, 4):
                    mm(cc, pc+dl, BX, TP12[dl], tn(TP12[dl]), {("cv", pc, 0, p): 2 for p in range(4)})
                    mm(cc, pc+dl, BX+8, TP34[dl], tn(TP34[dl]), {("cv", pc, 2, p): 2 for p in range(4)})
            if 0 <= pc <= 3:
                for dl in (4, 5, 6, 7):
                    mm(cc, pc+dl, BX+16, TQ[dl], tn(TQ[dl]), {("cv", pc, 4, p): 2 for p in range(4)})
            if cc == 4: lastq.append(ms[-1].name)
            if hasP:
                for (i, k, rc) in boxes:
                    if i < 4 or hasQ:
                        ms.append(Op("M", ("box", cc, i), mtext(BX+4*i, bslot(k), rc, 0), needs=[("B", cc, k)]))
                        if k == 0: l0 = ("box", cc, i)
                nxt(8, ms[-1].name)
                for i in ((0, 2, 4) if hasQ else (0, 2)):
                    for p in range(4):
                        fs.append(Op("V", ("cv", cc, i, p), f"v_cvt_pk_bf16_f32 v{BX+4*i+p}, v{BX+4*i+p}, v{BX+4*i+4+p}",
                                     dist={("box", cc, i): 8, ("box", cc, i+1): 8}))
            nxt(0, l0)
        [f for f in fs if f.name == "gat"][0].after += lastq
        S.log = []
        S.run(ms, fs, budget=lambda i: 2, wfree=c["wfree"],
              pre=[f.name for f in fs if f.name[0] == "A"], npre=2, lead={"B": c["blead"], "cv": c.get("clead", 8), "T": c.get("tlead", 8)})
        if c.get("log"): print(n_, "".join(S.log))
        a(vmwait("gat"))
    a("s_bitcmp1_b32 s3, 2")
    a("s_cbranch_scc1 LC_ypath")
    path(0)
    a("s_branch LC_final")
    a("LC_ypath:")
    path(1)
    a("LC_final:")
    a(f"s_and_b32 s7, s{S_TAG}, 0xff")
    a("s_mov_b32 s10, 0")
    a("s_cmp_eq_u32 s3, 7")
    a("s_cbranch_scc1 LC_poll4")
    a("LC_poll3:")
    a(f"v_xor_b32 v3, s7, v{GA}")
    for i in range(1, 8):
        a(f"v_bitop3_b32 v3, v{GA+i}, s7, v3 bitop3:0xbe")
    a("v_and_b32 v3, 0xff, v3")
    a("v_cmp_ne_u32 vcc, 0, v3")
    a("s_cbranch_vccnz LC_poll3_retry")
    a("LC_poll3_ok:")
    if STAMP["on"]: a(f"s_mov_b32 s{ST0+22}, s10")
    for i in range(8):
        a(f"v_xor_b32 v{GA+i}, s7, v{GA+i}")
    a(f"v_pk_add_f32 {vr(GA,2)}, {vr(GA,2)}, {vr(GA+4,2)}")
    a(f"v_pk_add_f32 {vr(GA+2,2)}, {vr(GA+2,2)}, {vr(GA+6,2)}")
    a("s_lshl_b32 s6, s3, 8")
    a(f"s_add_u32 m0, s6, {RED2}")
    a(f"v_permlane32_swap_b32 v{GA}, v{GA+2}")
    a(f"v_permlane32_swap_b32 v{GA+1}, v{GA+3}")
    a(f"v_pk_add_f32 {vr(GA,2)}, {vr(GA,2)}, {vr(GA+2,2)}")
    a("s_nop 1")
    a(f"v_permlane16_swap_b32 v{GA}, v{GA+1}")
    a(f"v_add_f32 v{GA}, v{GA}, v{GA+1}")
    a(f"ds_write_addtid_b32 v{GA}")
    a("s_waitcnt lgkmcnt(0)")
    a("s_barrier")
    stamp_dump(a, 0, 13)
    a("s_endpgm")
    a("LC_poll4:")
    a(f"v_cmp_ne_u32 vcc, s{S_TAG}, v{GA+1}")
    a("v_and_b32 v3, 7, v1")
    a("s_cbranch_vccnz LC_poll4_retry")
    a("LC_poll4_ok:")
    a(f"v_not_b32 v64, v{GA}")
    a("v_and_b32 v64, 2047, v64")
    a(f"v_mul_u32_u24 v4, {REG}, v3")
    a("v_lshrrev_b32 v5, 8, v64")
    a("v_bfe_u32 v8, v64, 2, 2")
    a("v_lshl_add_u32 v5, v5, 2, v8")
    a("v_mul_u32_u24 v5, 144, v5")
    a("v_bfe_u32 v8, v64, 4, 4")
    a("v_lshl_add_u32 v4, v8, 3, v4")
    a("v_and_b32 v8, 3, v64")
    a("v_lshl_add_u32 v5, v8, 1, v5")
    a("v_add_u32 v4, v4, v5")
    a(f"ds_read_u16 v66, v4 offset:{YB}")
    a("v_lshlrev_b32 v64, 11, v64")
    a("v_lshl_add_u32 v64, v3, 1, v64")
    a("v_lshlrev_b32 v2, 2, v1")
    a(f"v_add_u32 v2, {RED2}, v2")
    a("s_waitcnt lgkmcnt(0)")
    a("v_lshlrev_b32 v66, 16, v66")
    a("s_barrier")
    for w in range(0, 6, 2):
        a(f"ds_read2st64_b32 {vr(68+w,2)}, v2 offset0:{w} offset1:{w+1}")
    a("ds_read_b32 v67, v2 offset:1536")
    a("s_waitcnt lgkmcnt(2)")
    a("v_pk_add_f32 v[68:69], v[68:69], v[70:71]")
    a("s_waitcnt lgkmcnt(0)")
    a("v_pk_add_f32 v[66:67], v[66:67], v[72:73]")
    a("v_pk_add_f32 v[66:67], v[66:67], v[68:69]")
    a("v_add_f32 v66, v66, v67")
    a("v_cvt_pk_bf16_f32 v66, v66, v66")
    a(f"buffer_store_short v66, v64, {sr(SRD_OUT,4)}, s{S_COL} offen")
    stamp_dump(a, 0, 13)
    a("s_endpgm")
    for k in (3, 4):
        a(f"LC_poll{k}_retry:")
        a("s_add_u32 s10, s10, 1")
        a(f"s_cmp_ge_u32 s10, {SPIN}")
        a(f"s_cbranch_scc1 LC_poll{k}_ok")
        a("s_sleep 2")
        a("s_mov_b64 exec, vcc")
        gather_loads()
        a("s_mov_b64 exec, -1")
        a("s_waitcnt vmcnt(0)")
        a(f"s_branch LC_poll{k}")
    for n_ in "xy":
        a(f"LC_poll1{n_}_retry:")
        a("s_add_u32 s10, s10, 1")
        a(f"s_cmp_ge_u32 s10, {SPIN}")
        a(f"s_cbranch_scc1 LC_poll1{n_}_ok")
        a(f"v_mov_b32 v{EP+9}, 0")
        a(f"global_load_dwordx2 {vr(TG,2)}, v{EP+9}, {sr(S_DBG,2)} sc1")
        a("s_mov_b64 exec, vcc")
        rec_loads()
        a("s_mov_b64 exec, -1")
        a("s_waitcnt vmcnt(0)")
        a(f"v_readfirstlane_b32 s66, v{TG}")
        a(f"v_readfirstlane_b32 s67, v{TG+1}")
        a("s_xor_b32 s67, s67, 1")
        a(f"s_branch LC_poll1{n_}")

def build():
    a = Asm()
    stamp_init(a)
    a("s_cmp_ge_u32 s2, 256")
    a("s_cbranch_scc1 L_end")
    a("s_load_dwordx16 s[16:31], s[0:1], 0")
    a("s_load_dwordx16 s[32:47], s[0:1], 64")
    a("v_lshrrev_b32 v2, 6, v0")
    a("v_and_b32 v1, 63, v0")
    a("v_readfirstlane_b32 s3, v2")
    if CFG.get("cpre", 1):
        a("s_cmp_lg_u32 s3, 7")
        a("s_cbranch_scc1 L_nocpre")
        a("s_getpc_b64 s[4:5]")
        a("L_pc:")
        a("s_bfe_u32 s6, s2, 0x20003")
        a("s_lshl_b32 s6, s6, 13")
        a("v_lshl_add_u32 v3, v1, 7, s6")
        a("v_min_u32 v3, L_codeend-L_pc-4, v3")
        a("global_load_dword v63, v3, s[4:5]")
        a("L_nocpre:")
    a("s_cmp_ge_u32 s2, 128")
    a("s_cbranch_scc1 L_conv")
    moe(a)
    a("L_conv:")
    conv(a)
    a("L_end:")
    a("s_endpgm")
    a("L_codeend:")
    return header([f"; @launch grid=(256,1,1) block=(512,1,1) lds={LDS_TOTAL}"]) + kstart(KN) + a.text() + RODATA + kdesc(KN, 256)

if __name__ == "__main__":
    import sys
    from lint import lint
    name = "v10"
    for kv in sys.argv[1:]:
        if "=" in kv:
            k, v = kv.split("="); CFG[k] = int(v)
        else: name = kv
    t = build()
    assert not lint(t), lint(t)
    open(f"gen/{name}.s", "w").write(t)
    CFG["log"] = 0
    STAMP["on"] = True
    open(f"gen/{name}_ts.s", "w").write(build())
    STAMP["clk"] = True
    open(f"gen/{name}_clk.s", "w").write(build())
```

```python
from blocks import *
from sched import *

WS_E    = 0xF000
WS_KEYS = 0x20000
SPIN = 40000
SRD_WD = 56

CFG = dict(n0=2, n1=4, n2=10, n3=14, nd1=4, dpre=1, sprefetch=1, wpre=4, wpat=3, u1at=22, gb=2, wfree=0, blead=14,
           xrec=30, xgb=40, xdp=54, xb0=84, xuw=0, xgat=196,
           yrec=5, yb2=0, xT=0, xu1=0, tat=2, ydp=20, yb0=0, yuw=0, ygat=196, yprio=1)

DPP_FULL = "row_mask:0xf bank_mask:0xf"

L_REC, L_SEL, L_TAU, L_CNT = 0, 128, 160, 164
L_HB, L_ZERO, L_MB, L_RG, L_RED, L_D = 256, 1536, 2048, 8192, 16384, 49152

def moe(a):
    c = CFG
    R, O, DO, B, ACC = 64, 128, 192, 224, 240
    X, WR, GW = O, O + 16, O + 24
    PL, KEY, IDX, SC = 16, 24, 28, 32
    VW = 6
    S_TAG, S_TB, S_G, S_S = 60, 61, 62, 63
    a("s_and_b32 s4, s2, 7")
    a("s_lshr_b32 s5, s2, 3")
    a(f"s_mul_i32 s{S_G}, s4, 7")
    a("s_lshr_b32 s6, s5, 1")
    a(f"s_add_u32 s{S_G}, s{S_G}, s6")
    a(f"s_and_b32 s{S_S}, s5, 1")
    a("v_lshlrev_b32 v3, 4, v1")
    a("s_lshl_b32 s6, s2, 3")
    a("s_add_u32 s6, s6, s3")
    a("s_lshl_b32 s6, s6, 12")
    a("v_add_u32 v4, s6, v3")
    a(f"s_lshl_b32 s6, s{S_S}, 3")
    a("s_add_u32 s6, s6, s3")
    a("s_lshl_b32 s6, s6, 6")
    a("v_lshrrev_b32 v8, 4, v1")
    a("v_and_b32 v9, 7, v1")
    a("v_lshl_add_u32 v10, v8, 3, s6")
    a("v_mul_u32_u24 v12, 7168, v10")
    a(f"s_lshl_b32 s7, s{S_G}, 7")
    a("v_lshl_add_u32 v13, v9, 4, s7")
    a("v_add_u32 v12, v12, v13")
    a("v_mov_b32 v13, 0")
    a("v_and_b32 v2, 8, v1")
    a("v_cmp_eq_u32 s[12:13], 0, v2")
    a("s_waitcnt lgkmcnt(0)")
    a(f"s_load_dword s{S_TAG}, {sr(S_WS,2)}, {WS_E}")
    a("s_bitcmp1_b32 s3, 2")
    a(f"s_cselect_b64 s[14:15], {sr(S_GW,2)}, {sr(S_WR,2)}")
    a("s_and_b32 s6, s3, 3")
    a("s_lshl_b32 s6, s6, 9")
    a("v_add_u32 v2, s6, v3")
    a("s_lshl_b32 s6, s3, 9")
    a(f"s_add_u32 m0, s6, {L_RED}")
    a("s_mov_b32 exec_hi, 0")
    a("global_load_lds_dwordx4 v2, s[14:15]")
    a("s_mov_b32 exec_hi, -1")
    for i in range(4):
        a(f"global_load_dwordx4 {vr(X+4*i,4)}, v4, {sr(S_X,2)} offset:{i*1024}")
    a(f"v_mov_b32 v{VW}, s{S_WU}")
    a(f"v_mov_b32 v{VW+1}, s{S_WU+1}")
    a(f"v_mov_b32 v14, s{S_WG}")
    a(f"v_mov_b32 v15, s{S_WG+1}")
    a(f"v_cndmask_b32 v{VW}, v{VW}, v14, s[12:13]")
    a(f"v_cndmask_b32 v{VW+1}, v{VW+1}, v15, s[12:13]")
    a(f"v_lshl_add_u64 {vr(VW,2)}, {vr(VW,2)}, 0, v[12:13]")
    a("s_lshl_b32 s6, s3, 4")
    a("v_mov_b32 v44, s6")
    a("v_lshlrev_b32 v45, 3, v1")
    a("s_mov_b32 s8, 7168")
    a("s_mov_b32 s9, 0")
    a(f"s_mov_b32 s10, {25*7168}")
    a("s_mov_b32 s11, 0")
    def wloads(lo, hi):
        for n in range(lo, hi):
            a(f"global_load_dwordx4 {vr(R+4*n,4)}, {vr(VW,2)}, off nt")
            if n == 7:    a(f"v_lshl_add_u64 {vr(VW,2)}, s[10:11], 0, {vr(VW,2)}")
            elif n < 15:  a(f"v_lshl_add_u64 {vr(VW,2)}, s[8:9], 0, {vr(VW,2)}")
    a("s_cmp_ge_u32 s5, 14")
    a("s_cbranch_scc1 LM_spare0")
    a("s_barrier")
    wloads(0, c["n0"])
    stamp(a, 1)
    for r in range(4): a(f"v_mov_b32 v{40+r}, 0")
    def wfetch(nafter):
        a(f"s_waitcnt vmcnt({nafter+4})")
        a("s_barrier")
        for i in range(4):
            a(f"ds_read_b128 {vr(WR+4*i,4)}, v3 offset:{L_RED+1024*i}")
        a(f"s_waitcnt vmcnt({nafter}) lgkmcnt(0)")
    wfetch(c["n0"])
    wloads(c["n0"], c["n1"])
    a("s_branch LM_rows")
    a("LM_spare0:")
    a("s_cmp_lg_u32 s2, 112")
    a("s_cbranch_scc1 LM_spare1")
    a("s_cmp_lg_u32 s3, 1")
    a("s_cbranch_scc1 LM_spare1")
    a("s_waitcnt lgkmcnt(0)")
    a(f"s_add_u32 s6, s{S_TAG}, 0x01010101")
    a("v_mov_b32 v46, s6")
    a("v_mov_b32 v47, 1")
    a("v_mov_b32 v2, 0")
    a("s_mov_b64 exec, 1")
    a(f"global_store_dwordx2 v2, v[46:47], {sr(S_DBG,2)} sc1")
    a("s_mov_b64 exec, -1")
    a("LM_spare1:")
    for r in range(4): a(f"v_mov_b32 v{40+r}, 0")
    if c["sprefetch"]:
        a(f"s_lshr_b32 s6, s{S_WG}, 7")
        a("s_mul_i32 s7, s4, 7")
        a("s_add_u32 s6, s6, s7")
        a("s_sub_u32 s6, 3, s6")
        a("s_and_b32 s6, s6, 7")
        a("s_cmp_eq_u32 s6, 7")
        a("s_cselect_b32 s6, 0, s6")
        a("s_add_u32 s6, s6, s7")
        a("s_lshl_b32 s6, s6, 7")
        nlo = c.get("snlo", 4)
        a("v_and_b32 v2, 3, v1")
        a(f"v_add_u32 v2, {nlo}, v2")
        a("v_and_b32 v12, 8, v2")
        a("v_mul_u32_u24 v12, 3, v12")
        a("v_add3_u32 v2, v2, v12, v10")
        a("v_mul_u32_u24 v2, 7168, v2")
        a("v_add_u32 v2, s6, v2")
        a("s_barrier")
        a("s_mov_b32 exec_lo, 0x000f000f")
        a("s_mov_b32 exec_hi, 0x000f000f")
        a(f"global_load_dword v60, v2, {sr(S_WG,2)}")
        a(f"global_load_dword v61, v2, {sr(S_WU,2)}")
        a("s_mov_b64 exec, -1")
        wfetch(2)
    else:
        wfetch(0)
    a("LM_rows:")
    stamp(a, 2)
    for i in range(8):
        a(f"v_dot2_f32_bf16 v40, v{X+i}, v{WR+i}, v40")
        a(f"v_dot2_f32_bf16 v41, v{X+i}, v{GW+i}, v41")
        a(f"v_dot2_f32_bf16 v42, v{X+8+i}, v{WR+i}, v42")
        a(f"v_dot2_f32_bf16 v43, v{X+8+i}, v{GW+i}, v43")
    a("s_waitcnt lgkmcnt(0)")
    a(f"s_add_u32 s{S_TAG}, s{S_TAG}, 0x01010101")
    a(f"s_and_b32 s{S_TB}, s{S_TAG}, 0xff")
    for st in (f"row_shr:1 {DPP_FULL} bound_ctrl:0", f"row_shr:2 {DPP_FULL} bound_ctrl:0",
               f"row_shr:4 {DPP_FULL} bound_ctrl:0", f"row_shr:8 {DPP_FULL} bound_ctrl:0",
               "row_bcast:15 row_mask:0xa bank_mask:0xf", "row_bcast:31 row_mask:0xc bank_mask:0xf"):
        for r in range(4):
            a(f"v_add_f32_dpp v{40+r}, v{40+r}, v{40+r} {st}")
    a("s_mov_b32 exec_lo, 0")
    a("s_mov_b32 exec_hi, 0x80000000")
    a(f"ds_write_b128 v44, v[40:43] offset:{L_REC}")
    a("s_mov_b64 exec, -1")
    a("s_waitcnt lgkmcnt(0)")
    a("s_barrier")
    a("s_cmp_lg_u32 s3, 0")
    a("s_cbranch_scc1 LM_nopub")
    a(f"ds_read_b64 v[46:47], v45 offset:{L_REC}")
    a("s_lshl_b32 s6, s2, 7")
    a(f"s_add_u32 s6, s6, {WS_RG}")
    a("v_add_u32 v2, s6, v45")
    a(f"v_mov_b32 v49, s{S_TAG}")
    a("s_mov_b32 s6, 0x07060100")
    a("s_mov_b64 exec, 0xffff")
    a("s_waitcnt lgkmcnt(0)")
    a("v_cvt_pk_bf16_f32 v46, v47, v46")
    a("v_lshlrev_b32 v47, 16, v46")
    a("v_mul_f32 v47, 0xbfb8aa3b, v47")
    a("v_exp_f32 v47, v47")
    a("v_ashrrev_i32 v50, 31, v46")
    a("v_add_f32 v47, 1.0, v47")
    a("v_rcp_f32 v47, v47")
    a("v_or_b32 v50, 0x80000000, v50")
    a("v_cvt_pk_bf16_f32 v47, v47, v47")
    a("v_xor_b32 v46, v46, v50")
    a("v_perm_b32 v48, v46, v47, s6")
    a(f"global_store_dwordx2 v2, v[48:49], {sr(S_WS,2)} sc1")
    a("s_mov_b64 exec, -1")
    a("LM_nopub:")
    stamp(a, 3)
    a("s_cmp_ge_u32 s5, 14")
    a("s_cbranch_scc1 LM_spare")
    a("s_barrier")
    wloads(c["n1"], c["n1"] + 2)
    VDA, VTR, VRD, VPO, VPP, VH, VA, VPT, VSL = 42, 44, 48, 49, 50, 51, 52, 11, 62
    a.srd(SRD_X, S_X, 4194304)
    a.srd(SRD_WD, S_WD, 7340032)
    a("s_lshl_b32 s6, s3, 8")
    a("s_sub_u32 s6, 2047, s6")
    a("v_lshlrev_b32 v2, 1, v1")
    a(f"v_sub_u32 v{IDX}, s6, v2")
    a(f"v_subrev_u32 v{IDX+1}, 1, v{IDX}")
    a(f"v_subrev_u32 v{IDX+2}, 0x80, v{IDX}")
    a(f"v_subrev_u32 v{IDX+3}, 0x81, v{IDX}")
    a("v_mov_b32 v12, 0")
    a("v_lshlrev_b32 v13, 2, v1")
    a(f"ds_write_b32 v13, v12 offset:{L_ZERO}")
    a(f"ds_write_b32 v12, v12 offset:{L_CNT}")
    a("s_lshl_b32 s6, s3, 9")
    a("v_lshl_add_u32 v14, v1, 3, s6")
    a("s_lshl_b32 s6, s3, 10")
    a(f"s_add_u32 s6, s6, {L_RG}")
    a("v_lshl_add_u32 v15, v1, 3, s6")
    a("s_mov_b32 s64, 0x05040100")
    a("s_mov_b32 s65, 0x07060302")
    a("s_mov_b32 s66, 0xffff0000")
    a(f"v_lshlrev_b32 v{VSL}, 2, v9")
    a("v_lshrrev_b32 v56, 5, v1")
    a("v_bfe_u32 v57, v1, 4, 1")
    a("v_bfe_u32 v58, v1, 3, 1")
    a("v_lshlrev_b32 v2, 2, v56")
    a("v_xor_b32 v2, v2, v9")
    a("v_lshrrev_b32 v59, 3, v1")
    a("v_lshlrev_b32 v59, 11, v59")
    a(f"v_lshl_add_u32 v{VDA}, v2, 4, v59")
    a(f"v_xor_b32 v{VDA+1}, 32, v{VDA}")
    a(f"s_lshl_b32 s70, s{S_G}, 17")
    a(f"s_lshl_b32 s7, s{S_S}, 10")
    a("s_add_u32 s70, s70, s7")
    a("s_lshl_b32 s7, s3, 7")
    a("s_add_u32 s70, s70, s7")
    a("s_lshl_b32 s71, s3, 13")
    a(f"s_add_u32 s71, s71, {L_D}")
    a("v_bfe_u32 v59, v1, 2, 1")
    a("v_lshlrev_b32 v2, 11, v56")
    a("v_lshl_add_u32 v2, v57, 9, v2")
    a("v_lshl_add_u32 v2, v58, 7, v2")
    a("v_lshl_add_u32 v2, v59, 10, v2")
    a("v_lshl_add_u32 v2, v59, 5, v2")
    a("v_lshl_add_u32 v2, v57, 6, v2")
    a("v_and_b32 v59, 3, v1")
    a("v_lshl_add_u32 v2, v59, 3, v2")
    a(f"v_add_u32 v{VTR}, s71, v2")
    for t_ in range(1, 4):
        a(f"v_xor_b32 v{VTR+t_}, {32*t_}, v{VTR}")
    a("s_and_b32 s6, s3, 3")
    a("s_lshr_b32 s7, s3, 2")
    a("s_lshl_b32 s15, s6, 1")
    a("s_add_u32 s15, s15, s7")
    a("s_lshl_b32 s15, s15, 9")
    a(f"s_add_u32 s15, s15, {L_RED}")
    a(f"v_add_u32 v{VRD}, s15, v13")
    a("s_lshl_b32 s7, s7, 3")
    a("s_add_u32 s6, s6, s7")
    a("s_lshl_b32 s6, s6, 2")
    a("v_mul_u32_u24 v2, 144, v9")
    a(f"v_lshl_add_u32 v{VH}, v57, 6, v2")
    a(f"v_lshl_add_u32 v{VH}, v58, 4, v{VH}")
    a(f"v_lshl_add_u32 v{VH}, v56, 1, v{VH}")
    a(f"v_add_u32 v{VH}, s6, v{VH}")
    a("v_lshl_add_u32 v2, v8, 4, v2")
    a(f"v_mov_b32 v59, {L_ZERO-L_HB}")
    a(f"v_cndmask_b32 v{VA}, v59, v2, s[12:13]")
    a(f"v_cndmask_b32 v{VA+1}, v2, v59, s[12:13]")
    a(f"s_lshl_b32 s6, s{S_G}, 1")
    a(f"s_add_u32 s6, s6, s{S_S}")
    a("s_lshl_b32 s6, s6, 12")
    a(f"s_add_u32 s6, s6, {WS_PRE}")
    a(f"v_add_u32 v{VPO}, s6, v14")
    a(f"v_xor_b32 v{VPP}, 4096, v{VPO}")
    a(f"s_lshl_b32 s6, s{S_S}, 3")
    a("s_add_u32 s6, s6, s3")
    a("s_lshl_b32 s6, s6, 17")
    a(f"s_lshl_b32 s7, s{S_G}, 8")
    a("s_add_u32 s6, s6, s7")
    a(f"s_add_u32 s6, s6, {WS_PART}")
    a(f"v_lshl_add_u32 v{VPT}, v56, 15, s6")
    a(f"v_lshl_add_u32 v{VPT}, v58, 14, v{VPT}")
    a(f"v_lshl_add_u32 v{VPT}, v57, 7, v{VPT}")
    a(f"v_lshl_add_u32 v{VPT}, v9, 4, v{VPT}")
    a(f"v_add_u32 v4, 0x10000, v{VPT}")
    a(f"v_mov_b32 v13, s{S_TB}")
    a("v_mov_b32 v60, 0x7ffffff0")
    a("s_mov_b32 s14, 0")
    wloads(c["n1"] + 2, c["n2"])
    a("s_lshl_b32 s6, s3, 11")
    a(f"s_add_u32 s6, s6, {WS_RG}")
    a("v_add_u32 v5, s6, v3")
    a("s_barrier")
    for q in range(2):
        a(f"global_load_dwordx4 {vr(PL+4*q,4)}, v5, {sr(S_WS,2)} offset:{1024*q} sc1")
    a("s_barrier")
    n2 = c["n2"]
    assert n2 >= 8 and n2 % 2 == 0
    n3 = c["n3"]
    wloads(n2, n3)
    def perms(kap, ps=(0, 1, 2, 3)):
        for e in range(8):
            for p in ps:
                a(f"v_perm_b32 v{O+32*kap+4*e+p}, v{R+32*kap+4*(2*p+1)+e//2}, v{R+32*kap+4*(2*p)+e//2}, s{64+e%2}")
    pe = list(range((n2-8)//2)); pl = list(range((n2-8)//2, 4))
    a("s_lshl_b32 s11, s3, 12")
    a(f"s_add_u32 s11, s11, {L_RED}")
    a("s_mov_b32 s10, 0xffffff00")
    stamp(a, 4)
    a(f"s_waitcnt vmcnt({n3-n2})")
    a("LM_poll1:")
    a(f"v_xor_b32 v2, s{S_TAG}, v{PL+1}")
    for i in (3, 5, 7):
        a(f"v_bitop3_b32 v2, v{PL+i}, s{S_TAG}, v2 bitop3:0xbe")
    a("v_cmp_ne_u32 vcc, 0, v2")
    a("s_cbranch_vccz LM_poll1_ok")
    a("s_add_u32 s14, s14, 1")
    a(f"s_cmp_ge_u32 s14, {SPIN}")
    a("s_cbranch_scc1 LM_poll1_ok")
    a("s_mov_b64 exec, vcc")
    for q in range(2):
        a(f"global_load_dwordx4 {vr(PL+4*q,4)}, v5, {sr(S_WS,2)} offset:{1024*q} sc1")
    a("s_mov_b64 exec, -1")
    a("s_waitcnt vmcnt(0)")
    a("s_branch LM_poll1")
    a("LM_poll1_ok:")
    if STAMP["on"]: a(f"s_mov_b32 s{ST0+24}, s14")
    stamp(a, 5)
    for i in range(4):
        a(f"v_and_or_b32 v{KEY+i}, v{PL+2*i}, s66, v{IDX+i}")
    a(f"v_max_u32 v36, v{KEY}, v{KEY+1}")
    a(f"v_min_u32 v37, v{KEY}, v{KEY+1}")
    a(f"v_med3_u32 v38, v36, v{KEY+2}, v{KEY+3}")
    a(f"v_max3_u32 v36, v36, v{KEY+2}, v{KEY+3}")
    a("v_max_u32 v37, v37, v38")
    a(f"ds_write_b64 v14, v[36:37] offset:{L_MB}")
    a(f"ds_write2_b32 v15, v{PL}, v{PL+2} offset0:0 offset1:1")
    a(f"ds_write2_b32 v15, v{PL+4}, v{PL+6} offset0:128 offset1:129")
    a("s_waitcnt lgkmcnt(2)")
    a("s_barrier")
    a("s_cmp_lg_u32 s3, 0")
    a("s_cbranch_scc1 LM_notopk")
    a("v_lshlrev_b32 v2, 3, v1")
    P = ACC
    for i in range(4):
        a(f"ds_read2st64_b64 {vr(P+4*i,4)}, v2 offset0:{L_MB//512+2*i} offset1:{L_MB//512+2*i+1}")
    a("s_waitcnt lgkmcnt(3)")
    a(f"v_max_u32 v36, v{P}, v{P+2}")
    a(f"v_min_u32 v37, v{P}, v{P+2}")
    a(f"v_max3_u32 v37, v37, v{P+1}, v{P+3}")
    for i in range(1, 4):
        a(f"s_waitcnt lgkmcnt({3-i})")
        a(f"v_med3_u32 v38, v36, v{P+4*i}, v{P+4*i+2}")
        a(f"v_max3_u32 v36, v36, v{P+4*i}, v{P+4*i+2}")
        a(f"v_max3_u32 v39, v38, v{P+4*i+1}, v{P+4*i+3}")
        a("v_max_u32 v37, v37, v39")
    a(f"v_max_u32_dpp v38, v36, v36 quad_perm:[1,0,3,2] {DPP_FULL}")
    a("s_nop 1")
    a(f"v_max_u32_dpp v38, v38, v38 quad_perm:[2,3,0,1] {DPP_FULL}")
    a("s_nop 1")
    a(f"v_max_u32_dpp v38, v38, v38 row_half_mirror {DPP_FULL}")
    a("s_nop 1")
    a(f"v_min_u32_dpp v39, v38, v38 row_mirror {DPP_FULL}")
    a(f"v_max_u32_dpp v38, v38, v38 row_mirror {DPP_FULL}")
    a("s_nop 0")
    a("v_min_u32_dpp v39, v39, v39 row_bcast:15 row_mask:0xa bank_mask:0xf")
    a("v_max_u32_dpp v38, v38, v38 row_bcast:15 row_mask:0xa bank_mask:0xf")
    a("s_nop 0")
    a("v_min_u32_dpp v39, v39, v39 row_bcast:31 row_mask:0xc bank_mask:0xf")
    a("v_max_u32_dpp v38, v38, v38 row_bcast:31 row_mask:0xc bank_mask:0xf")
    a("v_readlane_b32 s6, v39, 63")
    a("v_readlane_b32 s7, v38, 63")
    a("s_sub_u32 s14, s7, s6")
    a("s_lshr_b32 s14, s14, 2")
    a("LM_bis:")
    a("s_add_u32 s14, s14, s6")
    a("v_cmp_le_u32 s[68:69], s14, v36")
    a("v_cmp_le_u32 vcc, s14, v37")
    a("s_bcnt1_i32_b64 s15, s[68:69]")
    a("s_bcnt1_i32_b64 s67, vcc")
    a("s_add_u32 s67, s67, s15")
    a("s_cmp_eq_u32 s67, 8")
    a("s_cbranch_scc1 LM_bis_done")
    a("s_cmp_gt_u32 s67, 8")
    a("s_cselect_b32 s6, s14, s6")
    a("s_cselect_b32 s7, s7, s14")
    a("s_sub_u32 s14, s7, s6")
    a("s_lshr_b32 s14, s14, 1")
    a("s_cbranch_scc1 LM_bis")
    a("s_mov_b32 s14, s6")
    a("v_cmp_le_u32 s[68:69], s14, v36")
    a("v_cmp_le_u32 vcc, s14, v37")
    a("s_bcnt1_i32_b64 s15, s[68:69]")
    a("LM_bis_done:")
    a("v_mbcnt_lo_u32_b32 v38, s68, 0")
    a("v_mov_b32 v39, s15")
    a("v_mbcnt_hi_u32_b32 v38, s69, v38")
    a("v_mbcnt_lo_u32_b32 v39, vcc_lo, v39")
    a("v_lshlrev_b32 v38, 2, v38")
    a("v_mbcnt_hi_u32_b32 v39, vcc_hi, v39")
    a("v_mov_b32 v40, s14")
    a("v_and_b32 v38, 28, v38")
    a("v_lshlrev_b32 v39, 2, v39")
    a(f"ds_write_b32 v12, v40 offset:{L_TAU}")
    a("v_and_b32 v39, 28, v39")
    a("s_mov_b64 exec, s[68:69]")
    a(f"ds_write_b32 v38, v36 offset:{L_SEL}")
    a("s_mov_b64 exec, vcc")
    a(f"ds_write_b32 v39, v37 offset:{L_SEL}")
    a("s_mov_b64 exec, -1")
    a("s_branch LM_topk_done")
    a("LM_notopk:")
    perms(0); perms(1, pe)
    a("LM_topk_done:")
    a("s_waitcnt lgkmcnt(0)")
    a("s_barrier")
    stamp(a, 6)
    def xsel():
        a(f"ds_read_b32 v36, v{VSL} offset:{L_SEL}")
        a(f"ds_read_b32 v37, v12 offset:{L_TAU}")
        a("s_waitcnt lgkmcnt(1)")
        a("v_not_b32 v38, v36")
        a("v_and_b32 v39, 2047, v38")
        a("v_lshlrev_b32 v38, 11, v39")
        a("v_lshl_add_u32 v38, v10, 1, v38")
        a("v_cndmask_b32 v40, v60, v38, s[12:13]")
        a("v_cndmask_b32 v41, v38, v60, s[12:13]")
        a(f"buffer_load_dwordx4 {vr(B,4)}, v40, {sr(SRD_X,4)}, 0 offen")
        a(f"buffer_load_dwordx4 {vr(B+12,4)}, v41, {sr(SRD_X,4)}, 0 offen offset:64")
    xsel()
    dnt = "" if c["dpre"] else " nt"
    def dloads(lo, hi_):
        for i in range(lo, hi_):
            a(f"s_add_u32 m0, s71, {1024*i}")
            a(f"s_add_u32 s7, s70, {8*i*2048}")
            a(f"buffer_load_dwordx4 v{VDA+i%2}, {sr(SRD_WD,4)}, s7 offen{dnt} lds")
    nd1 = c["nd1"]
    a("s_waitcnt lgkmcnt(0)")
    a("s_mov_b32 s6, 0")
    for i in range(4):
        a(f"v_cmp_le_u32 vcc, v37, v{KEY+i}")
        a("s_bcnt1_i32_b64 s7, vcc")
        a("s_add_u32 s6, s6, s7")
    a("v_mov_b32 v2, s6")
    a("s_mov_b64 exec, 1")
    a(f"ds_add_u32 v12, v2 offset:{L_CNT}")
    a("s_mov_b64 exec, -1")
    a("s_waitcnt lgkmcnt(0)")
    a("s_barrier")
    a(f"ds_read_b32 v2, v12 offset:{L_CNT}")
    if n3 < 16:
        wloads(n3, 16)
        a("s_barrier")
    dloads(0, nd1)
    a("s_cmp_lg_u32 s3, 0")
    a("s_cbranch_scc1 LM_noperm")
    perms(0); perms(1, pe)
    a("LM_noperm:")
    a("s_waitcnt lgkmcnt(0)")
    a("v_readfirstlane_b32 s6, v2")
    a("s_cmp_eq_u32 s6, 8")
    a("s_cbranch_scc0 LM_slow")
    a("LM_verified:")
    a("v_lshlrev_b32 v39, 2, v39")
    a(f"ds_read_b32 v33, v39 offset:{L_RG}")
    a("s_mov_b32 m0, s11")
    pm = [p for p in pl if 8 + 2*p < n3]
    a(f"s_waitcnt vmcnt({nd1+2+16-n3})")
    perms(1, pm)
    a(f"s_waitcnt vmcnt({nd1})")
    perms(1, [p for p in pl if p not in pm])
    stamp(a, 7)
    seen = set()
    def gm(j, kap, hf):
        a(f"v_mfma_f32_16x16x32_bf16 {vr(ACC+4*j,4)}, {vr(O+32*kap+4*(j+4*hf),4)}, {vr(B+8*kap+4*hf,4)}, {vr(ACC+4*j,4) if j in seen else 0}")
        seen.add(j)
    def rw(j, rs):
        for r in rs: a(f"ds_write_addtid_b32 v{ACC+4*j+r} offset:{1024*j+256*r}")
    for n_, (j, kap, hf) in enumerate(((0,0,0), (0,1,1), (1,0,0), (1,1,1))):
        gm(j, kap, hf)
        for q in (2*(n_%2), 2*(n_%2)+1):
            if n_ < 2: a(f"v_mov_b32_dpp v{B+4+q}, v{B+q} row_shr:8 {DPP_FULL} bound_ctrl:0")
            else:      a(f"v_mov_b32_dpp v{B+8+q}, v{B+12+q} row_shl:8 {DPP_FULL} bound_ctrl:0")
    gm(0,0,1); gm(1,0,1); gm(0,1,0); gm(1,1,0)
    for j in (2, 3):
        gm(j,0,0); gm(j,1,1); gm(j,0,1); gm(j,1,0)
    rw(0, range(4)); rw(1, range(4)); rw(2, range(4)); rw(3, range(4))
    a("s_waitcnt lgkmcnt(0)")
    a("s_barrier")
    for w in range(8):
        a(f"ds_read2st64_b32 {vr(O+2*w,2)}, v{VRD} offset0:{16*w} offset1:{16*w+1}")
    a("s_waitcnt lgkmcnt(4)")
    a(f"v_pk_add_f32 {vr(O,2)}, {vr(O,2)}, {vr(O+2,2)}")
    a(f"v_pk_add_f32 {vr(O+4,2)}, {vr(O+4,2)}, {vr(O+6,2)}")
    a("s_waitcnt lgkmcnt(2)")
    a(f"v_pk_add_f32 {vr(O+8,2)}, {vr(O+8,2)}, {vr(O+10,2)}")
    a(f"v_pk_add_f32 {vr(O,2)}, {vr(O,2)}, {vr(O+4,2)}")
    a("s_waitcnt lgkmcnt(0)")
    a(f"v_pk_add_f32 {vr(O+12,2)}, {vr(O+12,2)}, {vr(O+14,2)}")
    a(f"v_pk_add_f32 {vr(O,2)}, {vr(O,2)}, {vr(O+8,2)}")
    a(f"v_pk_add_f32 {vr(O,2)}, {vr(O,2)}, {vr(O+12,2)}")
    a(f"v_and_or_b32 v{O+2}, v{O}, s10, v13")
    a(f"v_and_or_b32 v{O+3}, v{O+1}, s10, v13")
    a(f"global_store_dwordx2 v{VPO}, {vr(O+2,2)}, {sr(S_WS,2)} sc1")
    stamp(a, 8)
    if c.get("ebar", 1): a("s_barrier")
    a("s_add_u32 s6, s2, s3")
    a("s_cmp_lg_u32 s6, 0")
    a("s_cbranch_scc1 LM_nokeys")
    a(f"v_mov_b32 v37, s{S_TAG}")
    a("v_lshlrev_b32 v38, 3, v1")
    a(f"v_add_u32 v38, {WS_KEYS}, v38")
    a(f"v_mov_b32 v39, {WS_E}")
    a("s_mov_b64 exec, 0xffff")
    a(f"global_store_dwordx2 v38, v[36:37], {sr(S_WS,2)} sc1")
    a("s_mov_b64 exec, 1")
    a(f"global_store_dword v39, v37, {sr(S_WS,2)} sc1")
    a("s_mov_b64 exec, -1")
    a("LM_nokeys:")
    nd2 = c.get("nd2", 8)
    dloads(nd1, nd2)
    a("v_ashrrev_i32 v38, 31, v36")
    a("v_not_b32 v38, v38")
    a("v_or_b32 v38, 0x80000000, v38")
    a("v_xor_b32 v32, v36, v38")
    a("v_and_b32 v32, 0xffff0000, v32")
    a("v_mul_f32 v32, 0xbfb8aa3b, v32")
    a("v_exp_f32 v32, v32")
    a("v_lshlrev_b32 v33, 16, v33")
    a("v_add_f32 v32, 1.0, v32")
    a("v_rcp_f32 v32, v32")
    a("v_sub_f32 v33, 1.0, v33")
    a("v_cvt_pk_bf16_f32 v32, v32, v32")
    a("v_lshlrev_b32 v32, 16, v32")
    a("v_mul_f32 v32, v32, v33")
    a("s_mov_b32 s14, 0")
    a(f"s_waitcnt vmcnt({nd2-nd1})")
    a(f"global_load_dwordx2 v[54:55], v{VPP}, {sr(S_WS,2)} sc1")
    dloads(nd2, 8)
    def dreads(kap):
        for t_ in range(4):
            for pp in range(2):
                a(f"ds_read_b64_tr_b16 {vr(DO+16*kap+4*t_+2*pp,2)}, v{VTR+t_} offset:{4096*kap+256*pp}")
    assert nd1 >= 4
    dreads(0)
    if nd2 == 8:
        a("s_waitcnt vmcnt(1)")
        dreads(1)
    a(f"s_waitcnt vmcnt({8-nd2})")
    a("LM_poll2:")
    a("v_xor_b32 v2, v13, v54")
    a("v_bitop3_b32 v2, v55, v13, v2 bitop3:0xbe")
    a("v_and_b32 v2, 0xff, v2")
    a("v_cmp_ne_u32 vcc, 0, v2")
    a("v_and_b32 v56, s10, v54")
    a("v_and_b32 v57, s10, v55")
    a("s_cbranch_vccnz LM_poll2_retry")
    a("LM_poll2_ok:")
    if STAMP["on"]: a(f"s_mov_b32 s{ST0+22}, s14")
    stamp(a, 9)
    a(f"v_pk_add_f32 v[54:55], v[56:57], {vr(O,2)}")
    a("s_nop 1")
    a("v_permlane32_swap_b32 v54, v55")
    a("v_cvt_pk_bf16_f32 v55, v54, v55")
    a("v_lshlrev_b32 v54, 16, v55")
    a("v_mul_f32 v56, 0xbfb8aa3b, v54")
    a("v_exp_f32 v56, v56")
    a("v_and_b32 v55, 0xffff0000, v55")
    a("v_add_f32 v56, 1.0, v56")
    a("v_rcp_f32 v56, v56")
    a("v_mul_f32 v55, v55, v32")
    a("v_mul_f32 v54, v54, v56")
    a("v_mul_f32 v54, v54, v55")
    a("v_cvt_pk_bf16_f32 v54, v54, v54")
    a(f"ds_write_b16 v{VH}, v54 offset:{L_HB}")
    if nd2 < 8:
        a("s_waitcnt vmcnt(0)")
        dreads(1)
        a("s_waitcnt lgkmcnt(8)")
    else:
        a("s_waitcnt lgkmcnt(0)")
    a("s_barrier")
    for kap in range(2):
        for hf in range(2):
            a(f"ds_read_b128 {vr(B+8*kap+4*hf,4)}, v{VA+hf} offset:{L_HB+64*kap}")
    for n_, (kap, hf) in enumerate(((0,0), (0,1), (1,0), (1,1))):
        a(f"s_waitcnt lgkmcnt({3-n_})")
        for j in range(2):
            a(f"v_mfma_f32_16x16x32_bf16 {vr(ACC+4*j,4)}, {vr(B+8*kap+4*hf,4)}, {vr(DO+16*kap+4*(2*j+hf),4)}, {vr(ACC+4*j,4) if n_ else 0}")
    a("s_nop 6")
    for j in range(2):
        for r in range(4):
            a(f"v_and_or_b32 v{ACC+4*j+r}, v{ACC+4*j+r}, s10, v13")
        a(f"global_store_dwordx4 v{(VPT, 4)[j]}, {vr(ACC+4*j,4)}, {sr(S_WS,2)} sc1")
    stamp(a, 10)
    if c.get("wb", 0) & 1:
        a("s_add_u32 s6, s5, s3")
        a("s_cmp_lg_u32 s6, 0")
        a("s_cbranch_scc1 LM_nowb")
        a("s_waitcnt vmcnt(0)")
        a("buffer_wbl2 sc1")
        a("s_waitcnt vmcnt(0)")
        a("LM_nowb:")
    stamp_dump(a, 0, 13)
    a("s_endpgm")
    a("LM_poll2_retry:")
    a("s_add_u32 s14, s14, 1")
    a(f"s_cmp_ge_u32 s14, {SPIN}")
    a("s_cbranch_scc1 LM_poll2_ok")
    a(f"global_load_dwordx2 v[54:55], v{VPP}, {sr(S_WS,2)} sc1")
    a("s_waitcnt vmcnt(0)")
    a("s_branch LM_poll2")
    a("LM_slow:")
    a("s_waitcnt vmcnt(0)")
    KS = DO
    a("v_lshlrev_b32 v56, 4, v1")
    for i in range(8):
        a(f"ds_read_b128 {vr(KS+4*i,4)}, v56 offset:{L_RG+1024*i}")
    a("v_lshlrev_b32 v57, 2, v1")
    a("v_sub_u32 v57, 2047, v57")
    a("s_waitcnt lgkmcnt(0)")
    for i in range(32):
        a(f"v_subrev_u32 v58, {256*(i//4)+i%4}, v57")
        a(f"v_and_or_b32 v{KS+i}, v{KS+i}, s66, v58")
    a("s_mov_b32 s14, -1")
    a("s_mov_b32 s6, 0")
    a("LM_slow_rnd:")
    for i in range(0, 32, 2):
        a(f"v_sub_u32 v57, s14, v{KS+i}")
        a(f"v_sub_u32 v58, s14, v{KS+i+1}")
        a("v_min_u32 v56, v57, v58" if i == 0 else "v_min3_u32 v56, v57, v58, v56")
    for st in (f"row_shr:1 {DPP_FULL}", f"row_shr:2 {DPP_FULL}", f"row_shr:4 {DPP_FULL}", f"row_shr:8 {DPP_FULL}",
               "row_bcast:15 row_mask:0xa bank_mask:0xf", "row_bcast:31 row_mask:0xc bank_mask:0xf"):
        a("s_nop 1")
        a(f"v_min_u32_dpp v56, v56, v56 {st}")
    a("s_nop 0")
    a("v_readlane_b32 s15, v56, 63")
    a("s_sub_u32 s14, s14, s15")
    a("v_mov_b32 v57, s6")
    a("v_mov_b32 v58, s14")
    a(f"ds_write_b32 v57, v58 offset:{L_SEL}")
    a("s_sub_u32 s14, s14, 1")
    a("s_add_u32 s6, s6, 4")
    a("s_cmp_lt_u32 s6, 32")
    a("s_cbranch_scc1 LM_slow_rnd")
    a("s_waitcnt lgkmcnt(0)")
    xsel()
    a("s_waitcnt vmcnt(0) lgkmcnt(0)")
    a("s_branch LM_verified")
    a("LM_spare:")
    a("s_waitcnt vmcnt(0)")
    stamp_dump(a, 0, 13)
    a("s_endpgm")

ROWB = 528
REG = 19008
YB, KB, UB = 0, 4608, 14320
KE, KO, TB = KB + 32, KB + 1252, KB + 2352
GB = 8 * REG
RED2 = GB + 8192
LDS_TOTAL = RED2 + 2048

def conv(a):
    c = CFG
    SETS = [dict(fill=1, par=2, gend=3, u1=4, bar2=5, tail=6, st0=7, st1=8, st2=9, st3=10),
            dict(karg=1, fill=2, par=3, kbar=4, eend=5, erd=6, gend=7, bar2=8, kmf=9, tail=10),
            dict(bar2=1, tail=2, rec=3, gb0=4, gb1=5, ba0=6, ba1=7, ba2=8, ba3=9, ba4=10)]
    def cst(nm):
        k = SETS[c.get("fine", 0)].get(nm)
        if k: stamp(a, k)
    C3, C5, C7, C9, C2 = 12, 16, 20, 24, 28
    ACC, A, T, BX, BR, EP, SD, U2 = 32, 64, 132, 172, 196, 232, 244, 248
    EOP, GOP, U1 = 64, 132, 232
    PL, TG = EP, SD
    VB, VU, VG, VY, VGW, VT0, VT1 = 2, 3, 4, 5, 6, 8, 9
    VUL, VOP, VK, VTP, VTQ, VOE, VZ, VDS = 48, 49, 50, 51, 52, 53, 54, 55
    VA0, VA1, VT = 60, 61, 62
    S_COL, S_REG, S_TAG = 60, 61, 66
    a("s_and_b32 s4, s2, 7")
    a("s_bfe_u32 s5, s2, 0x40003")
    a("s_lshl_b32 s6, s4, 4")
    a("s_add_u32 s63, s6, s5")
    a(f"s_lshl_b32 s{S_COL}, s63, 4")
    a("s_lshl_b32 s6, s63, 3")
    a("s_add_u32 s6, s6, s3")
    a("s_lshl_b32 s7, s6, 8")
    a("v_lshl_add_u32 v3, v1, 2, s7")
    a("s_lshl_b32 s7, s6, 1")
    a("s_and_b32 s7, s7, 0x7fc")
    a("s_and_b32 s11, s3, 1")
    a("s_lshl_b32 s11, s11, 4")
    a(f"v_lshlrev_b32 v{VUL}, 12, v0")
    a(f"v_sub_u32 v{VUL}, {1022*2048}, v{VUL}")
    a("v_lshlrev_b32 v11, 11, v0")
    a(f"s_mul_i32 s{S_REG}, s3, {REG}")
    a(f"s_mov_b32 m0, s{S_REG}")
    a("s_and_b32 s6, s5, 7")
    a("s_lshl_b32 s6, s6, 3")
    a("s_add_u32 s6, s6, s3")
    a("s_lshl_b32 s6, s6, 16")
    a(f"s_add_u32 s6, s6, s{S_COL}")
    a("v_lshlrev_b32 v2, 11, v1")
    a(f"s_add_u32 s8, s{S_COL}, {1 << 21}")
    a("s_waitcnt lgkmcnt(0)")
    cst("karg")
    a(f"s_load_dword s66, {sr(S_LDT,2)}, s7")
    a(f"s_load_dword s67, {sr(S_DSK,2)}, s7")
    PR = 196
    for i, s_ in enumerate((S_LA, S_AI, S_CR, S_CI)):
        a(f"global_load_dword v{PR+i}, v3, {sr(s_,2)}")
    a.srd(SRD_X, S_X, 4194304)
    a("s_barrier")
    a("s_mov_b32 exec_hi, 0")
    a(f"buffer_load_dword v10, v2, {sr(SRD_X,4)}, s6 offen")
    a("s_mov_b64 exec, -1")
    a("s_barrier")
    def utext(H, e, va=VUL):
        return f"buffer_load_dwordx4 {vr((U1, U2)[H]+4*e,4)}, v{va}, {sr(SRD_X,4)}, s{(S_COL, 8)[H]} offen offset:{e*2048}"
    def uload(H, e): a(utext(H, e))
    uload(0, 0)
    a.srd(SRD_OUT, S_OUT, 4194304)
    t0_, t1_, t2_, ta = 56, 57, 58, 59
    a(f"v_and_b32 v{ta}, 15, v1")
    a("v_lshrrev_b32 v7, 4, v1")
    a(f"v_lshl_add_u32 v{t0_}, v7, 3, v{ta}")
    a(f"v_min_u32 v{t0_}, 31, v{t0_}")
    a("s_lshl_b32 s9, s3, 2")
    a("s_lshr_b32 s6, 0x23452, s9")
    a("s_lshr_b32 s7, 0x29753, s9")
    a("s_and_b32 s6, s6, 15")
    a("s_and_b32 s7, s7, 15")
    a("s_add_u32 s6, s6, 16")
    a("s_bfm_b32 s6, s7, s6")
    a("s_cmp_eq_u32 s3, 4")
    a("s_movk_i32 s7, 0x3f80")
    a("s_cselect_b32 s7, 0xffff, s7")
    a(f"v_bfe_u32 v{t1_}, s6, v{t0_}, 8")
    a(f"v_lshl_or_b32 v{t1_}, v{t1_}, 15, v{t1_}")
    for p in range(4):
        if p: a(f"v_lshrrev_b32 v{C3+p}, {2*p}, v{t1_}")
        a(f"v_and_b32 v{C3+p}, 0x10001, v{C3+p if p else t1_}")
        a(f"v_mul_u32_u24 v{C3+p}, s7, v{C3+p}")
    a(f"s_mov_b32 s6, {GB}")
    a(f"v_lshl_add_u32 v{VG}, v1, 4, s6")
    a("s_lshl_b32 s6, s3, 10")
    a(f"v_add_u32 v{t1_}, s6, v{VG}")
    a(f"ds_write_b128 v{t1_}, {vr(C3,4)}")
    a(f"v_and_b32 v{t0_}, 31, v1")
    a(f"v_lshrrev_b32 v{t1_}, 5, v1")
    a(f"v_mul_u32_u24 v{VOP}, {ROWB}, v{t0_}")
    a(f"v_lshl_add_u32 v{t2_}, v{t1_}, 4, s{S_REG}")
    a(f"v_add_u32 v{VOP}, v{VOP}, v{t2_}")
    a(f"v_subrev_u32 v{VOE}, {ROWB}, v{VOP}")
    a(f"v_cmp_eq_u32 vcc, 0, v{t0_}")
    a(f"v_and_b32 v{t2_}, 0xff, v{VOE}")
    a(f"v_add_u32 v{t2_}, {RED2}, v{t2_}")
    a(f"v_cndmask_b32 v{VOE}, v{VOE}, v{t2_}, vcc")
    a(f"v_mov_b32 v{VZ}, 0")
    a("s_mov_b32 s14, 0xaaaaaaaa")
    a("s_mov_b32 s15, 0xaaaaaaaa")
    late = f"""
    v_lshlrev_b32 v{t2_}, 5, v{ta}
    s_add_u32 s6, s{S_REG}, {UB+480}
    v_sub_u32 v{VU}, s6, v{t2_}
    v_lshl_add_u32 v{VB}, v7, 4, v{VU}
    v_lshlrev_b32 v{VY}, 3, v7
    v_sub_u32 v{VU}, v{VU}, v{VY}
    v_mul_u32_u24 v{VY}, 144, v7
    v_lshl_add_u32 v{t2_}, v{ta}, 3, s{S_REG}
    v_add_u32 v{VY}, v{VY}, v{t2_}
    v_lshl_add_u32 v{VK}, v{t0_}, 4, s{S_REG}
    v_lshl_add_u32 v{VK}, v{t1_}, 3, v{VK}
    v_lshl_add_u32 v{VTQ}, v{t0_}, 1, s{S_REG}
    v_lshl_add_u32 v{VTQ}, v{t1_}, 7, v{VTQ}
    v_lshrrev_b32 v{t0_}, 1, v{t0_}
    v_lshl_add_u32 v{VTP}, v{t0_}, 2, s{S_REG}
    v_lshl_add_u32 v{VTP}, v{t1_}, 6, v{VTP}
    v_add_u32 v{t0_}, 192, v{VTP}
    v_cndmask_b32 v{VTP}, v{VTP}, v{t0_}, s[14:15]
    v_and_b32 v{t0_}, 14, v1
    v_lshlrev_b32 v{t0_}, 1, v{t0_}
    v_lshl_add_u32 v{t0_}, v7, 4, v{t0_}
    v_mov_b32 v{t1_}, {KO-28}
    v_mov_b32 v{t2_}, {KE-28}
    v_cndmask_b32 v{t1_}, v{t1_}, v{t2_}, s[14:15]
    v_add3_u32 v{VA0}, v{t0_}, v{t1_}, s{S_REG}
    v_add_u32 v{VA1}, 1024, v{VA0}
    v_lshlrev_b32 v{t0_}, 4, v7
    s_add_u32 s6, s{S_REG}, {TB}
    v_lshl_add_u32 v{VT}, v{ta}, 2, s6
    v_sub_u32 v{VT}, v{VT}, v{t0_}
    s_lshl_b32 s6, s3, 11
    s_add_u32 s6, s6, {WS_RG}
    v_lshl_add_u32 v{TG+3}, v1, 4, s6
    v_bfe_u32 v{t0_}, v1, 2, 2
    v_mul_u32_u24 v{VT0}, {REG}, v{t0_}
    v_and_b32 v{t0_}, 3, v1
    v_mul_u32_u24 v{t0_}, 144, v{t0_}
    s_lshr_b32 s6, s3, 2
    s_mul_i32 s6, s6, {576-128}
    s_lshl_b32 s7, s3, 5
    s_add_u32 s6, s6, s7
    v_lshl_add_u32 v{t1_}, v7, 3, s6
    v_add3_u32 v{VT0}, v{VT0}, v{t0_}, v{t1_}
    v_add_u32 v{VT1}, {4*REG}, v{VT0}
    v_and_b32 v{t0_}, 1, v1
    s_lshl_b32 s6, s3, 10
    s_add_u32 s6, s6, {GB}
    v_lshl_add_u32 v{VGW}, v{t0_}, 3, s6
    v_bfe_u32 v{t0_}, v1, 1, 2
    v_lshl_add_u32 v{VGW}, v{t0_}, 8, v{VGW}
    v_lshrrev_b32 v{t0_}, 3, v1
    v_lshl_add_u32 v{VGW}, v{t0_}, 4, v{VGW}
    """.strip().split("\n")
    if c["dpre"]:
        late += f"""
        s_mul_i32 s6, s5, 7
        s_min_u32 s7, s3, 6
        s_add_u32 s6, s6, s7
        s_lshr_b32 s7, s6, 4
        s_lshl_b32 s7, s7, 4
        s_add_u32 s6, s6, s7
        s_mul_i32 s7, s4, 224
        s_add_u32 s6, s6, s7
        s_lshl_b32 s6, s6, 12
        s_add_u32 s6, s6, {32*2048}
        v_and_b32 v{t0_}, 31, v1
        v_lshl_add_u32 v{TG+2}, v{t0_}, 7, s6
        """.strip().split("\n")
    late += f"""
    s_lshl_b32 s6, s63, 3
    s_add_u32 s6, s6, s3
    s_lshl_b32 s6, s6, 11
    s_add_u32 s6, s6, {WS_PART}
    v_bfe_u32 v{t0_}, v1, 3, 1
    v_lshl_add_u32 v{t0_}, v{t0_}, 2, v7
    v_lshlrev_b32 v{t0_}, 3, v{t0_}
    v_add_u32 v{t0_}, {WS_KEYS}, v{t0_}
    v_lshl_add_u32 v7, v1, 4, s6
    s_cmp_eq_u32 s3, 7
    s_cselect_b64 vcc, -1, 0
    v_cndmask_b32 v7, v7, v{t0_}, vcc
    s_add_u32 s9, s{S_COL}, {1 << 20}
    s_add_u32 s62, s{S_COL}, {3 << 20}
    """.strip().split("\n")
    for l in late: a(l.strip())
    late = []
    if c["wpre"]:
        a("s_lshl_b32 s6, s5, 3")
        a("s_lshr_b32 s7, s3, 1")
        a("s_add_u32 s6, s6, s7")
        a("s_lshl_b32 s6, s6, 3")
        a(f"s_add_u32 s6, s6, {32 + 8 - c['wpre']}")
        a("s_mul_i32 s6, s6, 7168")
        a("s_mul_i32 s7, s4, 896")
        a("s_add_u32 s6, s6, s7")
        a(f"s_lshr_b32 s7, s{S_WG}, 7")
        a("s_sub_u32 s7, s4, s7")
        a("s_add_u32 s7, s7, 3")
        a("s_and_b32 s7, s7, 7")
        a("s_min_u32 s7, s7, 6")
        a("s_lshl_b32 s7, s7, 7")
        a(f"s_sub_u32 s7, s7, {4*7168}")
        a("v_and_b32 v56, 7, v1")
        a("v_cmp_eq_u32 vcc, 7, v56")
        a("v_lshlrev_b32 v56, 7, v56")
        a("v_mov_b32 v57, s7")
        a("v_lshrrev_b32 v58, 3, v1")
        a("v_cndmask_b32 v56, v56, v57, vcc")
        a("v_mul_u32_u24 v58, 7168, v58")
        a("v_add3_u32 v0, v56, v58, s6")
        m = sum((0xff if c["wpre"] == 4 else 0x7f) << (8*i) for i in range(c["wpre"]))
        a(f"s_mov_b32 s70, {m & 0xffffffff:#x}")
        a(f"s_mov_b32 s71, {m >> 32:#x}")
        a("s_bitcmp1_b32 s3, 0")
        a(f"s_cselect_b64 s[12:13], {sr(S_WU,2)}, {sr(S_WG,2)}")
    a("s_mov_b32 s64, 0x05040100")
    a("s_mov_b32 s65, 0x07060302")
    a("s_lshl_b32 s68, s3, 8")
    a(f"s_add_u32 s68, s68, {UB}")
    a(f"s_add_u32 s69, s68, {4*REG}")
    a("s_mov_b32 s10, 0")
    a(f"v_mov_b32 v{t2_}, 0x3f80")
    a(f"ds_write_addtid_b32 v{VZ} offset:{UB+4096}")
    a(f"ds_write_addtid_b32 v{VZ} offset:{UB+4096+256}")
    a("s_lshl_b32 s6, s3, 8")
    a(f"s_add_u32 s6, s6, {RED2}")
    a(f"v_lshl_add_u32 v{t1_}, v1, 2, s6")
    a(f"ds_write_b32 v{t1_}, v{t2_}")
    a("s_waitcnt lgkmcnt(0)")
    d = 200
    a("s_lshr_b32 s66, s66, s11")
    a("s_lshr_b32 s67, s67, s11")
    a("s_lshl_b32 s66, s66, 16")
    a("s_lshl_b32 s67, s67, 16")
    a(f"v_mov_b32 v{d}, {LOG2E}")
    a(f"v_mul_f32 v{d}, s66, v{d}")
    a(f"v_exp_f32 v{d}, v{d}")
    a(f"v_mov_b32 v{VDS}, 0")
    a(f"v_cvt_pk_bf16_f32 v{d}, v{d}, v{d}")
    a(f"v_writelane_b32 v{VDS}, s67, 0")
    a("s_mov_b64 exec, 1")
    a(f"v_add_f32 v{VDS}, -1.0, v{VDS}")
    a("s_mov_b64 exec, -1")
    a(f"v_lshlrev_b32 v{d}, 16, v{d}")
    a(f"v_mul_f32 v202, 0xbfb8aa3b, v{d}")
    a(f"v_mul_f32 v203, {INV2PI}, v{d}")
    a(f"v_add_f32 v{d}, v{d}, v{d}")
    nx = [GOP]
    def newp():
        p = (nx[0], nx[0] + 2); nx[0] += 4; return p
    W1, W8, W256, G0 = newp(), newp(), newp(), newp()
    TT = newp()
    PK = [nx[0], nx[0] + 2, nx[0] + 4]; nx[0] += 8
    Z = 204
    X_ = 208
    cst("fill")
    a("s_waitcnt vmcnt(2)")
    cst("par")
    a(f"v_lshlrev_b32 v{Z}, 16, v{PR}")
    a(f"v_and_b32 v{Z+2}, 0xffff0000, v{PR}")
    a(f"v_mul_f32 v{Z}, {LOG2E}, v{Z}")
    a(f"v_mul_f32 v{Z+2}, {LOG2E}, v{Z+2}")
    a(f"v_exp_f32 v{Z}, v{Z}")
    a(f"v_exp_f32 v{Z+2}, v{Z+2}")
    a(f"v_lshlrev_b32 v{Z+1}, 16, v{PR+1}")
    a(f"v_cvt_pk_bf16_f32 v{Z+2}, v{Z}, v{Z+2}")
    a(f"v_and_b32 v{Z+3}, 0xffff0000, v{PR+1}")
    a(f"v_lshlrev_b32 v{Z}, 16, v{Z+2}")
    a(f"v_and_b32 v{Z+2}, 0xffff0000, v{Z+2}")
    a(f"v_pk_mul_f32 {vr(Z,2)}, {vr(Z,2)}, v[202:203]")
    a(f"v_pk_mul_f32 {vr(Z+2,2)}, {vr(Z+2,2)}, v[202:203]")
    def wexp(sc, W):
        L = []
        for m in range(2):
            if sc:
                L += [f"v_mul_f32 v{X_+2*m}, {sc}, v{Z+2*m}", f"v_mul_f32 v{X_+1+2*m}, {sc}, v{Z+1+2*m}"]
        src = X_ if sc else Z
        for m in range(2):
            L += [f"v_fract_f32 v{X_+1+2*m}, v{src+1+2*m}"]
        for m in range(2):
            L += [f"v_exp_f32 v{X_+2*m}, v{src+2*m}", f"v_cos_f32 v{W[m]}, v{X_+1+2*m}", f"v_sin_f32 v{W[m]+1}, v{X_+1+2*m}"]
        for m in range(2):
            L += [f"v_pk_mul_f32 {vr(W[m],2)}, {vr(W[m],2)}, {vr(X_+2*m,2)} op_sel:[0,0] op_sel_hi:[1,0]"]
        return L
    for l in wexp("0x41000000", W8): a(l)
    if c.get("kbar", 1): a("s_barrier")
    cst("kbar")
    kk = [0]
    def run_steps(steps, neg, hooks={}):
        n = "-" if neg else ""
        pend = None; pw = None
        for si, (dst, src, w, rows) in enumerate(steps + [(None,)*4, (None,)*4]):
            x = y = [None, None]
            if w is not None:
                x = cmul(dst[0], src[0], w[0], TT[0]); y = cmul(dst[1], src[1], w[1], TT[1])
            cA = cB = None
            if pend:
                p = PK[kk[0] % 3]; kk[0] += 1
                cA = f"v_cvt_pk_bf16_f32 v{p}, v{pend[0][0]}, {n}v{pend[0][0]+1}"
                cB = f"v_cvt_pk_bf16_f32 v{p+1}, v{pend[0][1]}, {n}v{pend[0][1]+1}"
            wa = [f"ds_write_addtid_b32 v{pw[0]} offset:{r*ROWB}" for r in pw[1]] if pw else []
            wb = [f"ds_write_addtid_b32 v{pw[0]+1} offset:{r*ROWB+256}" for r in pw[1]] if pw else []
            for s_ in [x[0], y[0]] + wa + hooks.get(si, []) + [cA, x[1], y[1]] + wb + [cB]:
                if s_: a(s_)
            pw = (p, pend[1]) if pend else None
            pend = (dst, rows) if rows else None
    EA, EB = newp(), newp()
    steps = [(W8, None, None, [0])]
    cur = W8
    for b in range(2, 32):
        nxt = EA if b % 2 == 0 else EB
        steps.append((nxt, cur, W8, [b-1])); cur = nxt
    eh = {c["u1at"]: [utext(0, 1)]}
    assert c.get("kbar", 1)
    for i in range(5):
        eh.setdefault(8 + 3*i, []).append(f"ds_read_b128 {vr(C3+4*i,4)}, v{VG} offset:{1024*i}")
    if c["wpre"]:
        pass
    a(".p2align 3")
    run_steps(steps, False, eh)
    cst("eend")
    sb = [f"v_lshlrev_b32 v{G0[0]}, 16, v{PR+2}", f"v_and_b32 v{G0[1]}, 0xffff0000, v{PR+2}",
          f"v_lshlrev_b32 v{G0[0]+1}, 16, v{PR+3}", f"v_and_b32 v{G0[1]+1}, 0xffff0000, v{PR+3}",
          f"v_pk_mul_f32 {vr(G0[0],2)}, {vr(G0[0],2)}, {vr(d,2)} op_sel:[0,0] op_sel_hi:[1,0]",
          f"v_pk_mul_f32 {vr(G0[1],2)}, {vr(G0[1],2)}, {vr(d,2)} op_sel:[0,0] op_sel_hi:[1,0]"]
    sb += wexp(None, W1) + wexp("0x43800000", W256)
    for s_ in range(16):
        a(f"ds_read_b128 {vr(EOP+4*s_,4)}, v{VOE} offset:{32*s_}")
        if s_ % 2 == 1 and s_ >= 3:
            for _ in range(5):
                if sb: a(sb.pop(0))
    assert not sb
    cst("erd")
    if c.get("gprio", 1): a("s_setprio 1")
    if c.get("gsync", 0): a("s_barrier")
    def drow(r, h): return 8*(r//4) + 4*h + (r % 4)
    want = {}
    def put(al, r, h): want.setdefault(al, []).append(drow(r, h))
    for h in range(2):
        for j in range(4): put(4*h + j, j, h)
        for j in range(3): put(256 + 4*h + 2*j, 4 + j, h)
        put(4*h + 4, 7, h)
        for j in range(2): put(512 + 256*h + 4 + 4*j, 8 + j, h)
        for q in range(2): put(1024 + 512*h + 256*q + 8, 10 + q, h)
    keep = {al: newp() for al in (2, 4, 6, 8)}
    tA, tB = EA, EB
    steps = []
    def st(al, dst, src, w): steps.append((dst, src, w, want.pop(al)))
    st(0, G0, None, None)
    cur = G0
    for al in range(1, 9):
        dd = keep.get(al) or (tA if al % 4 == 1 else tB)
        st(al, dd, cur, W1); cur = dd
    c8 = [keep[8], tA]; c4 = [keep[4], tB]
    e1 = newp()
    singles = [(256, G0), (258, keep[2]), (262, keep[6])]
    for k in range(1, 8):
        st(256*k + 8, c8[k % 2], c8[(k-1) % 2], W256)
        if k <= 3: st(256*k + 4, c4[k % 2], c4[(k-1) % 2], W256)
        elif singles:
            al, src = singles.pop(0)
            st(al, e1, src, W256)
    assert not want and not singles and nx[0] <= GOP + 64
    hooks = {1: [f"s_load_dwordx2 s[66:67], {sr(S_DBG,2)}, 0"]}
    if c["wpre"]:
        hooks.setdefault(c["wpat"], []).extend(["s_mov_b64 exec, s[70:71]", "global_load_dword v10, v0, s[12:13]", "s_mov_b64 exec, -1"])
    a(".p2align 3")
    if c["gb"] == 0:
        run_steps(steps, True, hooks)
    else:
        ring = [212 + 2*i for i in range(10)]; k = 0; pend = None; ready = []
        for si, (dst, src, w, rows) in enumerate(steps + [(None,)*4]):
            x = y = [None, None]
            if w is not None:
                x = cmul(dst[0], src[0], w[0], TT[0]); y = cmul(dst[1], src[1], w[1], TT[1])
            cA = cB = None
            if pend:
                p = ring[k % 10]; k += 1
                cA = f"v_cvt_pk_bf16_f32 v{p}, v{pend[0][0]}, -v{pend[0][0]+1}"
                cB = f"v_cvt_pk_bf16_f32 v{p+1}, v{pend[0][1]}, -v{pend[0][1]+1}"
                ready.append((p, pend[1]))
            for s_ in [x[0], y[0], cA, x[1], y[1], cB]:
                if s_: a(s_)
            if len(ready) >= c["gb"] or dst is None:
                for p, rows_ in ready:
                    for r in rows_:
                        a(f"ds_write_addtid_b32 v{p} offset:{r*ROWB}")
                        a(f"ds_write_addtid_b32 v{p+1} offset:{r*ROWB+256}")
                ready = []
            for h_ in hooks.get(si, []): a(h_)
            pend = (dst, rows) if rows else None
    cst("gend")
    uload(1, 0)
    a(f"v_mov_b32 v0, v{VUL}")
    nv0 = 1 + (1 if c["wpre"] else 0)
    def rec_loads():
        for q in range(2):
            a(f"global_load_dwordx4 {vr(PL+4*q,4)}, v{TG+3}, {sr(S_WS,2)} offset:{1024*q} sc1")
    GA = T + 24
    def gather_loads():
        for q in range(2):
            a(f"global_load_dwordx4 {vr(GA+4*q,4)}, v7, {sr(S_WS,2)} offset:{1024*q} sc1")
    def bslot(k): return BR + 4*k
    def btext(cc, k):
        return f"ds_read_b128 {vr(bslot(k),4)}, v{VB} offset:{3584 - 512*cc + (64*k if k < 8 else 16)}"
    def atext(tt, hf):
        base, o = (VA0, 16*tt) if tt < 16 else (VA1, 0)
        return f"ds_read2_b32 {vr(A+4*tt+2*hf,2)}, v{base} offset0:{o+2*hf} offset1:{o+2*hf+1}"
    aorder = [x for t0 in range(1, 8) for x in (t0, t0+8)] + [0, 8, 16]
    border = (1, 2, 3, 4, 5, 6, 7, 0, 8)
    TP12 = {dl: T + 4*(dl-2) for dl in (2, 3, 4)}
    TP34 = {dl: T + 12 + 4*(dl-2) for dl in (2, 3, 4)}
    TQ = {dl: T + 24 + 4*(dl-4) for dl in (4, 5, 6, 7)}
    tl = []
    for tab, off, dls in ((TP12, -16, 2), (TP34, 32, 2), (TP12, -16, 3), (TP34, 32, 3), (TP12, -16, 4), (TP34, 32, 4),
                          (TQ, 48, 4), (TQ, 48, 5), (TQ, 48, 6), (TQ, 48, 7)):
        o = off + 16*dls; r = tab[dls]
        tl.append((("T", r, 0), f"ds_read2_b32 {vr(r,2)}, v{VT} offset0:{o} offset1:{o-1}"))
        tl.append((("T", r, 1), f"ds_read2_b32 {vr(r+2,2)}, v{VT} offset0:{o-2} offset1:{o-3}"))
    mtext = lambda dd, ra, rb, cin: f"v_mfma_f32_16x16x32_bf16 {vr(dd,4)}, {vr(ra,4)}, {vr(rb,4)}, {cin}"
    boxes = ((0, 0, C3), (1, 0, C5), (4, 0, C7), (2, 8, C3), (3, 8, C5), (5, 8, C9))
    D = 32

    def path(Y):
        n_ = "xy"[Y]
        P_ = lambda k: c[n_ + k]
        S = Sched(a, lat=c.get("lat", 5))
        r_ = S.raw
        vm = []
        def vmwait(nm): return f"s_waitcnt vmcnt({len(vm) - 1 - max(i for i, x in enumerate(vm) if x == nm)})"
        def u1block():
            r_(f"s_waitcnt vmcnt({nv0})")
            cst("u1")
            for ch in range(8):
                r_(f"v_perm_b32 v{BR+ch}, v{U1+ch//2}, v{U1+4+ch//2}, s{64+ch%2}")
            for ch in range(8):
                if ch % 4 == 0:
                    r_(f"s_mov_b32 m0, s{68+ch//4}"); r_("s_nop 0")
                S.lds(("uw", 0, ch), f"ds_write_addtid_b32 v{BR+ch} offset:{(ch%4)*REG+2048}")
        def bar2():
            r_("s_barrier")
            cst("bar2")
            rec_loads(); r_(utext(1, 1, 0), 3); vm.extend(["rec", "u2b"])
        def records():
            cst("rec")
            a(vmwait("rec"))
            a("s_xor_b32 s67, s67, 1")
            a(f"LC_poll1{n_}:")
            a(f"v_xor_b32 v{EP+8}, s66, v{PL+1}")
            for i in (3, 5, 7):
                a(f"v_bitop3_b32 v{EP+8}, v{PL+i}, s66, v{EP+8} bitop3:0xbe")
            a(f"v_or_b32 v{EP+8}, s67, v{EP+8}")
            a(f"v_cmp_ne_u32 vcc, 0, v{EP+8}")
            a(f"s_cbranch_vccnz LC_poll1{n_}_retry")
            a(f"LC_poll1{n_}_ok:")
            if STAMP["on"]: a(f"s_mov_b32 s{ST0+24}, s10")
            S.n += 9
        gv = [(("g", 2*q+i), f"v_lshlrev_b32_e64 v{PL+4*q+i}, 16, v{PL+4*q+2*i}") for q in range(2) for i in range(2)]
        gw = [(("gw", q), f"ds_write_b64 v{VGW}, {vr(PL+4*q,2)} offset:{128*q}") for q in range(2)]
        def gbar():
            cst("gb0"); r_("s_barrier"); cst("gb1")
        gtext = lambda s_: f"ds_read_b128 {vr(GOP+4*s_,4)}, v{VOP} offset:{32*s_}"
        zq = [(("z", z), f"ds_write_addtid_b32 v{VZ} offset:{z}") for z in (KB, KB+1056, KB+2288, KB+2288+256)]
        lat0, S.lat = S.lat, 99
        NG = 6
        if Y:
            u1block()
            r_(f"s_mov_b32 m0, s{S_REG}")
        for s_ in range(NG): S.lds(("G", s_), gtext(s_))
        dsq = [(("G", s_), gtext(s_)) for s_ in range(NG, 16)] + zq
        for s_ in range(16):
            S.wait([("G", s_)])
            r_(f"v_mfma_f32_32x32x16_bf16 {vr(D,16)}, {vr(GOP+4*s_,4)}, {vr(EOP+4*s_,4)}, {vr(D,16) if s_ else 0}")
            for _ in range(2):
                if dsq: S.lds(*dsq.pop(0))
        assert not dsq
        cst("kmf")
        if (Y and c["yprio"] == 1) or not Y: r_("s_setprio 0")
        r_("s_waitcnt lgkmcnt(0)"); S.done = len(S.Q) - 1
        if Y and c["yb2"] == 0:
            bar2(); r_("s_nop 6", 7)
        else:
            r_("s_nop 10", 11)
        t = 64
        r_(f"v_add_f32 v{D}, v{D}, v{VDS}")
        r_(f"v_cvt_pk_bf16_f32 v{t+1}, v{D+2}, v{D+3}")
        r_(f"v_cvt_pk_bf16_f32 v{t}, v{D}, v{D+1}")
        r_(f"v_cvt_pk_bf16_f32 v{t+2}, v{D+4}, v{D+4}")
        r_(f"v_cvt_pk_bf16_f32 v{t+3}, v{D+5}, v{D+6}")
        r_(f"v_cvt_pk_bf16_f32 v{t+4}, v{D+1}, v{D+2}")
        r_(f"v_cvt_pk_bf16_f32 v{t+5}, v{D+3}, v{D+7}")
        r_(f"v_cvt_pk_bf16_f32 v{t+6}, v{D+4}, v{D+5}")
        r_(f"v_cvt_pk_bf16_f32 v{t+7}, v{D+6}, v{D+6}")
        r_(f"v_lshlrev_b32 v{t+8}, 16, v{t}")
        r_(f"v_mov_b32 v{t+10}, v{t+7}")
        r_(f"v_and_b32 v{t+11}, 0xffff, v{t+7}")
        u = 56
        r_(f"v_cvt_pk_bf16_f32 v{u+2}, v{D+9}, v{D+9}")
        r_(f"v_cvt_pk_bf16_f32 v{u}, v{D+8}, v{D+9}")
        r_(f"v_cvt_pk_bf16_f32 v{u+1}, v{D+10}, v{D+11}")
        r_(f"v_readlane_b32 s6, v{u+2}, 63")
        S.lds("k0", f"ds_write_b64 v{VK}, {vr(t,2)} offset:{KE}")
        S.lds("k1", f"ds_write_b64 v{VK}, {vr(t+4,2)} offset:{KO+4}")
        S.lds("k2", f"ds_write_b64 v{VK}, {vr(t+2,2)} offset:{KE+512}")
        S.lds("k3", f"ds_write_b64 v{VK}, {vr(t+6,2)} offset:{KO+4+512}")
        S.lds("k8", f"ds_write_b32 v{VTP}, v{u} offset:{TB+64}")
        S.lds("k9", f"ds_write_b16 v{VTQ}, v{u+1} offset:{TB+448}")
        S.lds("k10", f"ds_write_b16_d16_hi v{VTQ}, v{u+1} offset:{TB+448+64}")
        r_("s_mov_b64 exec, 1")
        S.lds("k4", f"ds_write_b32 v{VK}, v{t+8} offset:{KO}")
        r_("s_mov_b32 exec_lo, 0")
        r_("s_mov_b32 exec_hi, 0x80000000")
        S.lds("k5", f"ds_write_b64 v{VK}, {vr(t+10,2)} offset:{KE+1024-504}")
        S.lds("k6", f"ds_write_b32 v{VK}, v{t+10} offset:{KO+1028-504}")
        S.lds("k7", f"ds_write_b32 v{VK}, v{VZ} offset:{KO+1032-504}")
        r_("s_mov_b64 exec, -1")
        for p in range(4):
            r_(f"v_and_b32 v{C2+p}, s6, v{C2+p}")
        nA = 17
        if Y and c["yb2"] == 1: bar2()
        if not Y and c["xu1"] == 0: u1block()
        for i, tt in enumerate(aorder):
            if Y and i == c["yrec"]:
                records()
                for _, t_ in gv: r_(t_)
                for w_ in gw: S.lds(*w_)
            for hf in range(2): S.lds(("A", tt, hf), atext(tt, hf))
            if Y and i == min(c["yrec"] + 3, 16):
                S.wait([("gw", 1)]); gbar(); S.pos["gbar"] = S.n
        if Y and c["yprio"] == 2: r_("s_setprio 0")
        cst("tail")
        if not Y:
            if c["xT"] == 1:
                for w_ in tl: S.lds(*w_)
            if c["xu1"] == 1: u1block()
            S.wait([("uw", 0, 7)])
            bar2()
        for k in border: S.lds(("B", 0, k), btext(0, k))
        S.lat = lat0
        S.m = 50
        S.qm = [S.m] * len(S.Q)
        ms, fs = [], []
        M0_ = S.m
        started = set(); lastacc = {}
        def mm(cc, Tt, ra, rb, needs, dist=None):
            if Tt > 7: return None
            nm = ("m", len(ms))
            ms.append(Op("M", nm, mtext(ACC+4*Tt, ra, rb, vr(ACC+4*Tt,4) if Tt in started else 0), needs=needs, dist=dist))
            started.add(Tt); lastacc[Tt] = nm
            return nm
        for tt in aorder[nA:]:
            for hf in range(2): fs.append(Op("D", ("A", tt, hf), atext(tt, hf), after=[("A", tt, 0)] if hf else []))
        if Y or c["xT"] == 0:
            for nm, t_ in tl: fs.append(Op("D", nm, t_, after=[("T", nm[1], 0)] if nm[2] else [], at=M0_ + c.get("tat", 10)))
        def epilogue(t_, after):
            r = ACC + 4*t_
            alt = t_ >= 3 and t_ % 2 == 1
            E = U2 if alt else EP
            N = C7 if (alt and t_ >= 5) else EP + 8
            pl = {0: None, 1: 0, 2: 1, 3: None, 4: 2, 5: 3, 6: 4, 7: 5}[t_]
            pn = {0: None, 1: 0, 2: 1, 3: 2, 4: 3, 5: None, 6: 4, 7: 5}[t_]
            af = list(after) + ([("e", pl, 7)] if pl is not None else [])
            if t_ == 3: af += [("up", k) for k in range(8)]
            if t_ >= 4: af.append("ubar")
            fs.append(Op("D", ("u", t_), f"ds_read_b64 {vr(E,2)}, v{VU} offset:{3584-512*t_+24}", after=af))
            fs.append(Op("D", ("gl", t_), f"ds_read_b128 {vr(E+4,4)}, v{VG} offset:{1024*t_}", after=af + [("u", t_)]))
            L = [f"v_and_b32 v{N}, 0xffff0000, v{E+1}", f"v_lshlrev_b32_e64 v{N+1}, 16, v{E+1}",
                 f"v_and_b32 v{N+2}, 0xffff0000, v{E}", f"v_lshlrev_b32_e64 v{N+3}, 16, v{E}"]
            L += [f"v_fma_f32 v{r+i}, v{E+4+i}, v{r+i}, v{N+i}" for i in range(4)]
            L += [f"v_cvt_pk_bf16_f32 v{E+2}, v{r}, v{r+1}", f"v_cvt_pk_bf16_f32 v{E+3}, v{r+2}, v{r+3}"]
            for i, l in enumerate(L):
                af = [("e", t_, i-1)] if i else ([("e", pn, 7)] if pn is not None else [])
                if i == 0 and t_ == 5: af.append(("box", 3, 4))
                if i == 8 and pl is not None: af.append(("y", pl))
                fs.append(Op("V", ("e", t_, i), l, after=af, needs=[("gl", t_)] if i == 0 else [], dist={lastacc[t_]: 8} if i == 4 else None))
            fs.append(Op("D", ("y", t_), f"ds_write_b64 v{VY}, {vr(E+2,2)} offset:{YB+576*t_}", after=[("e", t_, 9)] + ([("y", t_-1)] if t_ else []),
                         cost=3, dl=lastacc[t_][1] + (c.get("epdl", 14) if t_ else 30)))
        nst = [0]; lastq = []; lastst = []
        def store(P, half=None):
            k = nst[0]; nst[0] += 1
            ytile = 2*P + 1 if half is None else 2*P + half
            prevbar = "gbar" if k == 0 else "ubar" if k == 1 else ("bar", k-1)
            fs.append(Op("X", ("bar", k), lambda: [r_("s_barrier"), cst(f"ba{ {1:0, 3:1, 5:2, 6:3, 7:4}.get(ytile) }")], needs=[("y", ytile)],
                         after=[prevbar], at=M0_ + c.get(f"{n_}b{k}", 0), dl=lastacc[ytile][1] + c.get("stdl", 22) - 7))
            if half is not None and half != Y: return
            fs.append(Op("D", ("t0", k), f"ds_read_b64_tr_b16 {vr(SD,2)}, v{VT0} offset:{YB+1152*P}", after=[("bar", k)] + lastst[-1:] + (["dpre"] if c["dpre"] else [])))
            fs.append(Op("D", ("t1", k), f"ds_read_b64_tr_b16 {vr(SD+2,2)}, v{VT1} offset:{YB+1152*P}", after=[("t0", k)]))
            def emit():
                r_(f"buffer_store_dwordx4 {vr(SD,4)}, v11, {sr(SRD_OUT,4)}, s{(S_COL, 9, 8, 62)[P]} offen" + (" nt" if c.get("ont", 0) else ""))
                vm.append(("st", k)); cst(f"st{P}")
            fs.append(Op("X", ("st", k), emit, needs=[("t1", k)], cost=2, dl=lastacc[ytile][1] + c.get("stdl", 22)))
            lastst.append(("st", k))
        for cc in range(8):
            hasP, hasQ = cc <= 5, cc <= 3
            def nxt(k, after):
                if cc < 7 and (k < 8 or cc + 1 <= 5):
                    fs.append(Op("D", ("B", cc+1, k), btext(cc+1, k), after=[after] + (["ubar"] if cc + 1 >= 4 else [])))
            an = (lambda tt: [("A", tt, 1)]) if cc == 0 else (lambda tt: [])
            tn = (lambda r: [("T", r, 1)]) if cc == 1 else (lambda r: [])
            zero = ((0, A, 0), (1, A+32, 8), (2, A+64, 16), (4, C2, None))
            mz = lambda dl, ra, tt: mm(cc, cc+dl, ra, bslot(0), [("B", cc, 0)] + (an(tt) if tt is not None else []))
            l0 = None
            if cc >= c.get("split", 5):
                for t0 in range(1, 8): mm(cc, cc, A+4*t0, bslot(t0), [("B", cc, t0)])
                l0 = mz(*zero[0])
                for t0 in range(1, 8):
                    if cc < 7: nxt(t0, mm(cc, cc+1, A+32+4*t0, bslot(t0), []))
                for z in zero[1:]: l0 = mz(*z) or l0
            else:
                for t0 in range(1, 8):
                    l = mm(cc, cc, A+4*t0, bslot(t0), [("B", cc, t0)] + an(t0))
                    l = mm(cc, cc+1, A+32+4*t0, bslot(t0), an(t0+8)) or l
                    nxt(t0, l)
                for z in zero: l0 = mz(*z) or l0
            if cc == 0:
                if not Y:
                    fs.append(Op("X", "rec", records, at=M0_ + c["xrec"], dl=-50, cost=8))
                    for nm, t_ in gv: fs.append(Op("V", nm, t_, after=["rec"]))
                    for q, (nm, t_) in enumerate(gw): fs.append(Op("D", nm, t_, after=[("g", 2*q), ("g", 2*q+1)], cost=3))
                    fs.append(Op("X", "gbar", gbar, needs=[("gw", 0), ("gw", 1)], at=M0_ + c["xgb"], dl=c["xgb"] - 20))
                if c["dpre"]:
                    def dp():
                        r_("s_mov_b32 exec_hi, 0"); r_(f"global_load_dword v10, v{TG+2}, {sr(S_WD,2)}"); r_("s_mov_b32 exec_hi, -1"); vm.append("dpre")
                    fs.append(Op("X", "dpre", dp, at=M0_ + P_("dp"), dl=P_("dp") - 20, cost=3))
                fs.append(Op("X", "u2w", lambda: r_(vmwait("u2b")), after=[("st", 0)], at=M0_ + P_("uw")))
                epilogue(0, ["gbar"])
                for hf in range(2):
                    for k in range(4):
                        ch = 4*hf + k
                        fs.append(Op("V", ("up", ch), f"v_perm_b32 v{SD+k}, v{U2+ch//2}, v{U2+4+ch//2}, s{64+ch%2}",
                                     after=["u2w"] + ([("uw", 1, ch-4)] if hf else []), dist={("st", 0): 2}))
                    fs.append(Op("X", ("um", hf), (lambda hf=hf: r_(f"s_mov_b32 m0, s{68+hf}")), after=[("uw", 1, 3)] if hf else []))
                    for k in range(4):
                        ch = 4*hf + k
                        fs.append(Op("D", ("uw", 1, ch), f"ds_write_addtid_b32 v{SD+k} offset:{k*REG}",
                                     after=[("up", ch)] + ([("uw", 1, ch-1)] if ch else []), dist={("um", hf): 1}))
                fs.append(Op("X", "ubar", lambda: r_("s_barrier"), needs=[("uw", 1, 7)], at=M0_ + c.get(n_ + "ub", 0)))
            else:
                epilogue(cc, [])
            if cc >= 4: store(cc//2, cc % 2)
            elif cc % 2 == 1: store(cc//2)
            if cc == 4:
                def gat():
                    gather_loads(); S.n += 2; vm.append("gat0"); vm.append("gat")
                fs.append(Op("X", "gat", gat, at=M0_ + P_("gat"), dl=P_("gat"), cost=3))
            pc = cc - 1
            if 0 <= pc <= 5:
                for dl in (2, 3, 4):
                    mm(cc, pc+dl, BX, TP12[dl], tn(TP12[dl]), {("cv", pc, 0, p): 2 for p in range(4)})
                    mm(cc, pc+dl, BX+8, TP34[dl], tn(TP34[dl]), {("cv", pc, 2, p): 2 for p in range(4)})
            if 0 <= pc <= 3:
                for dl in (4, 5, 6, 7):
                    mm(cc, pc+dl, BX+16, TQ[dl], tn(TQ[dl]), {("cv", pc, 4, p): 2 for p in range(4)})
            if cc == 4: lastq.append(ms[-1].name)
            if hasP:
                for (i, k, rc) in boxes:
                    if i < 4 or hasQ:
                        ms.append(Op("M", ("box", cc, i), mtext(BX+4*i, bslot(k), rc, 0), needs=[("B", cc, k)]))
                        if k == 0: l0 = ("box", cc, i)
                nxt(8, ms[-1].name)
                for i in ((0, 2, 4) if hasQ else (0, 2)):
                    for p in range(4):
                        fs.append(Op("V", ("cv", cc, i, p), f"v_cvt_pk_bf16_f32 v{BX+4*i+p}, v{BX+4*i+p}, v{BX+4*i+4+p}",
                                     dist={("box", cc, i): 8, ("box", cc, i+1): 8}))
            nxt(0, l0)
        [f for f in fs if f.name == "gat"][0].after += lastq
        S.log = []
        S.run(ms, fs, budget=lambda i: 2, wfree=c["wfree"],
              pre=[f.name for f in fs if f.name[0] == "A"], npre=2, lead={"B": c["blead"], "cv": c.get("clead", 8), "T": c.get("tlead", 8)})
        if c.get("log"): print(n_, "".join(S.log))
        a(vmwait("gat"))
    a("s_bitcmp1_b32 s3, 2")
    a("s_cbranch_scc1 LC_ypath")
    path(0)
    a("s_branch LC_final")
    a("LC_ypath:")
    path(1)
    a("LC_final:")
    a(f"s_and_b32 s7, s{S_TAG}, 0xff")
    a("s_mov_b32 s10, 0")
    a("s_cmp_eq_u32 s3, 7")
    a("s_cbranch_scc1 LC_poll4")
    a("LC_poll3:")
    a(f"v_xor_b32 v3, s7, v{GA}")
    for i in range(1, 8):
        a(f"v_bitop3_b32 v3, v{GA+i}, s7, v3 bitop3:0xbe")
    a("v_and_b32 v3, 0xff, v3")
    a("v_cmp_ne_u32 vcc, 0, v3")
    a("s_cbranch_vccnz LC_poll3_retry")
    a("LC_poll3_ok:")
    if STAMP["on"]: a(f"s_mov_b32 s{ST0+22}, s10")
    for i in range(8):
        a(f"v_xor_b32 v{GA+i}, s7, v{GA+i}")
    a(f"v_pk_add_f32 {vr(GA,2)}, {vr(GA,2)}, {vr(GA+4,2)}")
    a(f"v_pk_add_f32 {vr(GA+2,2)}, {vr(GA+2,2)}, {vr(GA+6,2)}")
    a("s_lshl_b32 s6, s3, 8")
    a(f"s_add_u32 m0, s6, {RED2}")
    a(f"v_permlane32_swap_b32 v{GA}, v{GA+2}")
    a(f"v_permlane32_swap_b32 v{GA+1}, v{GA+3}")
    a(f"v_pk_add_f32 {vr(GA,2)}, {vr(GA,2)}, {vr(GA+2,2)}")
    a("s_nop 1")
    a(f"v_permlane16_swap_b32 v{GA}, v{GA+1}")
    a(f"v_add_f32 v{GA}, v{GA}, v{GA+1}")
    a(f"ds_write_addtid_b32 v{GA}")
    a("s_waitcnt lgkmcnt(0)")
    a("s_barrier")
    stamp_dump(a, 0, 13)
    a("s_endpgm")
    a("LC_poll4:")
    a(f"v_cmp_ne_u32 vcc, s{S_TAG}, v{GA+1}")
    a("v_and_b32 v3, 7, v1")
    a("s_cbranch_vccnz LC_poll4_retry")
    a("LC_poll4_ok:")
    a(f"v_not_b32 v64, v{GA}")
    a("v_and_b32 v64, 2047, v64")
    a(f"v_mul_u32_u24 v4, {REG}, v3")
    a("v_lshrrev_b32 v5, 8, v64")
    a("v_bfe_u32 v8, v64, 2, 2")
    a("v_lshl_add_u32 v5, v5, 2, v8")
    a("v_mul_u32_u24 v5, 144, v5")
    a("v_bfe_u32 v8, v64, 4, 4")
    a("v_lshl_add_u32 v4, v8, 3, v4")
    a("v_and_b32 v8, 3, v64")
    a("v_lshl_add_u32 v5, v8, 1, v5")
    a("v_add_u32 v4, v4, v5")
    a(f"ds_read_u16 v66, v4 offset:{YB}")
    a("v_lshlrev_b32 v64, 11, v64")
    a("v_lshl_add_u32 v64, v3, 1, v64")
    a("v_lshlrev_b32 v2, 2, v1")
    a(f"v_add_u32 v2, {RED2}, v2")
    a("s_waitcnt lgkmcnt(0)")
    a("v_lshlrev_b32 v66, 16, v66")
    a("s_barrier")
    for w in range(0, 6, 2):
        a(f"ds_read2st64_b32 {vr(68+w,2)}, v2 offset0:{w} offset1:{w+1}")
    a("ds_read_b32 v67, v2 offset:1536")
    a("s_waitcnt lgkmcnt(2)")
    a("v_pk_add_f32 v[68:69], v[68:69], v[70:71]")
    a("s_waitcnt lgkmcnt(0)")
    a("v_pk_add_f32 v[66:67], v[66:67], v[72:73]")
    a("v_pk_add_f32 v[66:67], v[66:67], v[68:69]")
    a("v_add_f32 v66, v66, v67")
    a("v_cvt_pk_bf16_f32 v66, v66, v66")
    a(f"buffer_store_short v66, v64, {sr(SRD_OUT,4)}, s{S_COL} offen")
    stamp_dump(a, 0, 13)
    a("s_endpgm")
    for k in (3, 4):
        a(f"LC_poll{k}_retry:")
        a("s_add_u32 s10, s10, 1")
        a(f"s_cmp_ge_u32 s10, {SPIN}")
        a(f"s_cbranch_scc1 LC_poll{k}_ok")
        a("s_sleep 2")
        a("s_mov_b64 exec, vcc")
        gather_loads()
        a("s_mov_b64 exec, -1")
        a("s_waitcnt vmcnt(0)")
        a(f"s_branch LC_poll{k}")
    for n_ in "xy":
        a(f"LC_poll1{n_}_retry:")
        a("s_add_u32 s10, s10, 1")
        a(f"s_cmp_ge_u32 s10, {SPIN}")
        a(f"s_cbranch_scc1 LC_poll1{n_}_ok")
        a(f"v_mov_b32 v{EP+9}, 0")
        a(f"global_load_dwordx2 {vr(TG,2)}, v{EP+9}, {sr(S_DBG,2)} sc1")
        a("s_mov_b64 exec, vcc")
        rec_loads()
        a("s_mov_b64 exec, -1")
        a("s_waitcnt vmcnt(0)")
        a(f"v_readfirstlane_b32 s66, v{TG}")
        a(f"v_readfirstlane_b32 s67, v{TG+1}")
        a("s_xor_b32 s67, s67, 1")
        a(f"s_branch LC_poll1{n_}")

def build():
    a = Asm()
    stamp_init(a)
    a("s_cmp_ge_u32 s2, 256")
    a("s_cbranch_scc1 L_end")
    a("s_load_dwordx16 s[16:31], s[0:1], 0")
    a("s_load_dwordx16 s[32:47], s[0:1], 64")
    a("v_lshrrev_b32 v2, 6, v0")
    a("v_and_b32 v1, 63, v0")
    a("v_readfirstlane_b32 s3, v2")
    if CFG.get("cpre", 1):
        a("s_cmp_lg_u32 s3, 7")
        a("s_cbranch_scc1 L_nocpre")
        a("s_getpc_b64 s[4:5]")
        a("L_pc:")
        a("s_bfe_u32 s6, s2, 0x20003")
        a("s_lshl_b32 s6, s6, 13")
        a("v_lshl_add_u32 v3, v1, 7, s6")
        a("v_min_u32 v3, L_codeend-L_pc-4, v3")
        a("global_load_dword v63, v3, s[4:5]")
        a("L_nocpre:")
    a("s_cmp_ge_u32 s2, 128")
    a("s_cbranch_scc1 L_conv")
    moe(a)
    a("L_conv:")
    conv(a)
    a("L_end:")
    a("s_endpgm")
    a("L_codeend:")
    return header([f"; @launch grid=(256,1,1) block=(512,1,1) lds={LDS_TOTAL}"]) + kstart(KN) + a.text() + RODATA + kdesc(KN, 256)

if __name__ == "__main__":
    import sys
    from lint import lint
    name = "v10"
    for kv in sys.argv[1:]:
        if "=" in kv:
            k, v = kv.split("="); CFG[k] = int(v)
        else: name = kv
    t = build()
    assert not lint(t), lint(t)
    open(f"gen/{name}.s", "w").write(t)
    CFG["log"] = 0
    STAMP["on"] = True
    open(f"gen/{name}_ts.s", "w").write(build())
    STAMP["clk"] = True
    open(f"gen/{name}_clk.s", "w").write(build())
```

```python
from blocks import *
from sched import *

WS_E    = 0xF000
WS_KEYS = 0x20000
SPIN = 40000
TAGINC = 0x9e3779b1
WS_KA = 0x28000
WS_XI = 0x30000
SRD_WD = 56

CFG = dict(n0=2, n1=4, n2=10, n3=14, nd1=4, dpre=1, sprefetch=1, wpre=4, wpat=0, u1at=18, gb=0, wfree=0, blead=8, epdl=8, stdl=16, lat=4,
           xrec=30, xgb=40, xdp=54, xb0=84, xuw=0, xgat=196,
           yrec=5, yb2=0, xT=0, xu1=1, tat=2, ydp=20, yb0=0, yuw=0, ygat=196, yprio=1, fast=2, nd2=4, agd=4, nd0=0, kbar2=0, wbar8=0, xua=-2, xub_=12, yua=-10, yub_=-20)

DPP_FULL = "row_mask:0xf bank_mask:0xf"

L_REC, L_SEL, L_TAU, L_CNT = 0, 128, 160, 164
L_HB, L_ZERO, L_MB, L_RG, L_RED, L_D = 256, 1536, 2048, 8192, 16384, 49152

def moe(a):
    c = CFG
    SETS = [{k: k for k in range(1, 11)},
            {5: 1, "barC": 2, "bis0": 3, "bis1": 4, 6: 5, "xs": 6, "d2": 7, "dl": 8, "w": 9, 7: 10},
            {7: 1, "mf": 2, "barE": 3, 8: 4, "ack": 5, 9: 6, "hw": 7, "barF": 8, "mf2": 9, 10: 10}]
    def mst(nm):
        k = SETS[c.get("mfine", 0)].get(nm)
        if k: stamp(a, k)
    R, O, DO, B, ACC = 64, 128, 192, 224, 240
    X, WR, GW = O, O + 16, O + 24
    PL, KEY, IDX, SC = 16, 24, 28, 32
    VW = 6
    S_TAG, S_TB, S_G, S_S = 60, 61, 62, 63
    a("s_and_b32 s4, s2, 7")
    a("s_lshr_b32 s5, s2, 3")
    a(f"s_mul_i32 s{S_G}, s4, 7")
    a("s_lshr_b32 s6, s5, 1")
    a(f"s_add_u32 s{S_G}, s{S_G}, s6")
    a(f"s_and_b32 s{S_S}, s5, 1")
    a("v_lshlrev_b32 v3, 4, v1")
    a("s_lshl_b32 s6, s2, 3")
    a("s_add_u32 s6, s6, s3")
    a("s_lshl_b32 s6, s6, 12")
    a("v_add_u32 v4, s6, v3")
    a(f"s_lshl_b32 s6, s{S_S}, 3")
    a("s_add_u32 s6, s6, s3")
    a("s_lshl_b32 s6, s6, 6")
    a("v_lshrrev_b32 v8, 4, v1")
    a("v_and_b32 v9, 7, v1")
    a("v_lshl_add_u32 v10, v8, 3, s6")
    a("v_mul_u32_u24 v12, 7168, v10")
    a(f"s_lshl_b32 s7, s{S_G}, 7")
    a("v_lshl_add_u32 v13, v9, 4, s7")
    a("v_add_u32 v12, v12, v13")
    a("v_mov_b32 v13, 0")
    a("v_and_b32 v2, 8, v1")
    a("v_cmp_eq_u32 s[12:13], 0, v2")
    a("s_waitcnt lgkmcnt(0)")
    a(f"s_load_dword s{S_TAG}, {sr(S_WS,2)}, {WS_E}")
    a("s_bitcmp1_b32 s3, 2")
    a(f"s_cselect_b64 s[14:15], {sr(S_GW,2)}, {sr(S_WR,2)}")
    a("s_and_b32 s6, s3, 3")
    a("s_lshl_b32 s6, s6, 9")
    a("v_add_u32 v2, s6, v3")
    a("s_lshl_b32 s6, s3, 9")
    a(f"s_add_u32 m0, s6, {L_RED}")
    a("s_mov_b32 exec_hi, 0")
    a("global_load_lds_dwordx4 v2, s[14:15]")
    a("s_mov_b32 exec_hi, -1")
    for i in range(4):
        a(f"global_load_dwordx4 {vr(X+4*i,4)}, v4, {sr(S_X,2)} offset:{i*1024}")
    a(f"v_mov_b32 v{VW}, s{S_WU}")
    a(f"v_mov_b32 v{VW+1}, s{S_WU+1}")
    a(f"v_mov_b32 v14, s{S_WG}")
    a(f"v_mov_b32 v15, s{S_WG+1}")
    a(f"v_cndmask_b32 v{VW}, v{VW}, v14, s[12:13]")
    a(f"v_cndmask_b32 v{VW+1}, v{VW+1}, v15, s[12:13]")
    a(f"v_lshl_add_u64 {vr(VW,2)}, {vr(VW,2)}, 0, v[12:13]")
    a("s_lshl_b32 s6, s3, 4")
    a("v_mov_b32 v44, s6")
    a("v_lshlrev_b32 v45, 3, v1")
    a("s_mov_b32 s8, 7168")
    a("s_mov_b32 s9, 0")
    a(f"s_mov_b32 s10, {25*7168}")
    a("s_mov_b32 s11, 0")
    def wloads(lo, hi):
        for n in range(lo, hi):
            a(f"global_load_dwordx4 {vr(R+4*n,4)}, {vr(VW,2)}, off nt")
            if n == 7:    a(f"v_lshl_add_u64 {vr(VW,2)}, s[10:11], 0, {vr(VW,2)}")
            elif n < 15:  a(f"v_lshl_add_u64 {vr(VW,2)}, s[8:9], 0, {vr(VW,2)}")
    a("s_cmp_ge_u32 s5, 14")
    a("s_cbranch_scc1 LM_spare0")
    a("s_barrier")
    wloads(0, c["n0"])
    mst(1)
    for r in range(4): a(f"v_mov_b32 v{40+r}, 0")
    def wfetch(nafter):
        a(f"s_waitcnt vmcnt({nafter+4})")
        a("s_barrier")
        for i in range(4):
            a(f"ds_read_b128 {vr(WR+4*i,4)}, v3 offset:{L_RED+1024*i}")
        a(f"s_waitcnt vmcnt({nafter}) lgkmcnt(0)")
    wfetch(c["n0"])
    wloads(c["n0"], c["n1"])
    a("s_branch LM_rows")
    a("LM_spare0:")
    a("s_cmp_lg_u32 s2, 112")
    a("s_cbranch_scc1 LM_spare1")
    a("s_cmp_lg_u32 s3, 1")
    a("s_cbranch_scc1 LM_spare1")
    a("s_waitcnt lgkmcnt(0)")
    a(f"s_add_u32 s6, s{S_TAG}, {TAGINC:#x}")
    a("v_mov_b32 v46, s6")
    a("v_mov_b32 v47, 1")
    a("v_mov_b32 v2, 0")
    a("s_mov_b64 exec, 1")
    a(f"global_store_dwordx2 v2, v[46:47], {sr(S_DBG,2)} sc1")
    a("s_mov_b64 exec, -1")
    a("LM_spare1:")
    for r in range(4): a(f"v_mov_b32 v{40+r}, 0")
    if c["sprefetch"]:
        a(f"s_lshr_b32 s6, s{S_WG}, 7")
        a("s_mul_i32 s7, s4, 7")
        a("s_add_u32 s6, s6, s7")
        a("s_sub_u32 s6, 3, s6")
        a("s_and_b32 s6, s6, 7")
        a("s_cmp_eq_u32 s6, 7")
        a("s_cselect_b32 s6, 0, s6")
        a("s_add_u32 s6, s6, s7")
        a("s_lshl_b32 s6, s6, 7")
        nlo = c.get("snlo", 4)
        a("v_and_b32 v2, 3, v1")
        a(f"v_add_u32 v2, {nlo}, v2")
        a("v_and_b32 v12, 8, v2")
        a("v_mul_u32_u24 v12, 3, v12")
        a("v_add3_u32 v2, v2, v12, v10")
        a("v_mul_u32_u24 v2, 7168, v2")
        a("v_add_u32 v2, s6, v2")
        a("s_barrier")
        a("s_mov_b32 exec_lo, 0x000f000f")
        a("s_mov_b32 exec_hi, 0x000f000f")
        a(f"global_load_dword v60, v2, {sr(S_WG,2)}")
        a(f"global_load_dword v61, v2, {sr(S_WU,2)}")
        a("s_mov_b64 exec, -1")
        wfetch(2)
    else:
        wfetch(0)
    a("LM_rows:")
    mst(2)
    for i in range(8):
        a(f"v_dot2_f32_bf16 v40, v{X+i}, v{WR+i}, v40")
        a(f"v_dot2_f32_bf16 v41, v{X+i}, v{GW+i}, v41")
        a(f"v_dot2_f32_bf16 v42, v{X+8+i}, v{WR+i}, v42")
        a(f"v_dot2_f32_bf16 v43, v{X+8+i}, v{GW+i}, v43")
    a("s_waitcnt lgkmcnt(0)")
    a(f"s_add_u32 s{S_TAG}, s{S_TAG}, {TAGINC:#x}")
    a(f"s_getreg_b32 s{S_TB}, hwreg(HW_REG_XCC_ID, 0, 4)")
    for st in (f"row_shr:1 {DPP_FULL} bound_ctrl:0", f"row_shr:2 {DPP_FULL} bound_ctrl:0",
               f"row_shr:4 {DPP_FULL} bound_ctrl:0", f"row_shr:8 {DPP_FULL} bound_ctrl:0",
               "row_bcast:15 row_mask:0xa bank_mask:0xf", "row_bcast:31 row_mask:0xc bank_mask:0xf"):
        for r in range(4):
            a(f"v_add_f32_dpp v{40+r}, v{40+r}, v{40+r} {st}")
    a("s_mov_b32 exec_lo, 0")
    a("s_mov_b32 exec_hi, 0x80000000")
    a(f"ds_write_b128 v44, v[40:43] offset:{L_REC}")
    a("s_mov_b64 exec, -1")
    a("s_waitcnt lgkmcnt(0)")
    a("s_barrier")
    a("s_cmp_lg_u32 s3, 0")
    a("s_cbranch_scc1 LM_nopub")
    a(f"ds_read_b64 v[46:47], v45 offset:{L_REC}")
    a("s_lshl_b32 s6, s2, 7")
    a(f"s_add_u32 s6, s6, {WS_RG}")
    a("v_add_u32 v2, s6, v45")
    a(f"s_add_u32 s6, s6, {WS_XI - WS_RG}")
    a("v_writelane_b32 v2, s6, 16")
    a(f"v_mov_b32 v48, s{S_TB}")
    a(f"v_mov_b32 v49, s{S_TAG}")
    a("s_mov_b32 s6, 0x07060100")
    a("s_mov_b64 exec, 0xffff")
    a("s_waitcnt lgkmcnt(0)")
    a("v_cvt_pk_bf16_f32 v46, v47, v46")
    a("v_lshlrev_b32 v47, 16, v46")
    a("v_mul_f32 v47, 0xbfb8aa3b, v47")
    a("v_exp_f32 v47, v47")
    a("v_ashrrev_i32 v50, 31, v46")
    a("v_add_f32 v47, 1.0, v47")
    a("v_rcp_f32 v47, v47")
    a("v_or_b32 v50, 0x80000000, v50")
    a("v_cvt_pk_bf16_f32 v47, v47, v47")
    a("v_xor_b32 v46, v46, v50")
    a("v_perm_b32 v48, v46, v47, s6")
    a("s_mov_b64 exec, 0x1ffff")
    a(f"global_store_dwordx2 v2, v[48:49], {sr(S_WS,2)} sc1")
    a("s_mov_b64 exec, -1")
    a("LM_nopub:")
    mst(3)
    a("s_cmp_ge_u32 s5, 14")
    a("s_cbranch_scc1 LM_spare")
    a("s_barrier")
    wloads(c["n1"], c["n1"] + 2)
    VDA, VTR, VRD, VPO, VPP, VH, VA, VPT, VSL = 42, 44, 48, 49, 50, 51, 52, 11, 62
    a.srd(SRD_X, S_X, 4194304)
    a.srd(SRD_WD, S_WD, 7340032)
    a("v_mov_b32 v12, 0")
    a("v_lshlrev_b32 v13, 2, v1")
    a(f"ds_write_b32 v13, v12 offset:{L_ZERO}")
    a("s_lshl_b32 s6, s3, 9")
    a("v_lshl_add_u32 v14, v1, 3, s6")
    a("s_mov_b32 s64, 0x05040100")
    a("s_mov_b32 s65, 0x07060302")
    a("v_lshrrev_b32 v56, 5, v1")
    a("v_bfe_u32 v57, v1, 4, 1")
    a("v_bfe_u32 v58, v1, 3, 1")
    a("v_lshlrev_b32 v2, 2, v56")
    a("v_xor_b32 v2, v2, v9")
    a("v_lshrrev_b32 v59, 3, v1")
    a("v_lshlrev_b32 v59, 11, v59")
    a(f"v_lshl_add_u32 v{VDA}, v2, 4, v59")
    a(f"v_xor_b32 v{VDA+1}, 32, v{VDA}")
    a(f"s_lshl_b32 s70, s{S_G}, 17")
    a(f"s_lshl_b32 s7, s{S_S}, 10")
    a("s_add_u32 s70, s70, s7")
    a("s_lshl_b32 s7, s3, 7")
    a("s_add_u32 s70, s70, s7")
    a("s_lshl_b32 s71, s3, 13")
    a(f"s_add_u32 s71, s71, {L_D}")
    a("v_bfe_u32 v59, v1, 2, 1")
    a("v_lshlrev_b32 v2, 11, v56")
    a("v_lshl_add_u32 v2, v57, 9, v2")
    a("v_lshl_add_u32 v2, v58, 7, v2")
    a("v_lshl_add_u32 v2, v59, 10, v2")
    a("v_lshl_add_u32 v2, v59, 5, v2")
    a("v_lshl_add_u32 v2, v57, 6, v2")
    a("v_and_b32 v59, 3, v1")
    a("v_lshl_add_u32 v2, v59, 3, v2")
    a(f"v_add_u32 v{VTR}, s71, v2")
    for t_ in range(1, 4):
        a(f"v_xor_b32 v{VTR+t_}, {32*t_}, v{VTR}")
    a("s_and_b32 s6, s3, 3")
    a("s_lshr_b32 s7, s3, 2")
    a("s_lshl_b32 s15, s6, 1")
    a("s_add_u32 s15, s15, s7")
    a("s_lshl_b32 s15, s15, 9")
    a(f"s_add_u32 s15, s15, {L_RED}")
    a(f"v_add_u32 v{VRD}, s15, v13")
    a("s_lshl_b32 s7, s7, 3")
    a("s_add_u32 s6, s6, s7")
    a("s_lshl_b32 s6, s6, 2")
    a("v_mul_u32_u24 v2, 144, v9")
    a(f"v_lshl_add_u32 v{VH}, v57, 6, v2")
    a(f"v_lshl_add_u32 v{VH}, v58, 4, v{VH}")
    a(f"v_lshl_add_u32 v{VH}, v56, 1, v{VH}")
    a(f"v_add_u32 v{VH}, s6, v{VH}")
    a("v_lshl_add_u32 v2, v8, 4, v2")
    a(f"v_mov_b32 v59, {L_ZERO-L_HB}")
    a(f"v_cndmask_b32 v{VA}, v59, v2, s[12:13]")
    a(f"v_cndmask_b32 v{VA+1}, v2, v59, s[12:13]")
    a(f"s_lshl_b32 s6, s{S_G}, 1")
    a(f"s_add_u32 s6, s6, s{S_S}")
    a("s_lshl_b32 s6, s6, 12")
    a(f"s_add_u32 s6, s6, {WS_PRE}")
    a(f"v_add_u32 v{VPO}, s6, v14")
    a(f"v_xor_b32 v{VPP}, 4096, v{VPO}")
    a(f"s_lshl_b32 s6, s{S_S}, 3")
    a("s_add_u32 s6, s6, s3")
    a("s_lshl_b32 s6, s6, 17")
    a(f"s_lshl_b32 s7, s{S_G}, 8")
    a("s_add_u32 s6, s6, s7")
    a(f"s_add_u32 s6, s6, {WS_PART}")
    a(f"v_lshl_add_u32 v{VPT}, v56, 15, s6")
    a(f"v_lshl_add_u32 v{VPT}, v58, 14, v{VPT}")
    a(f"v_lshl_add_u32 v{VPT}, v57, 7, v{VPT}")
    a(f"v_lshl_add_u32 v{VPT}, v9, 4, v{VPT}")
    a(f"v_add_u32 v4, 0x10000, v{VPT}")
    TV = (34, 35, 61, 13); HV = (0, 63)
    for i in range(4):
        a(f"s_bfe_u32 s6, s{S_TAG}, {0x80000 + 8*i:#x}")
        a(f"v_mov_b32 v{TV[i]}, s6")
    a("s_mov_b32 vcc_lo, 0xaaaaaaaa")
    a("s_mov_b32 vcc_hi, 0xaaaaaaaa")
    a(f"v_cndmask_b32 v{HV[0]}, v{TV[0]}, v{TV[2]}, vcc")
    a(f"v_cndmask_b32 v{HV[1]}, v{TV[1]}, v{TV[3]}, vcc")
    a(f"s_lshl_b32 s6, s{S_S}, 3")
    a("s_add_u32 s6, s6, s4")
    a("s_lshl_b32 s6, s6, 8")
    a(f"s_add_u32 s6, s6, {WS_KA}")
    a("v_lshl_add_u32 v5, v9, 3, s6")
    a("v_mov_b32 v60, 0x7ffffff0")
    a("s_mov_b32 s14, 0")
    def perms(kap, ps=(0, 1, 2, 3)):
        for e in range(8):
            for p in ps:
                a(f"v_perm_b32 v{O+32*kap+4*e+p}, v{R+32*kap+4*(2*p+1)+e//2}, v{R+32*kap+4*(2*p)+e//2}, s{64+e%2}")
    dnt = "" if c["dpre"] else " nt"
    def dloads(lo, hi_):
        for i in range(lo, hi_):
            a(f"s_add_u32 m0, s71, {1024*i}")
            a(f"s_add_u32 s7, s70, {8*i*2048}")
            a(f"buffer_load_dwordx4 v{VDA+i%2}, {sr(SRD_WD,4)}, s7 offen{dnt} lds")
    nd0, nd1 = c["nd0"], c["nd1"]
    wloads(c["n1"] + 2, 8)
    if c.get("wbar8", 1): a("s_barrier")
    wloads(8, 12)
    if c["fast"] == 2: a(f"global_load_dwordx2 v[54:55], v{VPP}, {sr(S_WS,2)} sc1")
    a("s_barrier")
    a("s_lshl_b32 s11, s3, 12")
    a(f"s_add_u32 s11, s11, {L_RED}")
    a("s_mov_b32 s10, 0xffffff00")
    a(f"s_waitcnt vmcnt({8 + (c['fast'] == 2)})")
    perms(0, (0, 1))
    wloads(12, 16)
    dloads(0, nd0)
    if c.get("kbar2", 1): a("s_barrier")
    a(f"global_load_dwordx2 v[36:37], v5, {sr(S_WS,2)} sc1")
    mst(4)
    a(f"s_waitcnt vmcnt({5 + nd0})")
    perms(0, (2, 3)); perms(1, (0, 1))
    a("s_waitcnt vmcnt(0)")
    mst(5)
    a("LM_poll1:")
    a(f"v_cmp_ne_u32 vcc, s{S_TAG}, v37")
    a("v_not_b32 v38, v36")
    a("v_and_b32 v39, 2047, v38")
    a("s_cbranch_vccnz LM_poll1_retry")
    a("LM_poll1_ok:")
    if STAMP["on"]: a(f"s_mov_b32 s{ST0+24}, s14")
    mst(6)
    a("v_lshlrev_b32 v38, 11, v39")
    a("v_lshl_add_u32 v38, v10, 1, v38")
    a("v_cndmask_b32 v40, v60, v38, s[12:13]")
    a("v_cndmask_b32 v41, v38, v60, s[12:13]")
    a(f"buffer_load_dwordx4 {vr(B,4)}, v40, {sr(SRD_X,4)}, 0 offen")
    a(f"buffer_load_dwordx4 {vr(B+12,4)}, v41, {sr(SRD_X,4)}, 0 offen offset:64")
    mst("xs")
    a(f"v_readfirstlane_b32 s{S_TB}, v36")
    perms(1, (2,))
    a("s_barrier")
    mst("d2")
    dloads(nd0, nd1)
    mst("dl")
    a("s_mov_b32 m0, s11")
    pz = [(e, 3) for e in (4, 0, 5, 1, 6, 2, 7, 3)]
    a(f"s_waitcnt vmcnt({nd1-nd0})")
    a("LM_mf:")
    mst(7)
    seen = set()
    def gm(j, kap, hf):
        a(f"v_mfma_f32_16x16x32_bf16 {vr(ACC+4*j,4)}, {vr(O+32*kap+4*(j+4*hf),4)}, {vr(B+8*kap+4*hf,4)}, {vr(ACC+4*j,4) if j in seen else 0}")
        seen.add(j)
    wq = [f"ds_write_addtid_b32 v{ACC+4*j+r} offset:{1024*j+256*r}" for j in range(4) for r in range(4)]
    for j in range(4):
        gm(j, 0, 0)
        for q in (2*(j%2), 2*(j%2)+1):
            if j < 2: a(f"v_mov_b32_dpp v{B+4+q}, v{B+q} row_shr:8 {DPP_FULL} bound_ctrl:0")
            else:     a(f"v_mov_b32_dpp v{B+8+q}, v{B+12+q} row_shl:8 {DPP_FULL} bound_ctrl:0")
    npz = len(pz) // 4
    for j in range(4):
        gm(j, 0, 1)
        for _ in range(npz):
            e, p = pz.pop(0)
            a(f"v_perm_b32 v{O+32+4*e+p}, v{R+32+4*(2*p+1)+e//2}, v{R+32+4*(2*p)+e//2}, s{64+e%2}")
    for n_, (j, hf) in enumerate([(j, hf) for j in range(4) for hf in (1, 0)]):
        gm(j, 1, hf)
        if n_ == 0: pass
        elif n_ < 4: a("s_nop 1")
        else: a(wq.pop(0)); a(wq.pop(0))
    mst("mf")
    for n_ in range(8):
        if n_ == 4: a("s_nop 1")
        a(wq.pop(0))
    a("s_waitcnt lgkmcnt(0)")
    a("s_barrier")
    mst("barE")
    for w in range(8):
        a(f"ds_read2st64_b32 {vr(R+2*w,2)}, v{VRD} offset0:{16*w} offset1:{16*w+1}")
    a(f"s_bitcmp0_b32 s{S_TB}, 11")
    a("s_waitcnt lgkmcnt(4)")
    a(f"v_pk_add_f32 {vr(R,2)}, {vr(R,2)}, {vr(R+2,2)}")
    a(f"v_pk_add_f32 {vr(R+4,2)}, {vr(R+4,2)}, {vr(R+6,2)}")
    a("s_waitcnt lgkmcnt(2)")
    a(f"v_pk_add_f32 {vr(R+8,2)}, {vr(R+8,2)}, {vr(R+10,2)}")
    a(f"v_pk_add_f32 {vr(R,2)}, {vr(R,2)}, {vr(R+4,2)}")
    a("s_waitcnt lgkmcnt(0)")
    a(f"v_pk_add_f32 {vr(R+12,2)}, {vr(R+12,2)}, {vr(R+14,2)}")
    a(f"v_pk_add_f32 {vr(R,2)}, {vr(R,2)}, {vr(R+8,2)}")
    a(f"v_pk_add_f32 {vr(O,2)}, {vr(R,2)}, {vr(R+12,2)}")
    a(f"v_and_or_b32 v{O+2}, v{O}, s10, v{HV[0]}")
    a(f"v_and_or_b32 v{O+3}, v{O+1}, s10, v{HV[1]}")
    if c["fast"]:
        a("s_cbranch_scc1 LM_far")
        a(f"global_store_dwordx2 v{VPO}, {vr(O+2,2)}, {sr(S_WS,2)}")
        a("LM_sent:")
    else:
        a(f"global_store_dwordx2 v{VPO}, {vr(O+2,2)}, {sr(S_WS,2)} sc1")
    mst(8)
    if c.get("ebar", 1): a("s_barrier")
    nd2 = c["nd2"]
    dloads(nd1, nd2)
    a("s_mov_b32 s14, 0")
    a(f"s_waitcnt vmcnt({nd2-nd1})")
    mst("ack")
    def poll2_loads():
        a(f"global_load_dwordx2 v[32:33], v5, {sr(S_WS,2)} offset:128 sc1")
        a(f"global_load_dwordx2 v[54:55], v{VPP}, {sr(S_WS,2)} sc1")
    poll2_loads()
    dloads(nd2, 8)
    def dreads(kap):
        for t_ in range(4):
            for pp in range(2):
                a(f"ds_read_b64_tr_b16 {vr(DO+16*kap+4*t_+2*pp,2)}, v{VTR+t_} offset:{4096*kap+256*pp}")
    assert nd1 >= 4
    dreads(0)
    if nd2 == 8:
        a("s_waitcnt vmcnt(2)")
        dreads(1)
    a(f"s_waitcnt vmcnt({8-nd2})")
    a("LM_poll2:")
    a(f"v_xor_b32 v56, v{HV[0]}, v54")
    a(f"v_xor_b32 v57, v{HV[1]}, v55")
    a("v_bitop3_b32 v2, v56, v57, s10 bitop3:0x54")
    a(f"v_bitop3_b32 v2, v33, s{S_TAG}, v2 bitop3:0xbe")
    a("v_cmp_ne_u32 vcc, 0, v2")
    a("s_cbranch_vccnz LM_poll2_retry")
    a("LM_poll2_ok:")
    if STAMP["on"]: a(f"s_mov_b32 s{ST0+22}, s14")
    mst(9)
    a(f"v_pk_add_f32 v[54:55], v[56:57], {vr(O,2)}")
    a("s_nop 1")
    a("v_permlane32_swap_b32 v54, v55")
    a("v_cvt_pk_bf16_f32 v55, v54, v55")
    a("v_lshlrev_b32 v54, 16, v55")
    a("v_mul_f32 v56, 0xbfb8aa3b, v54")
    a("v_exp_f32 v56, v56")
    a("v_and_b32 v55, 0xffff0000, v55")
    a("v_add_f32 v56, 1.0, v56")
    a("v_rcp_f32 v56, v56")
    a("v_mul_f32 v55, v55, v32")
    a("v_mul_f32 v54, v54, v56")
    a("v_mul_f32 v54, v54, v55")
    a("v_cvt_pk_bf16_f32 v54, v54, v54")
    a(f"ds_write_b16 v{VH}, v54 offset:{L_HB}")
    mst("hw")
    if nd2 < 8:
        a("s_waitcnt vmcnt(0)")
        dreads(1)
        a("s_waitcnt lgkmcnt(8)")
    else:
        a("s_waitcnt lgkmcnt(0)")
    a("s_barrier")
    mst("barF")
    for kap in range(2):
        for hf in range(2):
            a(f"ds_read_b128 {vr(B+8*kap+4*hf,4)}, v{VA+hf} offset:{L_HB+64*kap}")
    for n_, (kap, hf) in enumerate(((0,0), (0,1), (1,0), (1,1))):
        a(f"s_waitcnt lgkmcnt({3-n_})")
        for j in range(2):
            a(f"v_mfma_f32_16x16x32_bf16 {vr(ACC+4*j,4)}, {vr(B+8*kap+4*hf,4)}, {vr(DO+16*kap+4*(2*j+hf),4)}, {vr(ACC+4*j,4) if n_ else 0}")
    mst("mf2")
    a("s_nop 6")
    for j in range(2):
        for r in range(4):
            a(f"v_and_or_b32 v{ACC+4*j+r}, v{ACC+4*j+r}, s10, v{TV[r]}")
        a(f"global_store_dwordx4 v{(VPT, 4)[j]}, {vr(ACC+4*j,4)}, {sr(S_WS,2)} sc1")
    mst(10)
    if c.get("wb", 0) & 1:
        a("s_add_u32 s6, s5, s3")
        a("s_cmp_lg_u32 s6, 0")
        a("s_cbranch_scc1 LM_nowb")
        a("s_waitcnt vmcnt(0)")
        a("buffer_wbl2 sc1")
        a("s_waitcnt vmcnt(0)")
        a("LM_nowb:")
    stamp_dump(a, 0, 13)
    a("s_endpgm")
    if c["fast"]:
        a("LM_far:")
        a(f"global_store_dwordx2 v{VPO}, {vr(O+2,2)}, {sr(S_WS,2)} sc1")
        a("s_branch LM_sent")
    a("LM_poll2_retry:")
    a("s_add_u32 s14, s14, 1")
    a(f"s_cmp_ge_u32 s14, {SPIN}")
    a("s_cbranch_scc1 LM_poll2_ok")
    poll2_loads()
    a("s_waitcnt vmcnt(0)")
    a("s_branch LM_poll2")
    a("LM_poll1_retry:")
    a("s_add_u32 s14, s14, 1")
    a(f"s_cmp_ge_u32 s14, {SPIN}")
    a("s_cbranch_scc1 LM_poll1_ok")
    a(f"global_load_dwordx2 v[36:37], v5, {sr(S_WS,2)} sc1")
    a("s_waitcnt vmcnt(0)")
    a("s_branch LM_poll1")
    a("LM_spare:")
    a("s_lshl_b32 s6, s3, 8")
    a("s_sub_u32 s6, 2047, s6")
    a("v_lshlrev_b32 v2, 1, v1")
    a(f"v_sub_u32 v{IDX}, s6, v2")
    a(f"v_subrev_u32 v{IDX+1}, 1, v{IDX}")
    a(f"v_subrev_u32 v{IDX+2}, 0x80, v{IDX}")
    a(f"v_subrev_u32 v{IDX+3}, 0x81, v{IDX}")
    a("s_lshl_b32 s6, s3, 10")
    a("v_add_u32 v14, s6, v3")
    a(f"s_add_u32 s6, s6, {L_RG}")
    a("v_lshl_add_u32 v15, v1, 3, s6")
    a("s_lshl_b32 s6, s3, 11")
    a(f"s_add_u32 s6, s6, {WS_RG}")
    a("v_add_u32 v5, s6, v3")
    a("s_lshl_b32 s6, s4, 7")
    a(f"s_add_u32 s6, s6, {WS_XI}")
    a("v_min_u32 v59, 13, v1")
    a("v_lshl_add_u32 v59, v59, 10, s6")
    a("s_sub_u32 s70, s2, 112")
    a("s_lshl_b32 s70, s70, 8")
    a(f"s_add_u32 s70, s70, {WS_KA}")
    a("s_mov_b32 s66, 0xffff0000")
    a("s_mov_b32 s14, 0")
    a("s_waitcnt vmcnt(0)")
    a("s_barrier")
    if c["agd"]: a(f"s_sleep {c['agd']}")
    mst(4)
    a("LA_poll:")
    a(f"global_load_dwordx2 v[56:57], v59, {sr(S_WS,2)} sc1")
    for q in range(2):
        a(f"global_load_dwordx4 {vr(PL+4*q,4)}, v5, {sr(S_WS,2)} offset:{1024*q} sc1")
    a("s_mov_b64 exec, -1")
    a("s_add_u32 s14, s14, 1")
    a(f"s_cmp_ge_u32 s14, {SPIN}")
    a("s_waitcnt vmcnt(0)")
    a(f"v_xor_b32 v2, s{S_TAG}, v57")
    for i in (1, 3, 5, 7):
        a(f"v_bitop3_b32 v2, v{PL+i}, s{S_TAG}, v2 bitop3:0xbe")
    a("v_cmp_ne_u32 vcc, 0, v2")
    a("s_cbranch_scc1 LA_poll_ok")
    a("s_cbranch_vccz LA_poll_ok")
    a("s_mov_b64 exec, vcc")
    a("s_branch LA_poll")
    a("LA_poll_ok:")
    if STAMP["on"]: a(f"s_sub_u32 s{ST0+24}, s14, 1")
    mst(5)
    for i in range(4):
        a(f"v_and_or_b32 v{KEY+i}, v{PL+2*i}, s66, v{IDX+i}")
    a(f"v_max_u32 v40, v{KEY}, v{KEY+1}")
    a(f"v_min_u32 v41, v{KEY}, v{KEY+1}")
    a(f"v_max3_u32 v36, v40, v{KEY+2}, v{KEY+3}")
    a(f"v_med3_u32 v42, v40, v{KEY+2}, v{KEY+3}")
    a(f"v_min3_u32 v43, v40, v{KEY+2}, v{KEY+3}")
    a("v_max_u32 v37, v42, v41")
    a("v_med3_u32 v38, v42, v43, v41")
    a(f"ds_write_b128 v14, v[36:39] offset:{L_RED}")
    a(f"ds_write2_b32 v15, v{PL}, v{PL+2} offset0:0 offset1:1")
    a(f"ds_write2_b32 v15, v{PL+4}, v{PL+6} offset0:128 offset1:129")
    a(f"v_cmp_ne_u32 s[64:65], s{S_TB}, v56")
    a("s_waitcnt lgkmcnt(0)")
    a("s_barrier")
    mst(6)
    a("s_cmp_lg_u32 s3, 0")
    a("s_cbranch_scc1 LA_end")
    P = 64
    for i in range(1, 8):
        a(f"ds_read_b128 {vr(P+4*i,4)}, v3 offset:{L_RED+1024*i}")
    a("s_cmp_eq_u64 s[64:65], 0")
    a("s_cselect_b32 s71, 0x800, 0")
    if not c["fast"]: a("s_mov_b32 s71, 0")
    a(f"v_mov_b32 v47, s{S_TAG}")
    a(f"v_mov_b32 v49, s{S_TAG}")
    ins = []
    for i in range(1, 8):
        x, y = P+4*i, P+4*i+1
        ins += [f"v_med3_u32 v38, v37, v38, v{x}", f"v_med3_u32 v37, v36, v37, v{x}", f"v_max_u32 v36, v36, v{x}",
                f"v_med3_u32 v38, v37, v38, v{y}", f"v_max_u32 v37, v37, v{y}"]
    ins += [f"v_max3_u32 v38, v38, v{P+6}, v{P+10}", f"v_max3_u32 v38, v38, v{P+14}, v{P+18}",
            f"v_max3_u32 v38, v38, v{P+22}, v{P+26}", f"v_max_u32 v38, v38, v{P+30}"]
    def fill(n):
        for _ in range(n): a(ins.pop(0))
    a("s_waitcnt lgkmcnt(5)")
    a(f"v_max3_u32 v40, v36, v{P+4}, v{P+8}")
    fill(5)
    a("s_waitcnt lgkmcnt(0)")
    a(f"v_max3_u32 v41, v{P+12}, v{P+16}, v{P+20}")
    a(f"v_max3_u32 v40, v40, v{P+24}, v{P+28}")
    a("v_max_u32 v40, v40, v41")
    for st in ("quad_perm:[1,0,3,2]", "quad_perm:[2,3,0,1]", "row_half_mirror"):
        fill(4)
        a(f"v_max_u32_dpp v40, v40, v40 {st} {DPP_FULL}")
    fill(4)
    a(f"v_min_u32_dpp v41, v40, v40 row_mirror {DPP_FULL}")
    a(f"v_max_u32_dpp v40, v40, v40 row_mirror {DPP_FULL}")
    for st in ("row_bcast:15 row_mask:0xa bank_mask:0xf", "row_bcast:31 row_mask:0xc bank_mask:0xf"):
        fill(4)
        a(f"v_min_u32_dpp v41, v41, v41 {st}")
        a(f"v_max_u32_dpp v40, v40, v40 {st}")
    fill(2)
    a("v_readlane_b32 s6, v41, 63")
    a("v_readlane_b32 s7, v40, 63")
    fill(len(ins))
    a("s_sub_u32 s14, s7, s6")
    a("s_lshr_b32 s14, s14, 2")
    mst(7)
    a("LA_bis:")
    a("s_add_u32 s14, s14, s6")
    a("v_cmp_le_u32 s[68:69], s14, v36")
    a("v_cmp_le_u32 vcc, s14, v37")
    a("s_bcnt1_i32_b64 s15, s[68:69]")
    a("s_bcnt1_i32_b64 s67, vcc")
    a("s_add_u32 s67, s67, s15")
    a("s_cmp_eq_u32 s67, 8")
    a("s_cbranch_scc1 LA_bis_done")
    a("s_cmp_gt_u32 s67, 8")
    a("s_cselect_b32 s6, s14, s6")
    a("s_cselect_b32 s7, s7, s14")
    a("s_sub_u32 s14, s7, s6")
    a("s_lshr_b32 s14, s14, 1")
    a("s_cbranch_scc1 LA_bis")
    a("s_mov_b32 s14, s6")
    a("v_cmp_le_u32 s[68:69], s14, v36")
    a("v_cmp_le_u32 vcc, s14, v37")
    a("s_bcnt1_i32_b64 s15, s[68:69]")
    a("LA_bis_done:")
    a("v_cmp_le_u32 s[64:65], s14, v38")
    a("LA_pick:")
    a("v_mbcnt_lo_u32_b32 v40, s68, 0")
    a("v_mov_b32 v41, s15")
    a("s_cmp_lg_u64 s[64:65], 0")
    a("s_cbranch_scc1 LA_slow")
    a("v_mbcnt_hi_u32_b32 v40, s69, v40")
    a("v_mbcnt_lo_u32_b32 v41, vcc_lo, v41")
    a("v_or_b32 v46, s71, v36")
    a("v_mbcnt_hi_u32_b32 v41, vcc_hi, v41")
    a("v_and_b32 v40, 7, v40")
    a("v_or_b32 v48, s71, v37")
    a("v_and_b32 v41, 7, v41")
    a("v_lshl_add_u32 v42, v40, 3, s70")
    a("v_lshl_add_u32 v43, v41, 3, s70")
    a("s_cmp_eq_u32 s71, 0")
    a("s_mov_b64 exec, s[68:69]")
    a("s_cbranch_scc1 LA_far")
    def keystores(fl, tag):
        a(f"global_store_dwordx2 v42, v[46:47], {sr(S_WS,2)}{fl}")
        a("s_mov_b64 exec, vcc")
        a(f"s_cbranch_execz LA_sent")
        a(f"global_store_dwordx2 v43, v[48:49], {sr(S_WS,2)}{fl}")
    keystores("", "n")
    a("LA_sent:")
    mst(8)
    a("s_mov_b64 exec, -1")
    a("v_lshlrev_b32 v40, 2, v40")
    a("v_lshlrev_b32 v41, 2, v41")
    a("s_mov_b64 exec, s[68:69]")
    a(f"ds_write_b32 v40, v36 offset:{L_SEL}")
    a("s_mov_b64 exec, vcc")
    a(f"ds_write_b32 v41, v37 offset:{L_SEL}")
    a("s_mov_b64 exec, -1")
    a("v_lshlrev_b32 v2, 2, v9")
    a(f"ds_read_b32 v46, v2 offset:{L_SEL}")
    a("v_lshrrev_b32 v12, 3, v1")
    a(f"s_lshl_b32 s6, s{S_S}, 10")
    a("v_lshl_add_u32 v12, v12, 7, s6")
    a("s_waitcnt lgkmcnt(0)")
    a("v_not_b32 v38, v46")
    a("v_and_b32 v39, 2047, v38")
    a("v_lshl_add_u32 v12, v39, 11, v12")
    a(f"global_load_dword v13, v12, {sr(S_X,2)}")
    a("v_lshlrev_b32 v39, 2, v39")
    a(f"ds_read_b32 v33, v39 offset:{L_RG}")
    a("v_ashrrev_i32 v38, 31, v38")
    a("v_or_b32 v38, 0x80000000, v38")
    a("v_xor_b32 v32, v46, v38")
    a("v_and_b32 v32, 0xffff0000, v32")
    a("v_mul_f32 v32, 0xbfb8aa3b, v32")
    a("v_exp_f32 v32, v32")
    a("v_lshl_add_u32 v42, v1, 3, s70")
    a("v_add_f32 v32, 1.0, v32")
    a("v_rcp_f32 v32, v32")
    a("s_waitcnt lgkmcnt(0)")
    a("v_lshlrev_b32 v33, 16, v33")
    a("v_sub_f32 v33, 1.0, v33")
    a("v_cvt_pk_bf16_f32 v32, v32, v32")
    a("v_lshlrev_b32 v32, 16, v32")
    a("v_mul_f32 v48, v32, v33")
    a("s_mov_b64 exec, 0xffff")
    a(f"global_store_dwordx2 v42, v[48:49], {sr(S_WS,2)} offset:128 sc1")
    a("s_cmp_lg_u32 s2, 112")
    a("s_cbranch_scc1 LA_end")
    a("v_lshlrev_b32 v42, 3, v1")
    a(f"v_add_u32 v42, {WS_KEYS}, v42")
    a(f"global_store_dwordx2 v42, v[46:47], {sr(S_WS,2)} sc1")
    a(f"v_mov_b32 v43, {WS_E}")
    a("s_mov_b64 exec, 1")
    a(f"global_store_dword v43, v47, {sr(S_WS,2)} sc1")
    a("LA_end:")
    stamp_dump(a, 0, 13)
    a("s_endpgm")
    a("LA_far:")
    keystores(" sc1", "f")
    a("s_branch LA_sent")
    a("LA_slow:")
    KS = 64
    for i in range(8):
        a(f"ds_read_b128 {vr(KS+4*i,4)}, v3 offset:{L_RG+1024*i}")
    a("v_lshlrev_b32 v57, 2, v1")
    a("v_sub_u32 v57, 2047, v57")
    a("s_waitcnt lgkmcnt(0)")
    for i in range(32):
        a(f"v_subrev_u32 v58, {256*(i//4)+i%4}, v57")
        a(f"v_and_or_b32 v{KS+i}, v{KS+i}, s66, v58")
    a("s_mov_b32 s14, -1")
    a("s_mov_b32 m0, 0")
    a("LA_slow_rnd:")
    for i in range(0, 32, 2):
        a(f"v_sub_u32 v57, s14, v{KS+i}")
        a(f"v_sub_u32 v58, s14, v{KS+i+1}")
        a("v_min_u32 v56, v57, v58" if i == 0 else "v_min3_u32 v56, v57, v58, v56")
    for st in (f"row_shr:1 {DPP_FULL}", f"row_shr:2 {DPP_FULL}", f"row_shr:4 {DPP_FULL}", f"row_shr:8 {DPP_FULL}",
               "row_bcast:15 row_mask:0xa bank_mask:0xf", "row_bcast:31 row_mask:0xc bank_mask:0xf"):
        a("s_nop 1")
        a(f"v_min_u32_dpp v56, v56, v56 {st}")
    a("s_nop 0")
    a("v_readlane_b32 s15, v56, 63")
    a("s_sub_u32 s14, s14, s15")
    a("v_writelane_b32 v36, s14, m0")
    a("s_sub_u32 s14, s14, 1")
    a("s_add_u32 m0, m0, 1")
    a("s_cmp_lt_u32 m0, 8")
    a("s_cbranch_scc1 LA_slow_rnd")
    a("s_mov_b64 s[68:69], 0xff")
    a("s_mov_b64 vcc, 0")
    a("s_mov_b64 s[64:65], 0")
    a("s_mov_b32 s15, 8")
    a("s_branch LA_pick")

ROWB = 528
REG = 19008
YB, KB, UB = 0, 4608, 14320
KE, KO, TB = KB + 32, KB + 1252, KB + 2352
GB = 8 * REG
RED2 = GB + 8192
LDS_TOTAL = RED2 + 2048

def conv(a):
    c = CFG
    SETS = [dict(fill=1, par=2, gend=3, u1=4, bar2=5, tail=6, st0=7, st1=8, st2=9, st3=10),
            dict(karg=1, fill=2, par=3, kbar=4, eend=5, erd=6, gend=7, bar2=8, kmf=9, tail=10),
            dict(bar2=1, tail=2, rec=3, gb0=4, gb1=5, ba0=6, ba1=7, ba2=8, ba3=9, ba4=10),
            dict(u10=1, u1=2, bar2=3, b2i=4, rec=5, rec1=6, uw0=7, uw1=8, gw0=9, gw1=10)]
    def cst(nm):
        k = SETS[c.get("fine", 0)].get(nm)
        if k: stamp(a, k)
    C3, C5, C7, C9, C2 = 12, 16, 20, 24, 28
    ACC, A, T, BX, BR, EP, SD, U2 = 32, 64, 132, 172, 196, 232, 244, 248
    EOP, GOP, U1 = 64, 132, 232
    PL, TG = EP, SD
    VB, VU, VG, VY, VGW, VT0, VT1 = 2, 3, 4, 5, 6, 8, 9
    VUL, VOP, VK, VTP, VTQ, VOE, VZ, VDS = 48, 49, 50, 51, 52, 53, 54, 55
    VA0, VA1, VT = 60, 61, 62
    S_COL, S_REG, S_TAG = 60, 61, 66
    a("s_and_b32 s4, s2, 7")
    a("s_bfe_u32 s5, s2, 0x40003")
    a("s_lshl_b32 s6, s4, 4")
    a("s_add_u32 s63, s6, s5")
    a(f"s_lshl_b32 s{S_COL}, s63, 4")
    a("s_lshl_b32 s6, s63, 3")
    a("s_add_u32 s6, s6, s3")
    a("s_lshl_b32 s7, s6, 8")
    a("v_lshl_add_u32 v3, v1, 2, s7")
    a("s_lshl_b32 s7, s6, 1")
    a("s_and_b32 s7, s7, 0x7fc")
    a("s_and_b32 s11, s3, 1")
    a("s_lshl_b32 s11, s11, 4")
    a(f"v_lshlrev_b32 v{VUL}, 12, v0")
    a(f"v_sub_u32 v{VUL}, {1022*2048}, v{VUL}")
    a("v_lshlrev_b32 v11, 11, v0")
    a(f"s_mul_i32 s{S_REG}, s3, {REG}")
    a(f"s_mov_b32 m0, s{S_REG}")
    a("s_lshl_b32 s6, s5, 3")
    a("s_add_u32 s6, s6, s3")
    a("s_lshl_b32 s6, s6, 15")
    a("s_lshl_b32 s9, s4, 8")
    a("s_add_u32 s6, s6, s9")
    a("v_lshrrev_b32 v2, 1, v1")
    a("v_lshlrev_b32 v2, 11, v2")
    a("v_and_b32 v4, 1, v1")
    a("v_lshl_add_u32 v2, v4, 7, v2")
    a(f"s_add_u32 s8, s{S_COL}, {1 << 21}")
    a("s_waitcnt lgkmcnt(0)")
    cst("karg")
    a(f"s_load_dword s66, {sr(S_LDT,2)}, s7")
    a(f"s_load_dword s67, {sr(S_DSK,2)}, s7")
    PR = 196
    for i, s_ in enumerate((S_LA, S_AI, S_CR, S_CI)):
        a(f"global_load_dword v{PR+i}, v3, {sr(s_,2)}")
    a.srd(SRD_X, S_X, 4194304)
    a("s_barrier")
    a("s_mov_b32 exec_hi, 0")
    a(f"buffer_load_dword v10, v2, {sr(SRD_X,4)}, s6 offen")
    a("s_mov_b64 exec, -1")
    a("s_barrier")
    def utext(H, e, va=VUL):
        return f"buffer_load_dwordx4 {vr((U1, U2)[H]+4*e,4)}, v{va}, {sr(SRD_X,4)}, s{(S_COL, 8)[H]} offen offset:{e*2048}"
    def uload(H, e): a(utext(H, e))
    uload(0, 0)
    a.srd(SRD_OUT, S_OUT, 4194304)
    t0_, t1_, t2_, ta = 56, 57, 58, 59
    a(f"v_and_b32 v{ta}, 15, v1")
    a("v_lshrrev_b32 v7, 4, v1")
    a(f"v_lshl_add_u32 v{t0_}, v7, 3, v{ta}")
    a(f"v_min_u32 v{t0_}, 31, v{t0_}")
    a("s_lshl_b32 s9, s3, 2")
    a("s_lshr_b32 s6, 0x23452, s9")
    a("s_lshr_b32 s7, 0x29753, s9")
    a("s_and_b32 s6, s6, 15")
    a("s_and_b32 s7, s7, 15")
    a("s_add_u32 s6, s6, 16")
    a("s_bfm_b32 s6, s7, s6")
    a("s_cmp_eq_u32 s3, 4")
    a("s_movk_i32 s7, 0x3f80")
    a("s_cselect_b32 s7, 0xffff, s7")
    a(f"v_bfe_u32 v{t1_}, s6, v{t0_}, 8")
    a(f"v_lshl_or_b32 v{t1_}, v{t1_}, 15, v{t1_}")
    for p in range(4):
        if p: a(f"v_lshrrev_b32 v{C3+p}, {2*p}, v{t1_}")
        a(f"v_and_b32 v{C3+p}, 0x10001, v{C3+p if p else t1_}")
        a(f"v_mul_u32_u24 v{C3+p}, s7, v{C3+p}")
    a(f"s_mov_b32 s6, {GB}")
    a(f"v_lshl_add_u32 v{VG}, v1, 4, s6")
    a("s_lshl_b32 s6, s3, 10")
    a(f"v_add_u32 v{t1_}, s6, v{VG}")
    a(f"ds_write_b128 v{t1_}, {vr(C3,4)}")
    a(f"v_and_b32 v{t0_}, 31, v1")
    a(f"v_lshrrev_b32 v{t1_}, 5, v1")
    a(f"v_mul_u32_u24 v{VOP}, {ROWB}, v{t0_}")
    a(f"v_lshl_add_u32 v{t2_}, v{t1_}, 4, s{S_REG}")
    a(f"v_add_u32 v{VOP}, v{VOP}, v{t2_}")
    a(f"v_subrev_u32 v{VOE}, {ROWB}, v{VOP}")
    a(f"v_cmp_eq_u32 vcc, 0, v{t0_}")
    a(f"v_and_b32 v{t2_}, 0xff, v{VOE}")
    a(f"v_add_u32 v{t2_}, {RED2}, v{t2_}")
    a(f"v_cndmask_b32 v{VOE}, v{VOE}, v{t2_}, vcc")
    a(f"v_mov_b32 v{VZ}, 0")
    a("s_mov_b32 s14, 0xaaaaaaaa")
    a("s_mov_b32 s15, 0xaaaaaaaa")
    late = f"""
    v_lshlrev_b32 v{t2_}, 5, v{ta}
    s_add_u32 s6, s{S_REG}, {UB+480}
    v_sub_u32 v{VU}, s6, v{t2_}
    v_lshl_add_u32 v{VB}, v7, 4, v{VU}
    v_lshlrev_b32 v{VY}, 3, v7
    v_sub_u32 v{VU}, v{VU}, v{VY}
    v_mul_u32_u24 v{VY}, 144, v7
    v_lshl_add_u32 v{t2_}, v{ta}, 3, s{S_REG}
    v_add_u32 v{VY}, v{VY}, v{t2_}
    v_lshl_add_u32 v{VK}, v{t0_}, 4, s{S_REG}
    v_lshl_add_u32 v{VK}, v{t1_}, 3, v{VK}
    v_lshl_add_u32 v{VTQ}, v{t0_}, 1, s{S_REG}
    v_lshl_add_u32 v{VTQ}, v{t1_}, 7, v{VTQ}
    v_lshrrev_b32 v{t0_}, 1, v{t0_}
    v_lshl_add_u32 v{VTP}, v{t0_}, 2, s{S_REG}
    v_lshl_add_u32 v{VTP}, v{t1_}, 6, v{VTP}
    v_add_u32 v{t0_}, 192, v{VTP}
    v_cndmask_b32 v{VTP}, v{VTP}, v{t0_}, s[14:15]
    v_and_b32 v{t0_}, 14, v1
    v_lshlrev_b32 v{t0_}, 1, v{t0_}
    v_lshl_add_u32 v{t0_}, v7, 4, v{t0_}
    v_mov_b32 v{t1_}, {KO-28}
    v_mov_b32 v{t2_}, {KE-28}
    v_cndmask_b32 v{t1_}, v{t1_}, v{t2_}, s[14:15]
    v_add3_u32 v{VA0}, v{t0_}, v{t1_}, s{S_REG}
    v_add_u32 v{VA1}, 1024, v{VA0}
    v_lshlrev_b32 v{t0_}, 4, v7
    s_add_u32 s6, s{S_REG}, {TB}
    v_lshl_add_u32 v{VT}, v{ta}, 2, s6
    v_sub_u32 v{VT}, v{VT}, v{t0_}
    s_lshl_b32 s6, s3, 11
    s_add_u32 s6, s6, {WS_RG}
    v_lshl_add_u32 v{TG+3}, v1, 4, s6
    v_bfe_u32 v{t0_}, v1, 2, 2
    v_mul_u32_u24 v{VT0}, {REG}, v{t0_}
    v_and_b32 v{t0_}, 3, v1
    v_mul_u32_u24 v{t0_}, 144, v{t0_}
    s_lshr_b32 s6, s3, 2
    s_mul_i32 s6, s6, {576-128}
    s_lshl_b32 s7, s3, 5
    s_add_u32 s6, s6, s7
    v_lshl_add_u32 v{t1_}, v7, 3, s6
    v_add3_u32 v{VT0}, v{VT0}, v{t0_}, v{t1_}
    v_add_u32 v{VT1}, {4*REG}, v{VT0}
    v_and_b32 v{t0_}, 1, v1
    s_lshl_b32 s6, s3, 10
    s_add_u32 s6, s6, {GB}
    v_lshl_add_u32 v{VGW}, v{t0_}, 3, s6
    v_bfe_u32 v{t0_}, v1, 1, 2
    v_lshl_add_u32 v{VGW}, v{t0_}, 8, v{VGW}
    v_lshrrev_b32 v{t0_}, 3, v1
    v_lshl_add_u32 v{VGW}, v{t0_}, 4, v{VGW}
    """.strip().split("\n")
    if c["dpre"]:
        late += f"""
        s_mul_i32 s6, s5, 7
        s_min_u32 s7, s3, 6
        s_add_u32 s6, s6, s7
        s_lshr_b32 s7, s6, 4
        s_lshl_b32 s7, s7, 4
        s_add_u32 s6, s6, s7
        s_mul_i32 s7, s4, 224
        s_add_u32 s6, s6, s7
        s_lshl_b32 s6, s6, 12
        s_add_u32 s6, s6, {32*2048}
        v_and_b32 v{t0_}, 31, v1
        v_lshl_add_u32 v{TG+2}, v{t0_}, 7, s6
        """.strip().split("\n")
    late += f"""
    s_lshl_b32 s6, s63, 3
    s_add_u32 s6, s6, s3
    s_lshl_b32 s6, s6, 11
    s_add_u32 s6, s6, {WS_PART}
    v_bfe_u32 v{t0_}, v1, 3, 1
    v_lshl_add_u32 v{t0_}, v{t0_}, 2, v7
    v_lshlrev_b32 v{t0_}, 3, v{t0_}
    v_add_u32 v{t0_}, {WS_KEYS}, v{t0_}
    v_lshl_add_u32 v7, v1, 4, s6
    s_cmp_eq_u32 s3, 7
    s_cselect_b64 vcc, -1, 0
    v_cndmask_b32 v7, v7, v{t0_}, vcc
    s_add_u32 s9, s{S_COL}, {1 << 20}
    s_add_u32 s62, s{S_COL}, {3 << 20}
    """.strip().split("\n")
    lv = []; park = 18; pend_s = False
    for l in [l.strip() for l in late]:
        if l.startswith("s_"):
            a(l.replace("vcc", "s[30:31]")); pend_s = True
        else:
            if " s6" in l:
                if pend_s:
                    a(f"s_mov_b32 s{park}, s6"); park += 1; pend_s = False
                l = l.replace(" s6", f" s{park-1}") if f"s{S_REG}" not in l else l
            lv.append(l.replace("vcc", "s[30:31]"))
    assert park <= 26
    late = lv
    assert c.get("lateK", 1)
    if c["wpre"]:
        a("s_lshl_b32 s6, s5, 3")
        a("s_lshr_b32 s7, s3, 1")
        a("s_add_u32 s6, s6, s7")
        a("s_lshl_b32 s6, s6, 3")
        a(f"s_add_u32 s6, s6, {32 + 8 - c['wpre']}")
        a("s_mul_i32 s6, s6, 7168")
        a("s_mul_i32 s7, s4, 896")
        a("s_add_u32 s6, s6, s7")
        a(f"s_lshr_b32 s7, s{S_WG}, 7")
        a("s_sub_u32 s7, s4, s7")
        a("s_add_u32 s7, s7, 3")
        a("s_and_b32 s7, s7, 7")
        a("s_min_u32 s7, s7, 6")
        a("s_lshl_b32 s7, s7, 7")
        a(f"s_sub_u32 s7, s7, {4*7168}")
        a("v_and_b32 v2, 7, v1")
        a("v_cmp_eq_u32 vcc, 7, v2")
        a("v_lshlrev_b32 v2, 7, v2")
        a("v_mov_b32 v3, s7")
        a("v_lshrrev_b32 v5, 3, v1")
        a("v_cndmask_b32 v2, v2, v3, vcc")
        a("v_mul_u32_u24 v5, 7168, v5")
        a("v_add3_u32 v0, v2, v5, s6")
        m = sum((0xff if c["wpre"] == 4 else 0x7f) << (8*i) for i in range(c["wpre"]))
        a(f"s_mov_b32 s70, {m & 0xffffffff:#x}")
        a(f"s_mov_b32 s71, {m >> 32:#x}")
        a("s_bitcmp1_b32 s3, 0")
        a(f"s_cselect_b64 s[12:13], {sr(S_WU,2)}, {sr(S_WG,2)}")
    a("s_mov_b32 s64, 0x05040100")
    a("s_mov_b32 s65, 0x07060302")
    a("s_lshl_b32 s68, s3, 8")
    a(f"s_add_u32 s68, s68, {UB}")
    a(f"s_add_u32 s69, s68, {4*REG}")
    a("s_mov_b32 s10, 0")
    a(f"v_mov_b32 v{t2_}, 0x3f80")
    a(f"ds_write_addtid_b32 v{VZ} offset:{UB+4096}")
    a(f"ds_write_addtid_b32 v{VZ} offset:{UB+4096+256}")
    a("s_lshl_b32 s6, s3, 8")
    a(f"s_add_u32 s6, s6, {RED2}")
    a("v_lshl_add_u32 v2, v1, 2, s6")
    a(f"ds_write_b32 v2, v{t2_}")
    a("s_waitcnt lgkmcnt(0)")
    d = 200
    a("s_lshr_b32 s66, s66, s11")
    a("s_lshr_b32 s67, s67, s11")
    a("s_lshl_b32 s66, s66, 16")
    a("s_lshl_b32 s67, s67, 16")
    a(f"v_mov_b32 v{d}, {LOG2E}")
    a(f"v_mul_f32 v{d}, s66, v{d}")
    a(f"v_exp_f32 v{d}, v{d}")
    a(f"v_mov_b32 v{VDS}, 0")
    a(f"v_cvt_pk_bf16_f32 v{d}, v{d}, v{d}")
    a(f"v_writelane_b32 v{VDS}, s67, 0")
    a("s_mov_b64 exec, 1")
    a(f"v_add_f32 v{VDS}, -1.0, v{VDS}")
    a("s_mov_b64 exec, -1")
    a(f"v_lshlrev_b32 v{d}, 16, v{d}")
    a(f"v_mul_f32 v202, 0xbfb8aa3b, v{d}")
    a(f"v_mul_f32 v203, {INV2PI}, v{d}")
    a(f"v_add_f32 v{d}, v{d}, v{d}")
    nx = [GOP]
    def newp():
        p = (nx[0], nx[0] + 2); nx[0] += 4; return p
    W1, W8, W256, G0 = newp(), newp(), newp(), newp()
    TT = newp()
    PK = [nx[0], nx[0] + 2, nx[0] + 4]; nx[0] += 8
    Z = 204
    X_ = 208
    cst("fill")
    a("s_waitcnt vmcnt(2)")
    cst("par")
    a(f"v_lshlrev_b32 v{Z}, 16, v{PR}")
    a(f"v_and_b32 v{Z+2}, 0xffff0000, v{PR}")
    a(f"v_mul_f32 v{Z}, {LOG2E}, v{Z}")
    a(f"v_mul_f32 v{Z+2}, {LOG2E}, v{Z+2}")
    a(f"v_exp_f32 v{Z}, v{Z}")
    a(f"v_exp_f32 v{Z+2}, v{Z+2}")
    a(f"v_lshlrev_b32 v{Z+1}, 16, v{PR+1}")
    a(f"v_cvt_pk_bf16_f32 v{Z+2}, v{Z}, v{Z+2}")
    a(f"v_and_b32 v{Z+3}, 0xffff0000, v{PR+1}")
    a(f"v_lshlrev_b32 v{Z}, 16, v{Z+2}")
    a(f"v_and_b32 v{Z+2}, 0xffff0000, v{Z+2}")
    a(f"v_pk_mul_f32 {vr(Z,2)}, {vr(Z,2)}, v[202:203]")
    a(f"v_pk_mul_f32 {vr(Z+2,2)}, {vr(Z+2,2)}, v[202:203]")
    def wexp(sc, W):
        L = []
        for m in range(2):
            if sc:
                L += [f"v_mul_f32 v{X_+2*m}, {sc}, v{Z+2*m}", f"v_mul_f32 v{X_+1+2*m}, {sc}, v{Z+1+2*m}"]
        src = X_ if sc else Z
        for m in range(2):
            L += [f"v_fract_f32 v{X_+1+2*m}, v{src+1+2*m}"]
        for m in range(2):
            L += [f"v_exp_f32 v{X_+2*m}, v{src+2*m}", f"v_cos_f32 v{W[m]}, v{X_+1+2*m}", f"v_sin_f32 v{W[m]+1}, v{X_+1+2*m}"]
        for m in range(2):
            L += [f"v_pk_mul_f32 {vr(W[m],2)}, {vr(W[m],2)}, {vr(X_+2*m,2)} op_sel:[0,0] op_sel_hi:[1,0]"]
        return L
    for l in wexp("0x41000000", W8): a(l)
    if c.get("kbar", 1): a("s_barrier")
    cst("kbar")
    kk = [0]
    def run_steps(steps, neg, hooks={}):
        n = "-" if neg else ""
        pend = None; pw = None
        for si, (dst, src, w, rows) in enumerate(steps + [(None,)*4, (None,)*4]):
            x = y = [None, None]
            if w is not None:
                x = cmul(dst[0], src[0], w[0], TT[0]); y = cmul(dst[1], src[1], w[1], TT[1])
            cA = cB = None
            if pend:
                p = PK[kk[0] % 3]; kk[0] += 1
                cA = f"v_cvt_pk_bf16_f32 v{p}, v{pend[0][0]}, {n}v{pend[0][0]+1}"
                cB = f"v_cvt_pk_bf16_f32 v{p+1}, v{pend[0][1]}, {n}v{pend[0][1]+1}"
            wa = [f"ds_write_addtid_b32 v{pw[0]} offset:{r*ROWB}" for r in pw[1]] if pw else []
            wb = [f"ds_write_addtid_b32 v{pw[0]+1} offset:{r*ROWB+256}" for r in pw[1]] if pw else []
            for s_ in [x[0], y[0]] + wa + hooks.get(si, []) + [cA, x[1], y[1]] + wb + [cB]:
                if s_: a(s_)
            pw = (p, pend[1]) if pend else None
            pend = (dst, rows) if rows else None
    EA, EB = newp(), newp()
    steps = [(W8, None, None, [0])]
    cur = W8
    for b in range(2, 32 - c.get("x_skipE", 0)):
        nxt = EA if b % 2 == 0 else EB
        steps.append((nxt, cur, W8, [b-1])); cur = nxt
    eh = {c["u1at"]: [utext(0, 1)]}
    assert c.get("kbar", 1)
    for i in range(5):
        eh.setdefault(8 + 3*i, []).append(f"ds_read_b128 {vr(C3+4*i,4)}, v{VG} offset:{1024*i}")
    if c["wpre"]:
        pass
    a(".p2align 3")
    run_steps(steps, False, eh)
    cst("eend")
    sb = [f"v_lshlrev_b32 v{G0[0]}, 16, v{PR+2}", f"v_and_b32 v{G0[1]}, 0xffff0000, v{PR+2}",
          f"v_lshlrev_b32 v{G0[0]+1}, 16, v{PR+3}", f"v_and_b32 v{G0[1]+1}, 0xffff0000, v{PR+3}",
          f"v_pk_mul_f32 {vr(G0[0],2)}, {vr(G0[0],2)}, {vr(d,2)} op_sel:[0,0] op_sel_hi:[1,0]",
          f"v_pk_mul_f32 {vr(G0[1],2)}, {vr(G0[1],2)}, {vr(d,2)} op_sel:[0,0] op_sel_hi:[1,0]"]
    sb += wexp(None, W1) + wexp("0x43800000", W256)
    for s_ in range(16):
        a(f"ds_read_b128 {vr(EOP+4*s_,4)}, v{VOE} offset:{32*s_}")
        if s_ % 2 == 1 and s_ >= 3:
            for _ in range(5):
                if sb: a(sb.pop(0))
    assert not sb
    cst("erd")
    if c.get("gprio", 1): a("s_setprio 1")
    if c.get("gsync", 0): a("s_barrier")
    def drow(r, h): return 8*(r//4) + 4*h + (r % 4)
    want = {}
    def put(al, r, h): want.setdefault(al, []).append(drow(r, h))
    for h in range(2):
        for j in range(4): put(4*h + j, j, h)
        for j in range(3): put(256 + 4*h + 2*j, 4 + j, h)
        put(4*h + 4, 7, h)
        for j in range(2): put(512 + 256*h + 4 + 4*j, 8 + j, h)
        for q in range(2): put(1024 + 512*h + 256*q + 8, 10 + q, h)
    keep = {al: newp() for al in (2, 4, 6, 8)}
    tA, tB = EA, EB
    steps = []
    def st(al, dst, src, w): steps.append((dst, src, w, want.pop(al)))
    st(0, G0, None, None)
    cur = G0
    for al in range(1, 9):
        dd = keep.get(al) or (tA if al % 4 == 1 else tB)
        st(al, dd, cur, W1); cur = dd
    c8 = [keep[8], tA]; c4 = [keep[4], tB]
    e1 = newp()
    singles = [(256, G0), (258, keep[2]), (262, keep[6])]
    for k in range(1, 8):
        st(256*k + 8, c8[k % 2], c8[(k-1) % 2], W256)
        if k <= 3: st(256*k + 4, c4[k % 2], c4[(k-1) % 2], W256)
        elif singles:
            al, src = singles.pop(0)
            st(al, e1, src, W256)
    assert not want and not singles and nx[0] <= GOP + 64
    hooks = {1: [f"s_load_dwordx2 s[66:67], {sr(S_DBG,2)}, 0"]}
    if c["wpre"]:
        hooks.setdefault(c["wpat"], []).extend(["s_mov_b64 exec, s[70:71]", "global_load_dword v10, v0, s[12:13]", "s_mov_b64 exec, -1"])
    a(".p2align 3")
    if c["gb"] == 0:
        run_steps(steps, True, hooks)
    else:
        ring = [212 + 2*i for i in range(10)]; k = 0; pend = None; ready = []
        for si, (dst, src, w, rows) in enumerate(steps + [(None,)*4]):
            x = y = [None, None]
            if w is not None:
                x = cmul(dst[0], src[0], w[0], TT[0]); y = cmul(dst[1], src[1], w[1], TT[1])
            cA = cB = None
            if pend:
                p = ring[k % 10]; k += 1
                cA = f"v_cvt_pk_bf16_f32 v{p}, v{pend[0][0]}, -v{pend[0][0]+1}"
                cB = f"v_cvt_pk_bf16_f32 v{p+1}, v{pend[0][1]}, -v{pend[0][1]+1}"
                ready.append((p, pend[1]))
            for s_ in [x[0], y[0], cA, x[1], y[1], cB]:
                if s_: a(s_)
            if len(ready) >= c["gb"] or dst is None:
                for p, rows_ in ready:
                    for r in rows_:
                        a(f"ds_write_addtid_b32 v{p} offset:{r*ROWB}")
                        a(f"ds_write_addtid_b32 v{p+1} offset:{r*ROWB+256}")
                ready = []
            for h_ in hooks.get(si, []): a(h_)
            pend = (dst, rows) if rows else None
    cst("gend")
    a(f"v_mov_b32 v0, v{VUL}")
    def rec_loads():
        for q in range(2):
            a(f"global_load_dwordx4 {vr(PL+4*q,4)}, v{TG+3}, {sr(S_WS,2)} offset:{1024*q} sc1")
    GA = T + 24
    def gather_loads():
        for q in range(2):
            a(f"global_load_dwordx4 {vr(GA+4*q,4)}, v7, {sr(S_WS,2)} offset:{1024*q} sc1")
    def bslot(k): return BR + 4*k
    def btext(cc, k):
        return f"ds_read_b128 {vr(bslot(k),4)}, v{VB} offset:{3584 - 512*cc + (64*k if k < 8 else 16)}"
    def atext(tt, hf):
        base, o = (VA0, 16*tt) if tt < 16 else (VA1, 0)
        return f"ds_read2_b32 {vr(A+4*tt+2*hf,2)}, v{base} offset0:{o+2*hf} offset1:{o+2*hf+1}"
    aorder = [x for t0 in range(1, 8) for x in (t0, t0+8)] + [0, 8, 16]
    border = (1, 2, 3, 4, 5, 6, 7, 0, 8)
    TP12 = {dl: T + 4*(dl-2) for dl in (2, 3, 4)}
    TP34 = {dl: T + 12 + 4*(dl-2) for dl in (2, 3, 4)}
    TQ = {dl: T + 24 + 4*(dl-4) for dl in (4, 5, 6, 7)}
    tl = []
    for tab, off, dls in ((TP12, -16, 2), (TP34, 32, 2), (TP12, -16, 3), (TP34, 32, 3), (TP12, -16, 4), (TP34, 32, 4),
                          (TQ, 48, 4), (TQ, 48, 5), (TQ, 48, 6), (TQ, 48, 7)):
        o = off + 16*dls; r = tab[dls]
        tl.append((("T", r, 0), f"ds_read2_b32 {vr(r,2)}, v{VT} offset0:{o} offset1:{o-1}"))
        tl.append((("T", r, 1), f"ds_read2_b32 {vr(r+2,2)}, v{VT} offset0:{o-2} offset1:{o-3}"))
    mtext = lambda dd, ra, rb, cin: f"v_mfma_f32_16x16x32_bf16 {vr(dd,4)}, {vr(ra,4)}, {vr(rb,4)}, {cin}"
    boxes = ((0, 0, C3), (1, 0, C5), (4, 0, C7), (2, 8, C3), (3, 8, C5), (5, 8, C9))
    D = 32

    def path(Y):
        n_ = "xy"[Y]
        P_ = lambda k: c[n_ + k]
        S = Sched(a, lat=c.get("lat", 5))
        r_ = S.raw
        vm = []
        def vmwait(nm): return f"s_waitcnt vmcnt({len(vm) - 1 - max(i for i, x in enumerate(vm) if x == nm)})"
        ua, ub = P_("ua"), P_("ub_")
        if ua == -2: r_(utext(1, 0, 0))
        nv0 = (ua == -2) + (1 if c["wpre"] else 0)
        def dp():
            r_("s_mov_b32 exec_hi, 0"); r_(f"global_load_dword v10, v{TG+2}, {sr(S_WD,2)}"); r_("s_mov_b32 exec_hi, -1")
            vm.append("dpre"); S.pos["dpre"] = S.n
        def u1block():
            cst("u10")
            r_(f"s_waitcnt vmcnt({nv0})")
            cst("u1")
            for ch in range(8):
                r_(f"v_perm_b32 v{BR+ch}, v{U1+ch//2}, v{U1+4+ch//2}, s{64+ch%2}")
            for ch in range(8):
                if ch % 4 == 0:
                    r_(f"s_mov_b32 m0, s{68+ch//4}"); r_("s_nop 0")
                S.lds(("uw", 0, ch), f"ds_write_addtid_b32 v{BR+ch} offset:{(ch%4)*REG+2048}")
        def bar2():
            r_("s_barrier")
            cst("bar2")
            rec_loads(); S.n += 2; vm.append("rec")
            if c["dpre"] and P_("dp") == -1: dp()
            if ua == -1: r_(utext(1, 0, 0)); vm.append("u2a")
            if ub == -1: r_(utext(1, 1, 0)); vm.append("u2b"); S.pos["u2b"] = S.n
            cst("b2i")
        def records():
            cst("rec")
            a(vmwait("rec"))
            cst("rec1")
            a("s_xor_b32 s67, s67, 1")
            a(f"LC_poll1{n_}:")
            a(f"v_xor_b32 v{EP+8}, s66, v{PL+1}")
            for i in (3, 5, 7):
                a(f"v_bitop3_b32 v{EP+8}, v{PL+i}, s66, v{EP+8} bitop3:0xbe")
            a(f"v_or_b32 v{EP+8}, s67, v{EP+8}")
            a(f"v_cmp_ne_u32 vcc, 0, v{EP+8}")
            a(f"s_cbranch_vccnz LC_poll1{n_}_retry")
            a(f"LC_poll1{n_}_ok:")
            if STAMP["on"]: a(f"s_mov_b32 s{ST0+24}, s10")
            S.n += 9
        gv = [(("g", 2*q+i), f"v_lshlrev_b32_e64 v{PL+4*q+i}, 16, v{PL+4*q+2*i}") for q in range(2) for i in range(2)]
        gw = [(("gw", q), f"ds_write_b64 v{VGW}, {vr(PL+4*q,2)} offset:{128*q}") for q in range(2)]
        def gbar():
            cst("gb0"); r_("s_barrier"); cst("gb1")
        gtext = lambda s_: f"ds_read_b128 {vr(GOP+4*s_,4)}, v{VOP} offset:{32*s_}"
        zq = [(("z", z), f"ds_write_addtid_b32 v{VZ} offset:{z}") for z in (KB, KB+1056, KB+2288, KB+2288+256)]
        lat0, S.lat = S.lat, 99
        NG = 6
        lq = list(late)
        if Y:
            u1block()
            r_(f"s_mov_b32 m0, s{S_REG}")
        for s_ in range(NG): S.lds(("G", s_), gtext(s_))
        dsq = [(("G", s_), gtext(s_)) for s_ in range(NG, 16)] + zq
        for s_ in range(16):
            S.wait([("G", s_ if s_ < 8 else 15)])
            r_(f"v_mfma_f32_32x32x16_bf16 {vr(D,16)}, {vr(GOP+4*s_,4)}, {vr(EOP+4*s_,4)}, {vr(D,16) if s_ else 0}")
            nd_ = 0
            for _ in range(2):
                if dsq: S.lds(*dsq.pop(0)); nd_ += 1
            nv_ = 0
            while lq and (nv_ < (4 if s_ < 8 else 5) - nd_ or s_ == 15):
                nv_ += 1 if lq[0].startswith("v_") else 0.5
                r_(lq.pop(0))
        assert not dsq
        cst("kmf")
        if (Y and c["yprio"] == 1) or not Y: r_("s_setprio 0")
        r_("s_waitcnt lgkmcnt(0)"); S.done = len(S.Q) - 1
        if Y and c["yb2"] == 0:
            bar2(); r_("s_nop 7", 8)
        else:
            r_("s_nop 10", 11)
        t = 64
        r_(f"v_add_f32 v{D}, v{D}, v{VDS}")
        r_(f"v_cvt_pk_bf16_f32 v{t+1}, v{D+2}, v{D+3}")
        r_(f"v_cvt_pk_bf16_f32 v{t}, v{D}, v{D+1}")
        r_(f"v_cvt_pk_bf16_f32 v{t+2}, v{D+4}, v{D+4}")
        r_(f"v_cvt_pk_bf16_f32 v{t+3}, v{D+5}, v{D+6}")
        r_(f"v_cvt_pk_bf16_f32 v{t+4}, v{D+1}, v{D+2}")
        r_(f"v_cvt_pk_bf16_f32 v{t+5}, v{D+3}, v{D+7}")
        r_(f"v_cvt_pk_bf16_f32 v{t+6}, v{D+4}, v{D+5}")
        r_(f"v_cvt_pk_bf16_f32 v{t+7}, v{D+6}, v{D+6}")
        r_(f"v_lshlrev_b32 v{t+8}, 16, v{t}")
        r_(f"v_mov_b32 v{t+10}, v{t+7}")
        r_(f"v_and_b32 v{t+11}, 0xffff, v{t+7}")
        u = 56
        r_(f"v_cvt_pk_bf16_f32 v{u+2}, v{D+9}, v{D+9}")
        r_(f"v_cvt_pk_bf16_f32 v{u}, v{D+8}, v{D+9}")
        r_(f"v_cvt_pk_bf16_f32 v{u+1}, v{D+10}, v{D+11}")
        r_(f"v_readlane_b32 s6, v{u+2}, 63")
        S.lds("k0", f"ds_write_b64 v{VK}, {vr(t,2)} offset:{KE}")
        S.lds("k1", f"ds_write_b64 v{VK}, {vr(t+4,2)} offset:{KO+4}")
        S.lds("k2", f"ds_write_b64 v{VK}, {vr(t+2,2)} offset:{KE+512}")
        S.lds("k3", f"ds_write_b64 v{VK}, {vr(t+6,2)} offset:{KO+4+512}")
        S.lds("k8", f"ds_write_b32 v{VTP}, v{u} offset:{TB+64}")
        S.lds("k9", f"ds_write_b16 v{VTQ}, v{u+1} offset:{TB+448}")
        S.lds("k10", f"ds_write_b16_d16_hi v{VTQ}, v{u+1} offset:{TB+448+64}")
        r_("s_mov_b64 exec, 1")
        S.lds("k4", f"ds_write_b32 v{VK}, v{t+8} offset:{KO}")
        r_("s_mov_b32 exec_lo, 0")
        r_("s_mov_b32 exec_hi, 0x80000000")
        S.lds("k5", f"ds_write_b64 v{VK}, {vr(t+10,2)} offset:{KE+1024-504}")
        S.lds("k6", f"ds_write_b32 v{VK}, v{t+10} offset:{KO+1028-504}")
        S.lds("k7", f"ds_write_b32 v{VK}, v{VZ} offset:{KO+1032-504}")
        r_("s_mov_b64 exec, -1")
        for p in range(4):
            r_(f"v_and_b32 v{C2+p}, s6, v{C2+p}")
        nA = 17
        if Y and c["yb2"] == 1: bar2()
        if not Y and c["xu1"] == 0: u1block()
        for i, tt in enumerate(aorder):
            if Y and i == c["yrec"]:
                records()
                for _, t_ in gv: r_(t_)
                for w_ in gw: S.lds(*w_)
            for hf in range(2): S.lds(("A", tt, hf), atext(tt, hf))
            if Y and c["dpre"] and P_("dp") == -10 - i: dp()
            if Y and ua == -10 - i: r_(utext(1, 0, 0)); vm.append("u2a")
            if Y and ub == -10 - i: r_(utext(1, 1, 0)); vm.append("u2b"); S.pos["u2b"] = S.n
            if Y and i == min(c["yrec"] + 3, 16):
                S.wait([("gw", 1)]); gbar(); S.pos["gbar"] = S.n
        if Y and c["yprio"] == 2: r_("s_setprio 0")
        cst("tail")
        if not Y:
            if c["xT"] == 1:
                for w_ in tl: S.lds(*w_)
            if c["xu1"] == 1: u1block()
            S.wait([("uw", 0, 7)])
            bar2()
        for k in border: S.lds(("B", 0, k), btext(0, k))
        S.lat = lat0
        S.m = 50
        S.qm = [S.m] * len(S.Q)
        ms, fs = [], []
        M0_ = S.m
        started = set(); lastacc = {}
        def mm(cc, Tt, ra, rb, needs, dist=None):
            if Tt > 7: return None
            nm = ("m", len(ms))
            ms.append(Op("M", nm, mtext(ACC+4*Tt, ra, rb, vr(ACC+4*Tt,4) if Tt in started else 0), needs=needs, dist=dist))
            started.add(Tt); lastacc[Tt] = nm
            return nm
        for tt in aorder[nA:]:
            for hf in range(2): fs.append(Op("D", ("A", tt, hf), atext(tt, hf), after=[("A", tt, 0)] if hf else []))
        if Y or c["xT"] == 0:
            for nm, t_ in tl: fs.append(Op("D", nm, t_, after=[("T", nm[1], 0)] if nm[2] else [], at=M0_ + c.get("tat", 10)))
        def epilogue(t_, after):
            r = ACC + 4*t_
            alt = t_ >= 3 and t_ % 2 == 1
            E = U2 if alt else EP
            N = C7 if (alt and t_ >= 5) else EP + 8
            pl = {0: None, 1: 0, 2: 1, 3: None, 4: 2, 5: 3, 6: 4, 7: 5}[t_]
            pn = {0: None, 1: 0, 2: 1, 3: 2, 4: 3, 5: None, 6: 4, 7: 5}[t_]
            af = list(after) + ([("e", pl, 7)] if pl is not None else [])
            if t_ == 3: af += [("up", k) for k in range(8)]
            if t_ >= 4: af.append("ubar")
            fs.append(Op("D", ("u", t_), f"ds_read_b64 {vr(E,2)}, v{VU} offset:{3584-512*t_+24}", after=af))
            fs.append(Op("D", ("gl", t_), f"ds_read_b128 {vr(E+4,4)}, v{VG} offset:{1024*t_}", after=af + [("u", t_)]))
            L = [f"v_and_b32 v{N}, 0xffff0000, v{E+1}", f"v_lshlrev_b32_e64 v{N+1}, 16, v{E+1}",
                 f"v_and_b32 v{N+2}, 0xffff0000, v{E}", f"v_lshlrev_b32_e64 v{N+3}, 16, v{E}"]
            L += [f"v_fma_f32 v{r+i}, v{E+4+i}, v{r+i}, v{N+i}" for i in range(4)]
            L += [f"v_cvt_pk_bf16_f32 v{E+2}, v{r}, v{r+1}", f"v_cvt_pk_bf16_f32 v{E+3}, v{r+2}, v{r+3}"]
            for i, l in enumerate(L):
                af = [("e", t_, i-1)] if i else ([("e", pn, 7)] if pn is not None else [])
                if i == 0 and t_ == 5: af.append(("box", 3, 4))
                if i == 8 and pl is not None: af.append(("y", pl))
                fs.append(Op("V", ("e", t_, i), l, after=af, needs=[("gl", t_)] if i == 0 else [], dist={lastacc[t_]: 8} if i == 4 else None))
            fs.append(Op("D", ("y", t_), f"ds_write_b64 v{VY}, {vr(E+2,2)} offset:{YB+576*t_}", after=[("e", t_, 9)] + ([("y", t_-1)] if t_ else []),
                         cost=3, dl=lastacc[t_][1] + (c.get("epdl", 14) if t_ else 30)))
        nst = [0]; lastq = []; lastst = []
        def store(P, half=None):
            k = nst[0]; nst[0] += 1
            ytile = 2*P + 1 if half is None else 2*P + half
            prevbar = "gbar" if k == 0 else "ubar" if k == 1 else ("bar", k-1)
            fs.append(Op("X", ("bar", k), lambda: [r_("s_barrier"), cst(f"ba{ {1:0, 3:1, 5:2, 6:3, 7:4}.get(ytile) }")], needs=[("y", ytile)],
                         after=[prevbar], at=M0_ + c.get(f"{n_}b{k}", 0), dl=lastacc[ytile][1] + c.get("stdl", 22) - 7))
            if half is not None and half != Y: return
            fs.append(Op("D", ("t0", k), f"ds_read_b64_tr_b16 {vr(SD,2)}, v{VT0} offset:{YB+1152*P}", after=[("bar", k)] + lastst[-1:] + (["dpre"] if c["dpre"] else [])))
            fs.append(Op("D", ("t1", k), f"ds_read_b64_tr_b16 {vr(SD+2,2)}, v{VT1} offset:{YB+1152*P}", after=[("t0", k)]))
            def emit():
                r_(f"buffer_store_dwordx4 {vr(SD,4)}, v11, {sr(SRD_OUT,4)}, s{(S_COL, 9, 8, 62)[P]} offen" + (" nt" if c.get("ont", 0) else ""))
                vm.append(("st", k)); cst(f"st{P}")
            fs.append(Op("X", ("st", k), emit, needs=[("t1", k)], after=["u2w"], cost=2, dl=lastacc[ytile][1] + c.get("stdl", 22)))
            lastst.append(("st", k))
        for cc in range(8):
            hasP, hasQ = cc <= 5, cc <= 3
            def nxt(k, after):
                if cc < 7 and (k < 8 or cc + 1 <= 5):
                    fs.append(Op("D", ("B", cc+1, k), btext(cc+1, k), after=[after] + (["ubar"] if cc + 1 >= 4 else [])))
            an = (lambda tt: [("A", tt, 1)]) if cc == 0 else (lambda tt: [])
            tn = (lambda r: [("T", r, 1)]) if cc == 1 else (lambda r: [])
            zero = ((0, A, 0), (1, A+32, 8), (2, A+64, 16), (4, C2, None))
            mz = lambda dl, ra, tt: mm(cc, cc+dl, ra, bslot(0), [("B", cc, 0)] + (an(tt) if tt is not None else []))
            l0 = None
            if cc >= c.get("split", 5):
                for t0 in range(1, 8): mm(cc, cc, A+4*t0, bslot(t0), [("B", cc, t0)])
                l0 = mz(*zero[0])
                for t0 in range(1, 8):
                    if cc < 7: nxt(t0, mm(cc, cc+1, A+32+4*t0, bslot(t0), []))
                for z in zero[1:]: l0 = mz(*z) or l0
            else:
                for t0 in range(1, 8):
                    l = mm(cc, cc, A+4*t0, bslot(t0), [("B", cc, t0)] + an(t0))
                    l = mm(cc, cc+1, A+32+4*t0, bslot(t0), an(t0+8)) or l
                    nxt(t0, l)
                for z in zero: l0 = mz(*z) or l0
            if cc == 0:
                if not Y:
                    fs.append(Op("X", "rec", records, at=M0_ + c["xrec"], dl=-50, cost=8))
                    for nm, t_ in gv: fs.append(Op("V", nm, t_, after=["rec"]))
                    for q, (nm, t_) in enumerate(gw): fs.append(Op("D", nm, t_, after=[("g", 2*q), ("g", 2*q+1)], cost=3))
                    fs.append(Op("X", "gbar", gbar, needs=[("gw", 0), ("gw", 1)], at=M0_ + c["xgb"], dl=c["xgb"] - 20))
                if c["dpre"] and P_("dp") >= 0:
                    fs.append(Op("X", "dpre", dp, at=M0_ + P_("dp"), dl=P_("dp") - 20, cost=3))
                if ua >= 0: fs.append(Op("X", "u2a", lambda: [r_(utext(1, 0, 0)), vm.append("u2a")], at=M0_ + ua, dl=ua - 20, cost=2))
                if ub >= 0: fs.append(Op("X", "u2b", lambda: [r_(utext(1, 1, 0)), vm.append("u2b")], after=["u2a"] if ua >= 0 else [], at=M0_ + ub, dl=ub - 20, cost=2))
                fs.append(Op("X", "u2w", lambda: [cst("uw0"), r_(vmwait("u2b")), cst("uw1")], after=[("t1", 0), "u2b"], at=M0_ + P_("uw")))
                epilogue(0, ["gbar"])
                for hf in range(2):
                    for k in range(4):
                        ch = 4*hf + k
                        fs.append(Op("V", ("up", ch), f"v_perm_b32 v{SD+k}, v{U2+ch//2}, v{U2+4+ch//2}, s{64+ch%2}",
                                     after=["u2w"] + ([("uw", 1, ch-4)] if hf else []), dist={("st", 0): 2}))
                    fs.append(Op("X", ("um", hf), (lambda hf=hf: r_(f"s_mov_b32 m0, s{68+hf}")), after=[("uw", 1, 3)] if hf else []))
                    for k in range(4):
                        ch = 4*hf + k
                        fs.append(Op("D", ("uw", 1, ch), f"ds_write_addtid_b32 v{SD+k} offset:{k*REG}",
                                     after=[("up", ch)] + ([("uw", 1, ch-1)] if ch else []), dist={("um", hf): 1}))
                fs.append(Op("X", "ubar", lambda: r_("s_barrier"), needs=[("uw", 1, 7)], at=M0_ + c.get(n_ + "ub", 0)))
            else:
                epilogue(cc, [])
            if cc >= 4: store(cc//2, cc % 2)
            elif cc % 2 == 1: store(cc//2)
            if cc == 4:
                def gat():
                    gather_loads(); S.n += 2; vm.append("gat0"); vm.append("gat")
                fs.append(Op("X", "gat", gat, at=M0_ + P_("gat"), dl=P_("gat"), cost=3))
            pc = cc - 1
            if 0 <= pc <= 5:
                for dl in (2, 3, 4):
                    mm(cc, pc+dl, BX, TP12[dl], tn(TP12[dl]), {("cv", pc, 0, p): 2 for p in range(4)})
                    mm(cc, pc+dl, BX+8, TP34[dl], tn(TP34[dl]), {("cv", pc, 2, p): 2 for p in range(4)})
            if 0 <= pc <= 3:
                for dl in (4, 5, 6, 7):
                    mm(cc, pc+dl, BX+16, TQ[dl], tn(TQ[dl]), {("cv", pc, 4, p): 2 for p in range(4)})
            if cc == 4: lastq.append(ms[-1].name)
            if hasP:
                for (i, k, rc) in boxes:
                    if i < 4 or hasQ:
                        ms.append(Op("M", ("box", cc, i), mtext(BX+4*i, bslot(k), rc, 0), needs=[("B", cc, k)]))
                        if k == 0: l0 = ("box", cc, i)
                nxt(8, ms[-1].name)
                for i in ((0, 2, 4) if hasQ else (0, 2)):
                    for p in range(4):
                        fs.append(Op("V", ("cv", cc, i, p), f"v_cvt_pk_bf16_f32 v{BX+4*i+p}, v{BX+4*i+p}, v{BX+4*i+4+p}",
                                     dist={("box", cc, i): 8, ("box", cc, i+1): 8}))
            nxt(0, l0)
        [f for f in fs if f.name == "gat"][0].after += lastq
        S.log = []
        S.run(ms, fs, budget=lambda i: 2, wfree=c["wfree"],
              pre=[f.name for f in fs if f.name[0] == "A"], npre=2, lead={"B": c["blead"], "cv": c.get("clead", 8), "T": c.get("tlead", 8)})
        if c.get("log"): print(n_, "".join(S.log))
        cst("gw0")
        a(vmwait("gat"))
        cst("gw1")
    a("s_bitcmp1_b32 s3, 2")
    a("s_cbranch_scc1 LC_ypath")
    path(0)
    a("s_branch LC_final")
    a("LC_ypath:")
    path(1)
    a("LC_final:")
    for i in range(4): a(f"s_bfe_u32 s{12+i}, s{S_TAG}, {0x80000 + 8*i:#x}")
    a("s_mov_b32 s10, 0")
    a("s_cmp_eq_u32 s3, 7")
    a("s_cbranch_scc1 LC_poll4")
    a("LC_poll3:")
    for i in range(8):
        a(f"v_xor_b32 v{64+i}, s{12+i%4}, v{GA+i}")
    a("v_or3_b32 v3, v64, v65, v66")
    a("v_or3_b32 v4, v67, v68, v69")
    a("v_or3_b32 v3, v70, v71, v3")
    a("v_or_b32 v3, v3, v4")
    a("v_and_b32 v3, 0xff, v3")
    a("v_cmp_ne_u32 vcc, 0, v3")
    a("s_cbranch_vccnz LC_poll3_retry")
    a("LC_poll3_ok:")
    if STAMP["on"]: a(f"s_mov_b32 s{ST0+22}, s10")
    GA_, GA = GA, 64
    a(f"v_pk_add_f32 {vr(GA,2)}, {vr(GA,2)}, {vr(GA+4,2)}")
    a(f"v_pk_add_f32 {vr(GA+2,2)}, {vr(GA+2,2)}, {vr(GA+6,2)}")
    a("s_lshl_b32 s6, s3, 8")
    a(f"s_add_u32 m0, s6, {RED2}")
    a(f"v_permlane32_swap_b32 v{GA}, v{GA+2}")
    a(f"v_permlane32_swap_b32 v{GA+1}, v{GA+3}")
    a(f"v_pk_add_f32 {vr(GA,2)}, {vr(GA,2)}, {vr(GA+2,2)}")
    a("s_nop 1")
    a(f"v_permlane16_swap_b32 v{GA}, v{GA+1}")
    a(f"v_add_f32 v{GA}, v{GA}, v{GA+1}")
    a(f"ds_write_addtid_b32 v{GA}")
    a("s_waitcnt lgkmcnt(0)")
    a("s_barrier")
    stamp_dump(a, 0, 13)
    a("s_endpgm")
    GA = GA_
    a("LC_poll4:")
    a(f"v_cmp_ne_u32 vcc, s{S_TAG}, v{GA+1}")
    a("v_and_b32 v3, 7, v1")
    a("s_cbranch_vccnz LC_poll4_retry")
    a("LC_poll4_ok:")
    a(f"v_not_b32 v64, v{GA}")
    a("v_and_b32 v64, 2047, v64")
    a(f"v_mul_u32_u24 v4, {REG}, v3")
    a("v_lshrrev_b32 v5, 8, v64")
    a("v_bfe_u32 v8, v64, 2, 2")
    a("v_lshl_add_u32 v5, v5, 2, v8")
    a("v_mul_u32_u24 v5, 144, v5")
    a("v_bfe_u32 v8, v64, 4, 4")
    a("v_lshl_add_u32 v4, v8, 3, v4")
    a("v_and_b32 v8, 3, v64")
    a("v_lshl_add_u32 v5, v8, 1, v5")
    a("v_add_u32 v4, v4, v5")
    a(f"ds_read_u16 v66, v4 offset:{YB}")
    a("v_lshlrev_b32 v64, 11, v64")
    a("v_lshl_add_u32 v64, v3, 1, v64")
    a("v_lshlrev_b32 v2, 2, v1")
    a(f"v_add_u32 v2, {RED2}, v2")
    a("s_waitcnt lgkmcnt(0)")
    a("v_lshlrev_b32 v66, 16, v66")
    a("s_barrier")
    for w in range(0, 6, 2):
        a(f"ds_read2st64_b32 {vr(68+w,2)}, v2 offset0:{w} offset1:{w+1}")
    a("ds_read_b32 v67, v2 offset:1536")
    a("s_waitcnt lgkmcnt(2)")
    a("v_pk_add_f32 v[68:69], v[68:69], v[70:71]")
    a("s_waitcnt lgkmcnt(0)")
    a("v_pk_add_f32 v[66:67], v[66:67], v[72:73]")
    a("v_pk_add_f32 v[66:67], v[66:67], v[68:69]")
    a("v_add_f32 v66, v66, v67")
    a("v_cvt_pk_bf16_f32 v66, v66, v66")
    a(f"buffer_store_short v66, v64, {sr(SRD_OUT,4)}, s{S_COL} offen")
    stamp_dump(a, 0, 13)
    a("s_endpgm")
    for k in (3, 4):
        a(f"LC_poll{k}_retry:")
        a("s_add_u32 s10, s10, 1")
        a(f"s_cmp_ge_u32 s10, {SPIN if not c.get('x_nowait') else 0}")
        a(f"s_cbranch_scc1 LC_poll{k}_ok")
        a("s_sleep 2")
        a("s_mov_b64 exec, vcc")
        gather_loads()
        a("s_mov_b64 exec, -1")
        a("s_waitcnt vmcnt(0)")
        a(f"s_branch LC_poll{k}")
    for n_ in "xy":
        a(f"LC_poll1{n_}_retry:")
        a("s_add_u32 s10, s10, 1")
        a(f"s_cmp_ge_u32 s10, {SPIN}")
        a(f"s_cbranch_scc1 LC_poll1{n_}_ok")
        a(f"v_mov_b32 v{EP+9}, 0")
        a(f"global_load_dwordx2 {vr(TG,2)}, v{EP+9}, {sr(S_DBG,2)} sc1")
        a("s_mov_b64 exec, vcc")
        rec_loads()
        a("s_mov_b64 exec, -1")
        a("s_waitcnt vmcnt(0)")
        a(f"v_readfirstlane_b32 s66, v{TG}")
        a(f"v_readfirstlane_b32 s67, v{TG+1}")
        a("s_xor_b32 s67, s67, 1")
        a(f"s_branch LC_poll1{n_}")

def build():
    a = Asm()
    stamp_init(a)
    a("s_cmp_ge_u32 s2, 256")
    a("s_cbranch_scc1 L_end")
    a("s_load_dwordx16 s[16:31], s[0:1], 0")
    a("s_load_dwordx16 s[32:47], s[0:1], 64")
    a("v_lshrrev_b32 v2, 6, v0")
    a("v_and_b32 v1, 63, v0")
    a("v_readfirstlane_b32 s3, v2")
    if CFG.get("cpre", 1):
        a("s_cmp_lg_u32 s3, 7")
        a("s_cbranch_scc1 L_nocpre")
        a("s_getpc_b64 s[4:5]")
        a("L_pc:")
        a("s_bfe_u32 s6, s2, 0x20003")
        a("s_lshl_b32 s6, s6, 13")
        a("v_lshl_add_u32 v3, v1, 7, s6")
        a("v_min_u32 v3, L_codeend-L_pc-4, v3")
        a("global_load_dword v63, v3, s[4:5]")
        a("L_nocpre:")
    a("s_cmp_ge_u32 s2, 128")
    a("s_cbranch_scc1 L_conv")
    moe(a)
    a("L_conv:")
    conv(a)
    a("L_end:")
    a("s_endpgm")
    a("L_codeend:")
    return header([f"; @launch grid=(256,1,1) block=(512,1,1) lds={LDS_TOTAL}"]) + kstart(KN) + a.text() + RODATA + kdesc(KN, 256)

if __name__ == "__main__":
    import sys
    from lint import lint
    name = "v14"
    for kv in sys.argv[1:]:
        if "=" in kv:
            k, v = kv.split("="); CFG[k] = int(v)
        else: name = kv
    t = build()
    assert not lint(t), lint(t)
    open(f"gen/{name}.s", "w").write(t)
    if CFG.get("only"): sys.exit(0)
    CFG["log"] = 0
    STAMP["on"] = True
    open(f"gen/{name}_ts.s", "w").write(build())
    STAMP["clk"] = True
    open(f"gen/{name}_clk.s", "w").write(build())
```

```python
from blocks import *
from sched import *

WS_E    = 0xF000
WS_KEYS = 0x20000
SPIN = 40000
TAGINC = 0x9e3779b1
WS_KA = 0x28000
WS_KB = 0x38000
WS_XI = 0x30000
SRD_WD = 56

CFG = dict(n0=2, n1=4, n2=10, n3=14, nd1=4, dpre=1, sprefetch=1, wpre=4, wpat=4, u1at=24, gb=0, wfree=0, blead=8, epdl=8, stdl=16, lat=4,
           xrec=30, xgb=40, xdp=54, xb0=84, xuw=0, xgat=190,
           yrec=5, yb2=0, xT=0, xu1=1, tat=2, ydp=20, yb0=0, yuw=0, ygat=184, yprio=1, fast=2, nd2=6, agd=2, nd0=0, kbar2=0, wbar8=0, wn=0, d1=0, pw=0, kpt=0, pp=0, na=4, ksl=3, upat=-1, u0at=4, xua=-2, xub_=12, yua=-10, yub_=-20)

DPP_FULL = "row_mask:0xf bank_mask:0xf"

L_REC, L_SEL, L_TAU, L_CNT = 0, 128, 160, 164
L_HB, L_ZERO, L_MB, L_RG, L_RED, L_D = 256, 1536, 2048, 8192, 16384, 49152

def moe(a):
    c = CFG
    SETS = [{k: k for k in range(1, 11)},
            {5: 1, "barC": 2, "bis0": 3, "bis1": 4, 6: 5, "xs": 6, "d2": 7, "dl": 8, "w": 9, 7: 10},
            {7: 1, "mf": 2, "barE": 3, 8: 4, "ack": 5, 9: 6, "hw": 7, "barF": 8, "mf2": 9, 10: 10},
            {"ka": 1, 1: 2, "e": 3, "wv": 4, "wb": 5, "rv": 6, 2: 7, "dots": 8, "barA": 9, 3: 10}]
    def mst(nm):
        k = SETS[c.get("mfine", 0)].get(nm)
        if k: stamp(a, k)
    R, O, DO, B, ACC = 64, 128, 192, 224, 240
    X, WR, GW = O, O + 16, O + 24
    PL, KEY, IDX, SC = 16, 24, 28, 32
    VW = 6
    S_TAG, S_TB, S_G, S_S = 60, 61, 62, 63
    a("s_and_b32 s4, s2, 7")
    a("s_lshr_b32 s5, s2, 3")
    a(f"s_mul_i32 s{S_G}, s4, 7")
    a("s_lshr_b32 s6, s5, 1")
    a(f"s_add_u32 s{S_G}, s{S_G}, s6")
    a(f"s_and_b32 s{S_S}, s5, 1")
    a("v_lshlrev_b32 v3, 4, v1")
    a("s_lshl_b32 s6, s2, 3")
    a("s_add_u32 s6, s6, s3")
    a("s_lshl_b32 s6, s6, 12")
    a("v_add_u32 v4, s6, v3")
    a(f"s_lshl_b32 s6, s{S_S}, 3")
    a("s_add_u32 s6, s6, s3")
    a("s_lshl_b32 s6, s6, 6")
    a("v_lshrrev_b32 v8, 4, v1")
    a("v_and_b32 v9, 7, v1")
    a("v_lshl_add_u32 v10, v8, 3, s6")
    a("v_mul_u32_u24 v12, 7168, v10")
    a(f"s_lshl_b32 s7, s{S_G}, 7")
    a("v_lshl_add_u32 v13, v9, 4, s7")
    a("v_add_u32 v12, v12, v13")
    a("v_mov_b32 v13, 0")
    a("v_and_b32 v2, 8, v1")
    a("v_cmp_eq_u32 s[12:13], 0, v2")
    a("s_waitcnt lgkmcnt(0)")
    mst("ka")
    a(f"s_load_dword s{S_TAG}, {sr(S_WS,2)}, {WS_E}")
    a("s_bitcmp1_b32 s3, 2")
    a(f"s_cselect_b64 s[14:15], {sr(S_GW,2)}, {sr(S_WR,2)}")
    a("s_and_b32 s6, s3, 3")
    a("s_lshl_b32 s6, s6, 9")
    a("v_add_u32 v2, s6, v3")
    a("s_lshl_b32 s6, s3, 9")
    a(f"s_add_u32 m0, s6, {L_RED}")
    a("s_mov_b32 exec_hi, 0")
    a("global_load_lds_dwordx4 v2, s[14:15]")
    a("s_mov_b32 exec_hi, -1")
    for i in range(4):
        a(f"global_load_dwordx4 {vr(X+4*i,4)}, v4, {sr(S_X,2)} offset:{i*1024}")
    a(f"v_mov_b32 v{VW}, s{S_WU}")
    a(f"v_mov_b32 v{VW+1}, s{S_WU+1}")
    a(f"v_mov_b32 v14, s{S_WG}")
    a(f"v_mov_b32 v15, s{S_WG+1}")
    a(f"v_cndmask_b32 v{VW}, v{VW}, v14, s[12:13]")
    a(f"v_cndmask_b32 v{VW+1}, v{VW+1}, v15, s[12:13]")
    a(f"v_lshl_add_u64 {vr(VW,2)}, {vr(VW,2)}, 0, v[12:13]")
    a("s_lshl_b32 s6, s3, 4")
    a("v_mov_b32 v44, s6")
    a("v_lshlrev_b32 v45, 3, v1")
    a("s_mov_b32 s8, 7168")
    a("s_mov_b32 s9, 0")
    a(f"s_mov_b32 s10, {25*7168}")
    a("s_mov_b32 s11, 0")
    def wloads(lo, hi):
        for n in range(lo, hi):
            a(f"global_load_dwordx4 {vr(R+4*n,4)}, {vr(VW,2)}, off nt")
            if n == 7:    a(f"v_lshl_add_u64 {vr(VW,2)}, s[10:11], 0, {vr(VW,2)}")
            elif n < 15:  a(f"v_lshl_add_u64 {vr(VW,2)}, s[8:9], 0, {vr(VW,2)}")
    a("s_cmp_ge_u32 s5, 14")
    a("s_cbranch_scc1 LM_spare0")
    a("s_barrier")
    wloads(0, c["n0"])
    mst(1)
    for r in range(4): a(f"v_mov_b32 v{40+r}, 0")
    def wfetch(nafter):
        if c.get("mfine") == 3 and STAMP["on"]:
            a("s_waitcnt lgkmcnt(0)"); mst("e")
        a(f"s_waitcnt vmcnt({nafter+4})")
        mst("wv")
        a("s_barrier")
        mst("wb")
        for i in range(4):
            a(f"ds_read_b128 {vr(WR+4*i,4)}, v3 offset:{L_RED+1024*i}")
        a(f"s_waitcnt vmcnt({nafter}) lgkmcnt(0)")
        mst("rv")
    wfetch(c["n0"])
    wloads(c["n0"], c["n1"])
    a("s_branch LM_rows")
    a("LM_spare0:")
    a("s_cmp_lg_u32 s2, 112")
    a("s_cbranch_scc1 LM_spare1")
    a("s_cmp_lg_u32 s3, 1")
    a("s_cbranch_scc1 LM_spare1")
    a("s_waitcnt lgkmcnt(0)")
    a(f"s_add_u32 s6, s{S_TAG}, {TAGINC:#x}")
    a("v_mov_b32 v46, s6")
    a("v_mov_b32 v47, 1")
    a("v_mov_b32 v2, 0")
    a("s_mov_b64 exec, 1")
    a(f"global_store_dwordx2 v2, v[46:47], {sr(S_DBG,2)} sc1")
    a("s_mov_b64 exec, -1")
    a("LM_spare1:")
    for r in range(4): a(f"v_mov_b32 v{40+r}, 0")
    if c["sprefetch"]:
        a(f"s_lshr_b32 s6, s{S_WG}, 7")
        a("s_mul_i32 s7, s4, 7")
        a("s_add_u32 s6, s6, s7")
        a("s_sub_u32 s6, 3, s6")
        a("s_and_b32 s6, s6, 7")
        a("s_cmp_eq_u32 s6, 7")
        a("s_cselect_b32 s6, 0, s6")
        a("s_add_u32 s6, s6, s7")
        a("s_lshl_b32 s6, s6, 7")
        nlo = c.get("snlo", 4)
        a("v_and_b32 v2, 3, v1")
        a(f"v_add_u32 v2, {nlo}, v2")
        a("v_and_b32 v12, 8, v2")
        a("v_mul_u32_u24 v12, 3, v12")
        a("v_add3_u32 v2, v2, v12, v10")
        a("v_mul_u32_u24 v2, 7168, v2")
        a("v_add_u32 v2, s6, v2")
        a("s_barrier")
        a("s_mov_b32 exec_lo, 0x000f000f")
        a("s_mov_b32 exec_hi, 0x000f000f")
        a(f"global_load_dword v60, v2, {sr(S_WG,2)}")
        a(f"global_load_dword v61, v2, {sr(S_WU,2)}")
        a("s_mov_b64 exec, -1")
        wfetch(2)
    else:
        wfetch(0)
    a("LM_rows:")
    mst(2)
    for i in range(8):
        a(f"v_dot2_f32_bf16 v40, v{X+i}, v{WR+i}, v40")
        a(f"v_dot2_f32_bf16 v41, v{X+i}, v{GW+i}, v41")
        a(f"v_dot2_f32_bf16 v42, v{X+8+i}, v{WR+i}, v42")
        a(f"v_dot2_f32_bf16 v43, v{X+8+i}, v{GW+i}, v43")
    a("s_waitcnt lgkmcnt(0)")
    a(f"s_add_u32 s{S_TAG}, s{S_TAG}, {TAGINC:#x}")
    a(f"s_getreg_b32 s{S_TB}, hwreg(HW_REG_XCC_ID, 0, 4)")
    for st in (f"row_shr:1 {DPP_FULL} bound_ctrl:0", f"row_shr:2 {DPP_FULL} bound_ctrl:0",
               f"row_shr:4 {DPP_FULL} bound_ctrl:0", f"row_shr:8 {DPP_FULL} bound_ctrl:0",
               "row_bcast:15 row_mask:0xa bank_mask:0xf", "row_bcast:31 row_mask:0xc bank_mask:0xf"):
        for r in range(4):
            a(f"v_add_f32_dpp v{40+r}, v{40+r}, v{40+r} {st}")
    mst("dots")
    a("s_mov_b32 exec_lo, 0")
    a("s_mov_b32 exec_hi, 0x80000000")
    a(f"ds_write_b128 v44, v[40:43] offset:{L_REC}")
    a("s_mov_b64 exec, -1")
    a("s_waitcnt lgkmcnt(0)")
    a("s_barrier")
    mst("barA")
    a("s_cmp_lg_u32 s3, 0")
    a("s_cbranch_scc1 LM_nopub")
    a(f"ds_read_b64 v[46:47], v45 offset:{L_REC}")
    a("s_lshl_b32 s6, s2, 7")
    a(f"s_add_u32 s6, s6, {WS_RG}")
    a("v_add_u32 v2, s6, v45")
    a(f"s_add_u32 s6, s6, {WS_XI - WS_RG}")
    a("v_writelane_b32 v2, s6, 16")
    a(f"v_mov_b32 v48, s{S_TB}")
    a(f"v_mov_b32 v49, s{S_TAG}")
    a("s_mov_b32 s6, 0x07060100")
    a("s_mov_b64 exec, 0xffff")
    a("s_waitcnt lgkmcnt(0)")
    a("v_cvt_pk_bf16_f32 v46, v47, v46")
    a("v_lshlrev_b32 v47, 16, v46")
    a("v_mul_f32 v47, 0xbfb8aa3b, v47")
    a("v_exp_f32 v47, v47")
    a("v_ashrrev_i32 v50, 31, v46")
    a("v_add_f32 v47, 1.0, v47")
    a("v_rcp_f32 v47, v47")
    a("v_or_b32 v50, 0x80000000, v50")
    a("v_cvt_pk_bf16_f32 v47, v47, v47")
    a("v_xor_b32 v46, v46, v50")
    a("v_perm_b32 v48, v46, v47, s6")
    a("s_mov_b64 exec, 0x1ffff")
    a(f"global_store_dwordx2 v2, v[48:49], {sr(S_WS,2)} sc1")
    a("s_mov_b64 exec, -1")
    a("LM_nopub:")
    mst(3)
    a("s_cmp_ge_u32 s5, 14")
    a("s_cbranch_scc1 LM_spare")
    a("s_barrier")
    wloads(c["n1"], c["n1"] + 2)
    VDA, VTR, VRD, VPO, VPP, VH, VA, VPT, VSL = 42, 44, 48, 49, 50, 51, 52, 11, 62
    a.srd(SRD_X, S_X, 4194304)
    a.srd(SRD_WD, S_WD, 7340032)
    a("v_mov_b32 v12, 0")
    a("v_lshlrev_b32 v13, 2, v1")
    a(f"ds_write_b32 v13, v12 offset:{L_ZERO}")
    a("s_lshl_b32 s6, s3, 9")
    a("v_lshl_add_u32 v14, v1, 3, s6")
    a("s_mov_b32 s64, 0x05040100")
    a("s_mov_b32 s65, 0x07060302")
    a("v_lshrrev_b32 v56, 5, v1")
    a("v_bfe_u32 v57, v1, 4, 1")
    a("v_bfe_u32 v58, v1, 3, 1")
    a("v_lshlrev_b32 v2, 2, v56")
    a("v_xor_b32 v2, v2, v9")
    a("v_lshrrev_b32 v59, 3, v1")
    a("v_lshlrev_b32 v59, 11, v59")
    a(f"v_lshl_add_u32 v{VDA}, v2, 4, v59")
    a(f"v_xor_b32 v{VDA+1}, 32, v{VDA}")
    a(f"s_lshl_b32 s70, s{S_G}, 17")
    a(f"s_lshl_b32 s7, s{S_S}, 10")
    a("s_add_u32 s70, s70, s7")
    a("s_lshl_b32 s7, s3, 7")
    a("s_add_u32 s70, s70, s7")
    a("s_lshl_b32 s71, s3, 13")
    a(f"s_add_u32 s71, s71, {L_D}")
    a("v_bfe_u32 v59, v1, 2, 1")
    a("v_lshlrev_b32 v2, 11, v56")
    a("v_lshl_add_u32 v2, v57, 9, v2")
    a("v_lshl_add_u32 v2, v58, 7, v2")
    a("v_lshl_add_u32 v2, v59, 10, v2")
    a("v_lshl_add_u32 v2, v59, 5, v2")
    a("v_lshl_add_u32 v2, v57, 6, v2")
    a("v_and_b32 v59, 3, v1")
    a("v_lshl_add_u32 v2, v59, 3, v2")
    a(f"v_add_u32 v{VTR}, s71, v2")
    for t_ in range(1, 4):
        a(f"v_xor_b32 v{VTR+t_}, {32*t_}, v{VTR}")
    a("s_and_b32 s6, s3, 3")
    a("s_lshr_b32 s7, s3, 2")
    a("s_lshl_b32 s15, s6, 1")
    a("s_add_u32 s15, s15, s7")
    a("s_lshl_b32 s15, s15, 9")
    a(f"s_add_u32 s15, s15, {L_RED}")
    a(f"v_add_u32 v{VRD}, s15, v13")
    a("s_lshl_b32 s7, s7, 3")
    a("s_add_u32 s6, s6, s7")
    a("s_lshl_b32 s6, s6, 2")
    a("v_mul_u32_u24 v2, 144, v9")
    a(f"v_lshl_add_u32 v{VH}, v57, 6, v2")
    a(f"v_lshl_add_u32 v{VH}, v58, 4, v{VH}")
    a(f"v_lshl_add_u32 v{VH}, v56, 1, v{VH}")
    a(f"v_add_u32 v{VH}, s6, v{VH}")
    a("v_lshl_add_u32 v2, v8, 4, v2")
    a(f"v_mov_b32 v59, {L_ZERO-L_HB}")
    a(f"v_cndmask_b32 v{VA}, v59, v2, s[12:13]")
    a(f"v_cndmask_b32 v{VA+1}, v2, v59, s[12:13]")
    a(f"s_lshl_b32 s6, s{S_G}, 1")
    a(f"s_add_u32 s6, s6, s{S_S}")
    a("s_lshl_b32 s6, s6, 12")
    a(f"s_add_u32 s6, s6, {WS_PRE}")
    a(f"v_add_u32 v{VPO}, s6, v14")
    a(f"v_xor_b32 v{VPP}, 4096, v{VPO}")
    a(f"s_lshl_b32 s6, s{S_S}, 3")
    a("s_add_u32 s6, s6, s3")
    a("s_lshl_b32 s6, s6, 17")
    a(f"s_lshl_b32 s7, s{S_G}, 8")
    a("s_add_u32 s6, s6, s7")
    a(f"s_add_u32 s6, s6, {WS_PART}")
    a(f"v_lshl_add_u32 v{VPT}, v56, 15, s6")
    a(f"v_lshl_add_u32 v{VPT}, v58, 14, v{VPT}")
    a(f"v_lshl_add_u32 v{VPT}, v57, 7, v{VPT}")
    a(f"v_lshl_add_u32 v{VPT}, v9, 4, v{VPT}")
    a(f"v_add_u32 v4, 0x10000, v{VPT}")
    TV = (34, 35, 61, 13); HV = (0, 63)
    for i in range(4):
        a(f"s_bfe_u32 s6, s{S_TAG}, {0x80000 + 8*i:#x}")
        a(f"v_mov_b32 v{TV[i]}, s6")
    a("s_mov_b32 vcc_lo, 0xaaaaaaaa")
    a("s_mov_b32 vcc_hi, 0xaaaaaaaa")
    a(f"v_cndmask_b32 v{HV[0]}, v{TV[0]}, v{TV[2]}, vcc")
    a(f"v_cndmask_b32 v{HV[1]}, v{TV[1]}, v{TV[3]}, vcc")
    a(f"s_lshl_b32 s6, s{S_S}, 3")
    a("s_add_u32 s6, s6, s4")
    a("s_lshl_b32 s6, s6, 8")
    a(f"s_add_u32 s6, s6, {WS_KA}")
    a("v_lshl_add_u32 v5, v9, 3, s6")
    a("s_lshl_b32 s66, s2, 8")
    a(f"s_add_u32 s66, s66, {WS_KB}")
    a("v_lshl_add_u32 v15, v9, 3, s66")
    a("v_mov_b32 v60, 0x7ffffff0")
    a("s_mov_b32 s14, 0")
    def perms(kap, ps=(0, 1, 2, 3)):
        for e in range(8):
            for p in ps:
                a(f"v_perm_b32 v{O+32*kap+4*e+p}, v{R+32*kap+4*(2*p+1)+e//2}, v{R+32*kap+4*(2*p)+e//2}, s{64+e%2}")
    dnt = "" if c["dpre"] else " nt"
    def dloads(lo, hi_):
        for i in range(lo, hi_):
            a(f"s_add_u32 m0, s71, {1024*i}")
            a(f"s_add_u32 s7, s70, {8*i*2048}")
            a(f"buffer_load_dwordx4 v{VDA+i%2}, {sr(SRD_WD,4)}, s7 offen{dnt} lds")
    nd0, nd1 = c["nd0"], c["nd1"]
    def prewrite():
        for r in range(4): a(f"v_not_b32 v{16+r}, v{TV[r]}")
        for j in range(2): a(f"global_store_dwordx4 v{(VPT, 4)[j]}, v[16:19], {sr(S_WS,2)} sc1")
    if c["pw"] == 1: prewrite()
    wloads(c["n1"] + 2, 8)
    if c["pw"] == 2: prewrite()
    if c.get("wbar8", 1): a("s_barrier")
    wloads(8, 12)
    if c["fast"] == 2: a(f"global_load_dwordx2 v[54:55], v{VPP}, {sr(S_WS,2)} sc1")
    if c["kpt"]: a(f"global_load_dwordx2 v[36:37], v5, {sr(S_WS,2)} sc1")
    if c.get("wbar12", 1): a("s_barrier")
    a("s_lshl_b32 s11, s3, 12")
    a(f"s_add_u32 s11, s11, {L_RED}")
    a("s_mov_b32 s10, 0xffffff00")
    a(f"s_waitcnt vmcnt({8 + (c['fast'] == 2) + c['kpt']})")
    perms(0, (0, 1))
    wloads(12, 16)
    mst(4)
    KS_ = 16
    a("s_barrier")
    a("LM_try:")
    a(f"s_load_dwordx16 s[{KS_}:{KS_+15}], {sr(S_WS,2)}, s66")
    a("s_add_u32 s66, s66, 64")
    a("s_waitcnt lgkmcnt(0)")
    a(f"s_xor_b32 s6, s{KS_+1}, s{S_TAG}")
    for t_ in range(1, 8):
        a(f"s_xor_b32 s7, s{KS_+1+2*t_}, s{S_TAG}")
        a("s_or_b32 s6, s6, s7")
    a("s_cbranch_scc1 LM_try_again")
    a("s_mov_b32 exec_lo, 0x01010101")
    a("s_mov_b32 exec_hi, 0x01010101")
    for t_ in range(8):
        a(f"v_not_b32 v38, s{KS_+2*t_}")
        a("s_lshl_b64 exec, exec, 1" if t_ < 7 else "s_mov_b64 exec, -1")
    a("LM_keys:")
    if STAMP["on"]: a(f"s_mov_b32 s{ST0+24}, s14")
    mst(5)
    a("v_and_b32 v39, 2047, v38")
    a("v_lshlrev_b32 v38, 11, v39")
    a("v_lshl_add_u32 v38, v10, 1, v38")
    a("v_cndmask_b32 v40, v60, v38, s[12:13]")
    a("v_cndmask_b32 v41, v38, v60, s[12:13]")
    a(f"buffer_load_dwordx4 {vr(B,4)}, v40, {sr(SRD_X,4)}, 0 offen")
    a(f"buffer_load_dwordx4 {vr(B+12,4)}, v41, {sr(SRD_X,4)}, 0 offen offset:64")
    mst("xs")
    a(f"s_mov_b32 s{S_TB}, s{KS_}")
    if c["pp"] == 1:
        a("s_waitcnt vmcnt(6)")
        perms(0, (2, 3)); perms(1, (0, 1))
    a("s_barrier")
    mst(6)
    dloads(0, nd1)
    mst("dl")
    a("s_mov_b32 m0, s11")
    if c["pp"] == 0:
        a(f"s_waitcnt vmcnt({nd1+6})")
        perms(0, (2, 3)); perms(1, (0, 1))
    a(f"s_waitcnt vmcnt({nd1+4})")
    perms(1, (2,))
    pz = [(e, 3) for e in (4, 0, 5, 1, 6, 2, 7, 3)]
    a(f"s_waitcnt vmcnt({nd1})")
    a("LM_mf:")
    mst(7)
    seen = set()
    def gm(j, kap, hf):
        a(f"v_mfma_f32_16x16x32_bf16 {vr(ACC+4*j,4)}, {vr(O+32*kap+4*(j+4*hf),4)}, {vr(B+8*kap+4*hf,4)}, {vr(ACC+4*j,4) if j in seen else 0}")
        seen.add(j)
    wq = [f"ds_write_addtid_b32 v{ACC+4*j+r} offset:{1024*j+256*r}" for j in range(4) for r in range(4)]
    for j in range(4):
        gm(j, 0, 0)
        for q in (2*(j%2), 2*(j%2)+1):
            if j < 2: a(f"v_mov_b32_dpp v{B+4+q}, v{B+q} row_shr:8 {DPP_FULL} bound_ctrl:0")
            else:     a(f"v_mov_b32_dpp v{B+8+q}, v{B+12+q} row_shl:8 {DPP_FULL} bound_ctrl:0")
    npz = len(pz) // 4
    for j in range(4):
        gm(j, 0, 1)
        for _ in range(npz):
            e, p = pz.pop(0)
            a(f"v_perm_b32 v{O+32+4*e+p}, v{R+32+4*(2*p+1)+e//2}, v{R+32+4*(2*p)+e//2}, s{64+e%2}")
    for n_, (j, hf) in enumerate([(j, hf) for j in range(4) for hf in (1, 0)]):
        gm(j, 1, hf)
        if n_ == 0: pass
        elif n_ < 4: a("s_nop 1")
        else: a(wq.pop(0)); a(wq.pop(0))
    mst("mf")
    for n_ in range(8):
        if n_ == 4: a("s_nop 1")
        a(wq.pop(0))
    a("s_waitcnt lgkmcnt(0)")
    a("s_barrier")
    mst("barE")
    for w in range(8):
        a(f"ds_read2st64_b32 {vr(R+2*w,2)}, v{VRD} offset0:{16*w} offset1:{16*w+1}")
    a(f"s_bitcmp0_b32 s{S_TB}, 11")
    a("s_waitcnt lgkmcnt(4)")
    a(f"v_pk_add_f32 {vr(R,2)}, {vr(R,2)}, {vr(R+2,2)}")
    a(f"v_pk_add_f32 {vr(R+4,2)}, {vr(R+4,2)}, {vr(R+6,2)}")
    a("s_waitcnt lgkmcnt(2)")
    a(f"v_pk_add_f32 {vr(R+8,2)}, {vr(R+8,2)}, {vr(R+10,2)}")
    a(f"v_pk_add_f32 {vr(R,2)}, {vr(R,2)}, {vr(R+4,2)}")
    a("s_waitcnt lgkmcnt(0)")
    a(f"v_pk_add_f32 {vr(R+12,2)}, {vr(R+12,2)}, {vr(R+14,2)}")
    a(f"v_pk_add_f32 {vr(R,2)}, {vr(R,2)}, {vr(R+8,2)}")
    a(f"v_pk_add_f32 {vr(O,2)}, {vr(R,2)}, {vr(R+12,2)}")
    a(f"v_and_or_b32 v{O+2}, v{O}, s10, v{HV[0]}")
    a(f"v_and_or_b32 v{O+3}, v{O+1}, s10, v{HV[1]}")
    if c["fast"]:
        a("s_cbranch_scc1 LM_far")
        a(f"global_store_dwordx2 v{VPO}, {vr(O+2,2)}, {sr(S_WS,2)}")
        a("LM_sent:")
    else:
        a(f"global_store_dwordx2 v{VPO}, {vr(O+2,2)}, {sr(S_WS,2)} sc1")
    mst(8)
    if c.get("ebar", 1): a("s_barrier")
    nd2 = c["nd2"]
    dloads(nd1, nd2)
    a("s_mov_b32 s14, 0")
    a(f"s_waitcnt vmcnt({nd2-nd1})")
    mst("ack")
    def poll2_loads():
        a(f"global_load_dwordx2 v[32:33], v5, {sr(S_WS,2)} offset:128 sc1")
        a(f"global_load_dwordx2 v[54:55], v{VPP}, {sr(S_WS,2)} sc1")
    poll2_loads()
    dloads(nd2, 8)
    def dreads(kap):
        for t_ in range(4):
            for pp in range(2):
                a(f"ds_read_b64_tr_b16 {vr(DO+16*kap+4*t_+2*pp,2)}, v{VTR+t_} offset:{4096*kap+256*pp}")
    assert nd1 >= 4
    dreads(0)
    if nd2 == 8:
        a("s_waitcnt vmcnt(2)")
        dreads(1)
    a(f"s_waitcnt vmcnt({8-nd2})")
    a("LM_poll2:")
    a(f"v_xor_b32 v56, v{HV[0]}, v54")
    a(f"v_xor_b32 v57, v{HV[1]}, v55")
    a("v_bitop3_b32 v2, v56, v57, s10 bitop3:0x54")
    a(f"v_bitop3_b32 v2, v33, s{S_TAG}, v2 bitop3:0xbe")
    a("v_cmp_ne_u32 vcc, 0, v2")
    a("s_cbranch_vccnz LM_poll2_retry")
    a("LM_poll2_ok:")
    if STAMP["on"]: a(f"s_mov_b32 s{ST0+22}, s14")
    mst(9)
    a(f"v_pk_add_f32 v[54:55], v[56:57], {vr(O,2)}")
    a("s_nop 1")
    a("v_permlane32_swap_b32 v54, v55")
    a("v_cvt_pk_bf16_f32 v55, v54, v55")
    a("v_lshlrev_b32 v54, 16, v55")
    a("v_mul_f32 v56, 0xbfb8aa3b, v54")
    a("v_exp_f32 v56, v56")
    a("v_and_b32 v55, 0xffff0000, v55")
    a("v_add_f32 v56, 1.0, v56")
    a("v_rcp_f32 v56, v56")
    a("v_mul_f32 v55, v55, v32")
    a("v_mul_f32 v54, v54, v56")
    a("v_mul_f32 v54, v54, v55")
    a("v_cvt_pk_bf16_f32 v54, v54, v54")
    a(f"ds_write_b16 v{VH}, v54 offset:{L_HB}")
    mst("hw")
    if nd2 < 8:
        a("s_waitcnt vmcnt(0)")
        dreads(1)
        a("s_waitcnt lgkmcnt(8)")
    else:
        a("s_waitcnt lgkmcnt(0)")
    a("s_barrier")
    mst("barF")
    for kap in range(2):
        for hf in range(2):
            a(f"ds_read_b128 {vr(B+8*kap+4*hf,4)}, v{VA+hf} offset:{L_HB+64*kap}")
    for n_, (kap, hf) in enumerate(((0,0), (0,1), (1,0), (1,1))):
        a(f"s_waitcnt lgkmcnt({3-n_})")
        for j in range(2):
            a(f"v_mfma_f32_16x16x32_bf16 {vr(ACC+4*j,4)}, {vr(B+8*kap+4*hf,4)}, {vr(DO+16*kap+4*(2*j+hf),4)}, {vr(ACC+4*j,4) if n_ else 0}")
    mst("mf2")
    a("s_nop 6")
    for j in range(2):
        for r in range(4):
            a(f"v_and_or_b32 v{ACC+4*j+r}, v{ACC+4*j+r}, s10, v{TV[r]}")
        a(f"global_store_dwordx4 v{(VPT, 4)[j]}, {vr(ACC+4*j,4)}, {sr(S_WS,2)} sc1")
    mst(10)
    if c.get("wb", 0) & 1:
        a("s_add_u32 s6, s5, s3")
        a("s_cmp_lg_u32 s6, 0")
        a("s_cbranch_scc1 LM_nowb")
        a("s_waitcnt vmcnt(0)")
        a("buffer_wbl2 sc1")
        a("s_waitcnt vmcnt(0)")
        a("LM_nowb:")
    stamp_dump(a, 0, 13)
    a("s_endpgm")
    if c["fast"]:
        a("LM_far:")
        a(f"global_store_dwordx2 v{VPO}, {vr(O+2,2)}, {sr(S_WS,2)} sc1")
        a("s_branch LM_sent")
    a("LM_poll2_retry:")
    a("s_add_u32 s14, s14, 1")
    a(f"s_cmp_ge_u32 s14, {SPIN}")
    a("s_cbranch_scc1 LM_poll2_ok")
    poll2_loads()
    a("s_waitcnt vmcnt(0)")
    a("s_branch LM_poll2")
    a("LM_try_again:")
    a("s_add_u32 s14, s14, 1")
    a(f"s_cmp_ge_u32 s14, {c['na']}")
    a("s_cbranch_scc1 LM_poll1")
    a(f"s_sleep {c['ksl']}")
    a("s_branch LM_try")
    a("LM_poll1:")
    a(f"global_load_dwordx2 v[36:37], v15, {sr(S_WS,2)} sc1")
    a("s_add_u32 s14, s14, 1")
    a(f"s_cmp_ge_u32 s14, {SPIN}")
    a("s_waitcnt vmcnt(0)")
    a(f"v_cmp_ne_u32 vcc, s{S_TAG}, v37")
    a("v_not_b32 v38, v36")
    a(f"v_readfirstlane_b32 s{KS_}, v36")
    a("s_cbranch_scc1 LM_keys")
    a("s_cbranch_vccnz LM_poll1")
    a("s_branch LM_keys")
    a("LM_spare:")
    a("s_lshl_b32 s6, s3, 8")
    a("s_sub_u32 s6, 2047, s6")
    a("v_lshlrev_b32 v2, 1, v1")
    a(f"v_sub_u32 v{IDX}, s6, v2")
    a(f"v_subrev_u32 v{IDX+1}, 1, v{IDX}")
    a(f"v_subrev_u32 v{IDX+2}, 0x80, v{IDX}")
    a(f"v_subrev_u32 v{IDX+3}, 0x81, v{IDX}")
    a("s_lshl_b32 s6, s3, 10")
    a("v_add_u32 v14, s6, v3")
    a(f"s_add_u32 s6, s6, {L_RG}")
    a("v_lshl_add_u32 v15, v1, 3, s6")
    a("s_lshl_b32 s6, s3, 11")
    a(f"s_add_u32 s6, s6, {WS_RG}")
    a("v_add_u32 v5, s6, v3")
    a("s_lshl_b32 s6, s4, 7")
    a(f"s_add_u32 s6, s6, {WS_XI}")
    a("v_min_u32 v59, 13, v1")
    a("v_lshl_add_u32 v59, v59, 10, s6")
    a("s_sub_u32 s70, s2, 112")
    a("s_lshl_b32 s70, s70, 8")
    a(f"s_add_u32 s70, s70, {WS_KA}")
    a("s_mov_b32 s66, 0xffff0000")
    a("s_mov_b32 s14, 0")
    a(f"s_lshl_b32 s6, s{S_S}, 3")
    a("s_add_u32 s6, s6, s4")
    a("s_lshl_b32 s6, s6, 8")
    a(f"s_add_u32 s6, s6, {WS_KB}")
    a("v_lshl_add_u32 v50, v8, 12, s6")
    a("v_and_b32 v2, 15, v1")
    a("v_lshl_add_u32 v50, v2, 4, v50")
    a("v_add_u32 v51, 0x4000, v50")
    a("v_and_b32 v52, 3, v1")
    a("v_lshlrev_b32 v52, 3, v52")
    def kcopies(fl):
        a(f"global_store_dwordx4 v50, v[44:47], {sr(S_WS,2)}{fl}")
        a("s_mov_b32 exec_hi, 0xffff")
        a(f"global_store_dwordx4 v51, v[44:47], {sr(S_WS,2)}{fl}")
        a("s_mov_b32 exec_hi, -1")
    a("s_cmp_lg_u32 s3, 0")
    a("s_cbranch_scc1 LA_nopw")
    for r in range(4): a(f"v_not_b32 v{44+r}, s{S_TAG}")
    kcopies("")
    a("LA_nopw:")
    a("s_waitcnt vmcnt(0)")
    a("s_barrier")
    if c["agd"]: a(f"s_sleep {c['agd']}")
    mst(4)
    a("LA_poll:")
    a(f"global_load_dwordx2 v[56:57], v59, {sr(S_WS,2)} sc1")
    for q in range(2):
        a(f"global_load_dwordx4 {vr(PL+4*q,4)}, v5, {sr(S_WS,2)} offset:{1024*q} sc1")
    a("s_mov_b64 exec, -1")
    a("s_add_u32 s14, s14, 1")
    a(f"s_cmp_ge_u32 s14, {SPIN}")
    a("s_waitcnt vmcnt(0)")
    a(f"v_xor_b32 v2, s{S_TAG}, v57")
    for i in (1, 3, 5, 7):
        a(f"v_bitop3_b32 v2, v{PL+i}, s{S_TAG}, v2 bitop3:0xbe")
    a("v_cmp_ne_u32 vcc, 0, v2")
    a("s_cbranch_scc1 LA_poll_ok")
    a("s_cbranch_vccz LA_poll_ok")
    a("s_mov_b64 exec, vcc")
    a("s_branch LA_poll")
    a("LA_poll_ok:")
    if STAMP["on"]: a(f"s_sub_u32 s{ST0+24}, s14, 1")
    mst(5)
    for i in range(4):
        a(f"v_and_or_b32 v{KEY+i}, v{PL+2*i}, s66, v{IDX+i}")
    a(f"v_max_u32 v40, v{KEY}, v{KEY+1}")
    a(f"v_min_u32 v41, v{KEY}, v{KEY+1}")
    a(f"v_max3_u32 v36, v40, v{KEY+2}, v{KEY+3}")
    a(f"v_med3_u32 v42, v40, v{KEY+2}, v{KEY+3}")
    a(f"v_min3_u32 v43, v40, v{KEY+2}, v{KEY+3}")
    a("v_max_u32 v37, v42, v41")
    a("v_med3_u32 v38, v42, v43, v41")
    a(f"ds_write_b128 v14, v[36:39] offset:{L_RED}")
    a(f"ds_write2_b32 v15, v{PL}, v{PL+2} offset0:0 offset1:1")
    a(f"ds_write2_b32 v15, v{PL+4}, v{PL+6} offset0:128 offset1:129")
    a(f"v_cmp_ne_u32 s[64:65], s{S_TB}, v56")
    a("s_waitcnt lgkmcnt(0)")
    a("s_barrier")
    mst(6)
    a("s_cmp_lg_u32 s3, 0")
    a("s_cbranch_scc1 LA_end")
    P = 64
    for i in range(1, 8):
        a(f"ds_read_b128 {vr(P+4*i,4)}, v3 offset:{L_RED+1024*i}")
    a("s_cmp_eq_u64 s[64:65], 0")
    a("s_cselect_b32 s71, 0x800, 0")
    if not c["fast"]: a("s_mov_b32 s71, 0")
    for r in (45, 47, 49, 55): a(f"v_mov_b32 v{r}, s{S_TAG}")
    ins = []
    for i in range(1, 8):
        x, y = P+4*i, P+4*i+1
        ins += [f"v_med3_u32 v38, v37, v38, v{x}", f"v_med3_u32 v37, v36, v37, v{x}", f"v_max_u32 v36, v36, v{x}",
                f"v_med3_u32 v38, v37, v38, v{y}", f"v_max_u32 v37, v37, v{y}"]
    ins += [f"v_max3_u32 v38, v38, v{P+6}, v{P+10}", f"v_max3_u32 v38, v38, v{P+14}, v{P+18}",
            f"v_max3_u32 v38, v38, v{P+22}, v{P+26}", f"v_max_u32 v38, v38, v{P+30}"]
    def fill(n):
        for _ in range(n): a(ins.pop(0))
    a("s_waitcnt lgkmcnt(5)")
    a(f"v_max3_u32 v40, v36, v{P+4}, v{P+8}")
    fill(5)
    a("s_waitcnt lgkmcnt(0)")
    a(f"v_max3_u32 v41, v{P+12}, v{P+16}, v{P+20}")
    a(f"v_max3_u32 v40, v40, v{P+24}, v{P+28}")
    a("v_max_u32 v40, v40, v41")
    for st in ("quad_perm:[1,0,3,2]", "quad_perm:[2,3,0,1]", "row_half_mirror"):
        fill(4)
        a(f"v_max_u32_dpp v40, v40, v40 {st} {DPP_FULL}")
    fill(4)
    a(f"v_min_u32_dpp v41, v40, v40 row_mirror {DPP_FULL}")
    a(f"v_max_u32_dpp v40, v40, v40 row_mirror {DPP_FULL}")
    for st in ("row_bcast:15 row_mask:0xa bank_mask:0xf", "row_bcast:31 row_mask:0xc bank_mask:0xf"):
        fill(4)
        a(f"v_min_u32_dpp v41, v41, v41 {st}")
        a(f"v_max_u32_dpp v40, v40, v40 {st}")
    fill(2)
    a("v_readlane_b32 s6, v41, 63")
    a("v_readlane_b32 s7, v40, 63")
    fill(len(ins))
    a("s_sub_u32 s14, s7, s6")
    a("s_lshr_b32 s14, s14, 2")
    mst(7)
    a("LA_bis:")
    a("s_add_u32 s14, s14, s6")
    a("v_cmp_le_u32 s[68:69], s14, v36")
    a("v_cmp_le_u32 vcc, s14, v37")
    a("s_bcnt1_i32_b64 s15, s[68:69]")
    a("s_bcnt1_i32_b64 s67, vcc")
    a("s_add_u32 s67, s67, s15")
    a("s_cmp_eq_u32 s67, 8")
    a("s_cbranch_scc1 LA_bis_done")
    a("s_cmp_gt_u32 s67, 8")
    a("s_cselect_b32 s6, s14, s6")
    a("s_cselect_b32 s7, s7, s14")
    a("s_sub_u32 s14, s7, s6")
    a("s_lshr_b32 s14, s14, 1")
    a("s_cbranch_scc1 LA_bis")
    a("s_mov_b32 s14, s6")
    a("v_cmp_le_u32 s[68:69], s14, v36")
    a("v_cmp_le_u32 vcc, s14, v37")
    a("s_bcnt1_i32_b64 s15, s[68:69]")
    a("LA_bis_done:")
    a("v_cmp_le_u32 s[64:65], s14, v38")
    a("LA_pick:")
    a("v_mbcnt_lo_u32_b32 v40, s68, 0")
    a("v_mov_b32 v41, s15")
    a("s_cmp_lg_u64 s[64:65], 0")
    a("s_cbranch_scc1 LA_slow")
    a("v_mbcnt_hi_u32_b32 v40, s69, v40")
    a("v_mbcnt_lo_u32_b32 v41, vcc_lo, v41")
    a("v_or_b32 v36, s71, v36")
    a("v_mbcnt_hi_u32_b32 v41, vcc_hi, v41")
    a("v_lshlrev_b32 v40, 2, v40")
    a("v_or_b32 v37, s71, v37")
    a("v_lshlrev_b32 v41, 2, v41")
    a("v_and_b32 v40, 28, v40")
    a("v_and_b32 v41, 28, v41")
    a("s_mov_b64 exec, s[68:69]")
    a(f"ds_write_b32 v40, v36 offset:{L_SEL}")
    a("s_mov_b64 exec, vcc")
    a(f"ds_write_b32 v41, v37 offset:{L_SEL}")
    a("s_mov_b64 exec, -1")
    a(f"ds_read_b32 v44, v52 offset:{L_SEL}")
    a(f"ds_read_b32 v46, v52 offset:{L_SEL+4}")
    a("v_lshlrev_b32 v2, 2, v9")
    a(f"ds_read_b32 v54, v2 offset:{L_SEL}")
    a("s_cmp_eq_u32 s71, 0")
    a("s_waitcnt lgkmcnt(1)")
    a("s_cbranch_scc1 LA_far")
    kcopies("")
    a("LA_sent:")
    mst(8)
    a("v_lshrrev_b32 v12, 3, v1")
    a(f"s_lshl_b32 s6, s{S_S}, 10")
    a("v_lshl_add_u32 v12, v12, 7, s6")
    a("s_waitcnt lgkmcnt(0)")
    a("v_not_b32 v38, v54")
    a("v_and_b32 v39, 2047, v38")
    a("v_lshl_add_u32 v12, v39, 11, v12")
    a(f"global_load_dword v13, v12, {sr(S_X,2)}")
    a("v_lshlrev_b32 v39, 2, v39")
    a(f"ds_read_b32 v33, v39 offset:{L_RG}")
    a("v_ashrrev_i32 v38, 31, v38")
    a("v_or_b32 v38, 0x80000000, v38")
    a("v_xor_b32 v32, v54, v38")
    a("v_and_b32 v32, 0xffff0000, v32")
    a("v_mul_f32 v32, 0xbfb8aa3b, v32")
    a("v_exp_f32 v32, v32")
    a("v_lshl_add_u32 v42, v1, 3, s70")
    a("v_add_f32 v32, 1.0, v32")
    a("v_rcp_f32 v32, v32")
    a("s_waitcnt lgkmcnt(0)")
    a("v_lshlrev_b32 v33, 16, v33")
    a("v_sub_f32 v33, 1.0, v33")
    a("v_cvt_pk_bf16_f32 v32, v32, v32")
    a("v_lshlrev_b32 v32, 16, v32")
    a("v_mul_f32 v48, v32, v33")
    a("s_mov_b64 exec, 0xffff")
    a(f"global_store_dwordx2 v42, v[48:49], {sr(S_WS,2)} offset:128 sc1")
    a("s_cmp_lg_u32 s2, 112")
    a("s_cbranch_scc1 LA_end")
    a("v_lshlrev_b32 v42, 3, v1")
    a(f"v_add_u32 v42, {WS_KEYS}, v42")
    a(f"global_store_dwordx2 v42, v[54:55], {sr(S_WS,2)} sc1")
    a(f"v_mov_b32 v43, {WS_E}")
    a("s_mov_b64 exec, 1")
    a(f"global_store_dword v43, v47, {sr(S_WS,2)} sc1")
    a("LA_end:")
    stamp_dump(a, 0, 13)
    a("s_endpgm")
    a("LA_far:")
    kcopies(" sc1")
    a("s_branch LA_sent")
    a("LA_slow:")
    KS = 64
    for i in range(8):
        a(f"ds_read_b128 {vr(KS+4*i,4)}, v3 offset:{L_RG+1024*i}")
    a("v_lshlrev_b32 v57, 2, v1")
    a("v_sub_u32 v57, 2047, v57")
    a("s_waitcnt lgkmcnt(0)")
    for i in range(32):
        a(f"v_subrev_u32 v58, {256*(i//4)+i%4}, v57")
        a(f"v_and_or_b32 v{KS+i}, v{KS+i}, s66, v58")
    a("s_mov_b32 s14, -1")
    a("s_mov_b32 m0, 0")
    a("LA_slow_rnd:")
    for i in range(0, 32, 2):
        a(f"v_sub_u32 v57, s14, v{KS+i}")
        a(f"v_sub_u32 v58, s14, v{KS+i+1}")
        a("v_min_u32 v56, v57, v58" if i == 0 else "v_min3_u32 v56, v57, v58, v56")
    for st in (f"row_shr:1 {DPP_FULL}", f"row_shr:2 {DPP_FULL}", f"row_shr:4 {DPP_FULL}", f"row_shr:8 {DPP_FULL}",
               "row_bcast:15 row_mask:0xa bank_mask:0xf", "row_bcast:31 row_mask:0xc bank_mask:0xf"):
        a("s_nop 1")
        a(f"v_min_u32_dpp v56, v56, v56 {st}")
    a("s_nop 0")
    a("v_readlane_b32 s15, v56, 63")
    a("s_sub_u32 s14, s14, s15")
    a("v_writelane_b32 v36, s14, m0")
    a("s_sub_u32 s14, s14, 1")
    a("s_add_u32 m0, m0, 1")
    a("s_cmp_lt_u32 m0, 8")
    a("s_cbranch_scc1 LA_slow_rnd")
    a("s_mov_b64 s[68:69], 0xff")
    a("s_mov_b64 vcc, 0")
    a("s_mov_b64 s[64:65], 0")
    a("s_mov_b32 s15, 8")
    a("s_branch LA_pick")

ROWB = 528
REG = 19008
YB, KB, UB = 0, 4608, 14320
KE, KO, TB = KB + 32, KB + 1252, KB + 2352
GB = 8 * REG
RED2 = GB + 8192
LDS_TOTAL = RED2 + 2048

def conv(a):
    c = CFG
    SETS = [dict(fill=1, par=2, gend=3, u1=4, bar2=5, tail=6, st0=7, st1=8, st2=9, st3=10),
            dict(karg=1, fill=2, par=3, kbar=4, eend=5, erd=6, gend=7, bar2=8, kmf=9, tail=10),
            dict(bar2=1, tail=2, rec=3, gb0=4, gb1=5, ba0=6, ba1=7, ba2=8, ba3=9, ba4=10),
            dict(u10=1, u1=2, bar2=3, b2i=4, rec=5, rec1=6, uw0=7, uw1=8, gw0=9, gw1=10)]
    def cst(nm):
        k = SETS[c.get("fine", 0)].get(nm)
        if k: stamp(a, k)
    C3, C5, C7, C9, C2 = 12, 16, 20, 24, 28
    ACC, A, T, BX, BR, EP, SD, U2 = 32, 64, 132, 172, 196, 232, 244, 248
    EOP, GOP, U1 = 64, 132, 232
    PL, TG = EP, SD
    VB, VU, VG, VY, VGW, VT0, VT1 = 2, 3, 4, 5, 6, 8, 9
    VUL, VOP, VK, VTP, VTQ, VOE, VZ, VDS = 48, 49, 50, 51, 52, 53, 54, 55
    VA0, VA1, VT = 60, 61, 62
    S_COL, S_REG, S_TAG = 60, 61, 66
    a("s_and_b32 s4, s2, 7")
    a("s_bfe_u32 s5, s2, 0x40003")
    a("s_lshl_b32 s6, s4, 4")
    a("s_add_u32 s63, s6, s5")
    a(f"s_lshl_b32 s{S_COL}, s63, 4")
    a("s_lshl_b32 s6, s63, 3")
    a("s_add_u32 s6, s6, s3")
    a("s_lshl_b32 s7, s6, 8")
    a("v_lshl_add_u32 v3, v1, 2, s7")
    a("s_lshl_b32 s7, s6, 1")
    a("s_and_b32 s7, s7, 0x7fc")
    a("s_and_b32 s11, s3, 1")
    a("s_lshl_b32 s11, s11, 4")
    a(f"v_lshlrev_b32 v{VUL}, 12, v0")
    a(f"v_sub_u32 v{VUL}, {1022*2048}, v{VUL}")
    a("v_lshlrev_b32 v11, 11, v0")
    a(f"s_mul_i32 s{S_REG}, s3, {REG}")
    a(f"s_mov_b32 m0, s{S_REG}")
    a("s_lshl_b32 s6, s5, 3")
    a("s_add_u32 s6, s6, s3")
    a("s_lshl_b32 s6, s6, 15")
    a("s_lshl_b32 s9, s4, 8")
    a("s_add_u32 s6, s6, s9")
    a("v_lshrrev_b32 v2, 1, v1")
    a("v_lshlrev_b32 v2, 11, v2")
    a("v_and_b32 v4, 1, v1")
    a("v_lshl_add_u32 v2, v4, 7, v2")
    a(f"v_add_u32 v{TG+1}, s6, v2")
    if c["d1"]:
        a("s_mul_i32 s6, s5, 7")
        a("s_min_u32 s9, s3, 6")
        a("s_add_u32 s6, s6, s9")
        a("s_and_b32 s9, s6, 0x70")
        a("s_add_u32 s6, s6, s9")
        a("s_mul_i32 s9, s4, 224")
        a("s_add_u32 s6, s6, s9")
        a("s_lshl_b32 s6, s6, 12")
        a("v_and_b32 v2, 31, v1")
        a("v_lshl_add_u32 v2, v2, 7, s6")
        a("v_lshrrev_b32 v4, 5, v1")
        a("v_lshl_add_u32 v2, v4, 16, v2")
    a(f"s_add_u32 s8, s{S_COL}, {1 << 21}")
    a("s_waitcnt lgkmcnt(0)")
    cst("karg")
    a(f"s_load_dword s66, {sr(S_LDT,2)}, s7")
    a(f"s_load_dword s67, {sr(S_DSK,2)}, s7")
    PR = 196
    for i, s_ in enumerate((S_LA, S_AI, S_CR, S_CI)):
        a(f"global_load_dword v{PR+i}, v3, {sr(s_,2)}")
    a.srd(SRD_X, S_X, 4194304)
    a("s_barrier")
    upre = ["s_mov_b32 exec_hi, 0", f"buffer_load_dword v10, v{TG+1}, {sr(SRD_X,4)}, 0 offen", "s_mov_b32 exec_hi, -1"]
    def wpre_addr():
        a("s_lshl_b32 s6, s5, 3")
        a("s_lshr_b32 s7, s3, 1")
        a("s_add_u32 s6, s6, s7")
        a("s_lshl_b32 s6, s6, 3")
        a("s_add_u32 s6, s6, 32")
        a("s_mul_i32 s6, s6, 7168")
        a("s_mul_i32 s7, s4, 896")
        a("s_add_u32 s6, s6, s7")
        a(f"s_lshr_b32 s7, s{S_WG}, 7")
        a("s_sub_u32 s7, s4, s7")
        a("s_add_u32 s7, s7, 3")
        a("s_and_b32 s7, s7, 7")
        a("s_min_u32 s7, s7, 6")
        a("s_lshl_b32 s7, s7, 7")
        a("v_and_b32 v2, 7, v1")
        a("v_cmp_eq_u32 vcc, 7, v2")
        a("v_lshlrev_b32 v2, 7, v2")
        a("v_mov_b32 v3, s7")
        a("v_lshrrev_b32 v5, 3, v1")
        a("v_cndmask_b32 v2, v2, v3, vcc")
        a("v_mul_u32_u24 v5, 7168, v5")
        a("v_add3_u32 v0, v2, v5, s6")
        m = sum((0x7f if i >= 8 - c["wn"] else 0x80) << (8*i) for i in range(8))
        a(f"s_mov_b32 s70, {m & 0xffffffff:#x}")
        a(f"s_mov_b32 s71, {m >> 32:#x}")
        a("s_bitcmp1_b32 s3, 0")
        a(f"s_cselect_b64 s[12:13], {sr(S_WU,2)}, {sr(S_WG,2)}")
    wpre_txt = ["s_mov_b64 exec, s[70:71]", "global_load_dword v10, v0, s[12:13]", "s_mov_b64 exec, -1"]
    n_early = 0
    if c["wpre"] and c["wpat"] < 0:
        assert not c["d1"]
        wpre_addr()
        for l in wpre_txt: a(l)
        n_early += 1
    if c["d1"]:
        if c["d1"] == 1: a("s_mov_b32 exec_hi, 0")
        a(f"global_load_dword v10, v2, {sr(S_WD,2)}")
        a("s_mov_b32 exec_hi, -1")
        n_early += 1
    if c["upat"] == -2:
        if c["d1"]: a("s_barrier")
        for l in upre: a(l)
        n_early += 1
    if c["u0at"] == -2: a("s_barrier")
    def utext(H, e, va=VUL):
        return f"buffer_load_dwordx4 {vr((U1, U2)[H]+4*e,4)}, v{va}, {sr(SRD_X,4)}, s{(S_COL, 8)[H]} offen offset:{e*2048}"
    def uload(H, e): a(utext(H, e))
    if c["u0at"] == -2:
        uload(0, 0); n_early += 1
    a.srd(SRD_OUT, S_OUT, 4194304)
    t0_, t1_, t2_, ta = 56, 57, 58, 59
    a(f"v_and_b32 v{ta}, 15, v1")
    a("v_lshrrev_b32 v7, 4, v1")
    a(f"v_lshl_add_u32 v{t0_}, v7, 3, v{ta}")
    a(f"v_min_u32 v{t0_}, 31, v{t0_}")
    a("s_lshl_b32 s9, s3, 2")
    a("s_lshr_b32 s6, 0x23452, s9")
    a("s_lshr_b32 s7, 0x29753, s9")
    a("s_and_b32 s6, s6, 15")
    a("s_and_b32 s7, s7, 15")
    a("s_add_u32 s6, s6, 16")
    a("s_bfm_b32 s6, s7, s6")
    a("s_cmp_eq_u32 s3, 4")
    a("s_movk_i32 s7, 0x3f80")
    a("s_cselect_b32 s7, 0xffff, s7")
    a(f"v_bfe_u32 v{t1_}, s6, v{t0_}, 8")
    a(f"v_lshl_or_b32 v{t1_}, v{t1_}, 15, v{t1_}")
    for p in range(4):
        if p: a(f"v_lshrrev_b32 v{C3+p}, {2*p}, v{t1_}")
        a(f"v_and_b32 v{C3+p}, 0x10001, v{C3+p if p else t1_}")
        a(f"v_mul_u32_u24 v{C3+p}, s7, v{C3+p}")
    a(f"s_mov_b32 s6, {GB}")
    a(f"v_lshl_add_u32 v{VG}, v1, 4, s6")
    a("s_lshl_b32 s6, s3, 10")
    a(f"v_add_u32 v{t1_}, s6, v{VG}")
    a(f"ds_write_b128 v{t1_}, {vr(C3,4)}")
    a(f"v_and_b32 v{t0_}, 31, v1")
    a(f"v_lshrrev_b32 v{t1_}, 5, v1")
    a(f"v_mul_u32_u24 v{VOP}, {ROWB}, v{t0_}")
    a(f"v_lshl_add_u32 v{t2_}, v{t1_}, 4, s{S_REG}")
    a(f"v_add_u32 v{VOP}, v{VOP}, v{t2_}")
    a(f"v_subrev_u32 v{VOE}, {ROWB}, v{VOP}")
    a(f"v_cmp_eq_u32 vcc, 0, v{t0_}")
    a(f"v_and_b32 v{t2_}, 0xff, v{VOE}")
    a(f"v_add_u32 v{t2_}, {RED2}, v{t2_}")
    a(f"v_cndmask_b32 v{VOE}, v{VOE}, v{t2_}, vcc")
    a(f"v_mov_b32 v{VZ}, 0")
    a("s_mov_b32 s14, 0xaaaaaaaa")
    a("s_mov_b32 s15, 0xaaaaaaaa")
    late = f"""
    v_lshlrev_b32 v{t2_}, 5, v{ta}
    s_add_u32 s6, s{S_REG}, {UB+480}
    v_sub_u32 v{VU}, s6, v{t2_}
    v_lshl_add_u32 v{VB}, v7, 4, v{VU}
    v_lshlrev_b32 v{VY}, 3, v7
    v_sub_u32 v{VU}, v{VU}, v{VY}
    v_mul_u32_u24 v{VY}, 144, v7
    v_lshl_add_u32 v{t2_}, v{ta}, 3, s{S_REG}
    v_add_u32 v{VY}, v{VY}, v{t2_}
    v_lshl_add_u32 v{VK}, v{t0_}, 4, s{S_REG}
    v_lshl_add_u32 v{VK}, v{t1_}, 3, v{VK}
    v_lshl_add_u32 v{VTQ}, v{t0_}, 1, s{S_REG}
    v_lshl_add_u32 v{VTQ}, v{t1_}, 7, v{VTQ}
    v_lshrrev_b32 v{t0_}, 1, v{t0_}
    v_lshl_add_u32 v{VTP}, v{t0_}, 2, s{S_REG}
    v_lshl_add_u32 v{VTP}, v{t1_}, 6, v{VTP}
    v_add_u32 v{t0_}, 192, v{VTP}
    v_cndmask_b32 v{VTP}, v{VTP}, v{t0_}, s[14:15]
    v_and_b32 v{t0_}, 14, v1
    v_lshlrev_b32 v{t0_}, 1, v{t0_}
    v_lshl_add_u32 v{t0_}, v7, 4, v{t0_}
    v_mov_b32 v{t1_}, {KO-28}
    v_mov_b32 v{t2_}, {KE-28}
    v_cndmask_b32 v{t1_}, v{t1_}, v{t2_}, s[14:15]
    v_add3_u32 v{VA0}, v{t0_}, v{t1_}, s{S_REG}
    v_add_u32 v{VA1}, 1024, v{VA0}
    v_lshlrev_b32 v{t0_}, 4, v7
    s_add_u32 s6, s{S_REG}, {TB}
    v_lshl_add_u32 v{VT}, v{ta}, 2, s6
    v_sub_u32 v{VT}, v{VT}, v{t0_}
    s_lshl_b32 s6, s3, 11
    s_add_u32 s6, s6, {WS_RG}
    v_lshl_add_u32 v{TG+3}, v1, 4, s6
    v_bfe_u32 v{t0_}, v1, 2, 2
    v_mul_u32_u24 v{VT0}, {REG}, v{t0_}
    v_and_b32 v{t0_}, 3, v1
    v_mul_u32_u24 v{t0_}, 144, v{t0_}
    s_lshr_b32 s6, s3, 2
    s_mul_i32 s6, s6, {576-128}
    s_lshl_b32 s7, s3, 5
    s_add_u32 s6, s6, s7
    v_lshl_add_u32 v{t1_}, v7, 3, s6
    v_add3_u32 v{VT0}, v{VT0}, v{t0_}, v{t1_}
    v_add_u32 v{VT1}, {4*REG}, v{VT0}
    v_and_b32 v{t0_}, 1, v1
    s_lshl_b32 s6, s3, 10
    s_add_u32 s6, s6, {GB}
    v_lshl_add_u32 v{VGW}, v{t0_}, 3, s6
    v_bfe_u32 v{t0_}, v1, 1, 2
    v_lshl_add_u32 v{VGW}, v{t0_}, 8, v{VGW}
    v_lshrrev_b32 v{t0_}, 3, v1
    v_lshl_add_u32 v{VGW}, v{t0_}, 4, v{VGW}
    """.strip().split("\n")
    if c["dpre"]:
        late += f"""
        s_mul_i32 s6, s5, 7
        s_min_u32 s7, s3, 6
        s_add_u32 s6, s6, s7
        s_lshr_b32 s7, s6, 4
        s_lshl_b32 s7, s7, 4
        s_add_u32 s6, s6, s7
        s_mul_i32 s7, s4, 224
        s_add_u32 s6, s6, s7
        s_lshl_b32 s6, s6, 12
        s_add_u32 s6, s6, {32*2048}
        v_and_b32 v{t0_}, 31, v1
        v_lshl_add_u32 v{TG+2}, v{t0_}, 7, s6
        """.strip().split("\n")
    late += f"""
    s_lshl_b32 s6, s63, 3
    s_add_u32 s6, s6, s3
    s_lshl_b32 s6, s6, 11
    s_add_u32 s6, s6, {WS_PART}
    v_bfe_u32 v{t0_}, v1, 3, 1
    v_lshl_add_u32 v{t0_}, v{t0_}, 2, v7
    v_lshlrev_b32 v{t0_}, 3, v{t0_}
    v_add_u32 v{t0_}, {WS_KEYS}, v{t0_}
    v_lshl_add_u32 v7, v1, 4, s6
    s_cmp_eq_u32 s3, 7
    s_cselect_b64 vcc, -1, 0
    v_cndmask_b32 v7, v7, v{t0_}, vcc
    s_add_u32 s9, s{S_COL}, {1 << 20}
    s_add_u32 s62, s{S_COL}, {3 << 20}
    """.strip().split("\n")
    lv = []; park = 18; pend_s = False
    for l in [l.strip() for l in late]:
        if l.startswith("s_"):
            a(l.replace("vcc", "s[30:31]")); pend_s = True
        else:
            if " s6" in l:
                if pend_s:
                    a(f"s_mov_b32 s{park}, s6"); park += 1; pend_s = False
                l = l.replace(" s6", f" s{park-1}") if f"s{S_REG}" not in l else l
            lv.append(l.replace("vcc", "s[30:31]"))
    assert park <= 26
    late = lv
    assert c.get("lateK", 1)
    if c["wpre"] and c["wpat"] >= 0: wpre_addr()
    a("s_mov_b32 s64, 0x05040100")
    a("s_mov_b32 s65, 0x07060302")
    a("s_lshl_b32 s68, s3, 8")
    a(f"s_add_u32 s68, s68, {UB}")
    a(f"s_add_u32 s69, s68, {4*REG}")
    a("s_mov_b32 s10, 0")
    a(f"v_mov_b32 v{t2_}, 0x3f80")
    a(f"ds_write_addtid_b32 v{VZ} offset:{UB+4096}")
    a(f"ds_write_addtid_b32 v{VZ} offset:{UB+4096+256}")
    a("s_lshl_b32 s6, s3, 8")
    a(f"s_add_u32 s6, s6, {RED2}")
    a("v_lshl_add_u32 v2, v1, 2, s6")
    a(f"ds_write_b32 v2, v{t2_}")
    a("s_waitcnt lgkmcnt(0)")
    d = 200
    a("s_lshr_b32 s66, s66, s11")
    a("s_lshr_b32 s67, s67, s11")
    a("s_lshl_b32 s66, s66, 16")
    a("s_lshl_b32 s67, s67, 16")
    a(f"v_mov_b32 v{d}, {LOG2E}")
    a(f"v_mul_f32 v{d}, s66, v{d}")
    a(f"v_exp_f32 v{d}, v{d}")
    a(f"v_mov_b32 v{VDS}, 0")
    a(f"v_cvt_pk_bf16_f32 v{d}, v{d}, v{d}")
    a(f"v_writelane_b32 v{VDS}, s67, 0")
    a("s_mov_b64 exec, 1")
    a(f"v_add_f32 v{VDS}, -1.0, v{VDS}")
    a("s_mov_b64 exec, -1")
    a(f"v_lshlrev_b32 v{d}, 16, v{d}")
    a(f"v_mul_f32 v202, 0xbfb8aa3b, v{d}")
    a(f"v_mul_f32 v203, {INV2PI}, v{d}")
    a(f"v_add_f32 v{d}, v{d}, v{d}")
    nx = [GOP]
    def newp():
        p = (nx[0], nx[0] + 2); nx[0] += 4; return p
    W1, W8, W256, G0 = newp(), newp(), newp(), newp()
    TT = newp()
    PK = [nx[0], nx[0] + 2, nx[0] + 4]; nx[0] += 8
    Z = 204
    X_ = 208
    cst("fill")
    a(f"s_waitcnt vmcnt({n_early})")
    cst("par")
    if c["upat"] == -1:
        for l in upre: a(l)
    a(f"v_lshlrev_b32 v{Z}, 16, v{PR}")
    a(f"v_and_b32 v{Z+2}, 0xffff0000, v{PR}")
    a(f"v_mul_f32 v{Z}, {LOG2E}, v{Z}")
    a(f"v_mul_f32 v{Z+2}, {LOG2E}, v{Z+2}")
    a(f"v_exp_f32 v{Z}, v{Z}")
    a(f"v_exp_f32 v{Z+2}, v{Z+2}")
    a(f"v_lshlrev_b32 v{Z+1}, 16, v{PR+1}")
    a(f"v_cvt_pk_bf16_f32 v{Z+2}, v{Z}, v{Z+2}")
    a(f"v_and_b32 v{Z+3}, 0xffff0000, v{PR+1}")
    a(f"v_lshlrev_b32 v{Z}, 16, v{Z+2}")
    a(f"v_and_b32 v{Z+2}, 0xffff0000, v{Z+2}")
    a(f"v_pk_mul_f32 {vr(Z,2)}, {vr(Z,2)}, v[202:203]")
    a(f"v_pk_mul_f32 {vr(Z+2,2)}, {vr(Z+2,2)}, v[202:203]")
    def wexp(sc, W):
        L = []
        for m in range(2):
            if sc:
                L += [f"v_mul_f32 v{X_+2*m}, {sc}, v{Z+2*m}", f"v_mul_f32 v{X_+1+2*m}, {sc}, v{Z+1+2*m}"]
        src = X_ if sc else Z
        for m in range(2):
            L += [f"v_fract_f32 v{X_+1+2*m}, v{src+1+2*m}"]
        for m in range(2):
            L += [f"v_exp_f32 v{X_+2*m}, v{src+2*m}", f"v_cos_f32 v{W[m]}, v{X_+1+2*m}", f"v_sin_f32 v{W[m]+1}, v{X_+1+2*m}"]
        for m in range(2):
            L += [f"v_pk_mul_f32 {vr(W[m],2)}, {vr(W[m],2)}, {vr(X_+2*m,2)} op_sel:[0,0] op_sel_hi:[1,0]"]
        return L
    for l in wexp("0x41000000", W8): a(l)
    if c.get("kbar", 1): a("s_barrier")
    cst("kbar")
    kk = [0]
    def run_steps(steps, neg, hooks={}):
        n = "-" if neg else ""
        pend = None; pw = None
        for si, (dst, src, w, rows) in enumerate(steps + [(None,)*4, (None,)*4]):
            x = y = [None, None]
            if w is not None:
                x = cmul(dst[0], src[0], w[0], TT[0]); y = cmul(dst[1], src[1], w[1], TT[1])
            cA = cB = None
            if pend:
                p = PK[kk[0] % 3]; kk[0] += 1
                cA = f"v_cvt_pk_bf16_f32 v{p}, v{pend[0][0]}, {n}v{pend[0][0]+1}"
                cB = f"v_cvt_pk_bf16_f32 v{p+1}, v{pend[0][1]}, {n}v{pend[0][1]+1}"
            wa = [f"ds_write_addtid_b32 v{pw[0]} offset:{r*ROWB}" for r in pw[1]] if pw else []
            wb = [f"ds_write_addtid_b32 v{pw[0]+1} offset:{r*ROWB+256}" for r in pw[1]] if pw else []
            for s_ in [x[0], y[0]] + wa + hooks.get(si, []) + [cA, x[1], y[1]] + wb + [cB]:
                if s_: a(s_)
            pw = (p, pend[1]) if pend else None
            pend = (dst, rows) if rows else None
    EA, EB = newp(), newp()
    steps = [(W8, None, None, [0])]
    cur = W8
    for b in range(2, 32 - c.get("x_skipE", 0)):
        nxt = EA if b % 2 == 0 else EB
        steps.append((nxt, cur, W8, [b-1])); cur = nxt
    eh = {c["u1at"]: [utext(0, 1)]} if c["u1at"] < 100 else {}
    if c["upat"] >= 0: eh.setdefault(c["upat"], []).extend(upre)
    if c["u0at"] >= 0: eh.setdefault(c["u0at"], []).append(utext(0, 0))
    assert c.get("kbar", 1)
    for i in range(5):
        eh.setdefault(8 + 3*i, []).append(f"ds_read_b128 {vr(C3+4*i,4)}, v{VG} offset:{1024*i}")
    if c["wpre"]:
        pass
    a(".p2align 3")
    run_steps(steps, False, eh)
    cst("eend")
    sb = [f"v_lshlrev_b32 v{G0[0]}, 16, v{PR+2}", f"v_and_b32 v{G0[1]}, 0xffff0000, v{PR+2}",
          f"v_lshlrev_b32 v{G0[0]+1}, 16, v{PR+3}", f"v_and_b32 v{G0[1]+1}, 0xffff0000, v{PR+3}",
          f"v_pk_mul_f32 {vr(G0[0],2)}, {vr(G0[0],2)}, {vr(d,2)} op_sel:[0,0] op_sel_hi:[1,0]",
          f"v_pk_mul_f32 {vr(G0[1],2)}, {vr(G0[1],2)}, {vr(d,2)} op_sel:[0,0] op_sel_hi:[1,0]"]
    sb += wexp(None, W1) + wexp("0x43800000", W256)
    for s_ in range(16):
        a(f"ds_read_b128 {vr(EOP+4*s_,4)}, v{VOE} offset:{32*s_}")
        if s_ % 2 == 1 and s_ >= 3:
            for _ in range(5):
                if sb: a(sb.pop(0))
    assert not sb
    cst("erd")
    if c.get("gprio", 1): a("s_setprio 1")
    if c.get("gsync", 0): a("s_barrier")
    def drow(r, h): return 8*(r//4) + 4*h + (r % 4)
    want = {}
    def put(al, r, h): want.setdefault(al, []).append(drow(r, h))
    for h in range(2):
        for j in range(4): put(4*h + j, j, h)
        for j in range(3): put(256 + 4*h + 2*j, 4 + j, h)
        put(4*h + 4, 7, h)
        for j in range(2): put(512 + 256*h + 4 + 4*j, 8 + j, h)
        for q in range(2): put(1024 + 512*h + 256*q + 8, 10 + q, h)
    keep = {al: newp() for al in (2, 4, 6, 8)}
    tA, tB = EA, EB
    steps = []
    def st(al, dst, src, w): steps.append((dst, src, w, want.pop(al)))
    st(0, G0, None, None)
    cur = G0
    for al in range(1, 9):
        dd = keep.get(al) or (tA if al % 4 == 1 else tB)
        st(al, dd, cur, W1); cur = dd
    c8 = [keep[8], tA]; c4 = [keep[4], tB]
    e1 = newp()
    singles = [(256, G0), (258, keep[2]), (262, keep[6])]
    for k in range(1, 8):
        st(256*k + 8, c8[k % 2], c8[(k-1) % 2], W256)
        if k <= 3: st(256*k + 4, c4[k % 2], c4[(k-1) % 2], W256)
        elif singles:
            al, src = singles.pop(0)
            st(al, e1, src, W256)
    assert not want and not singles and nx[0] <= GOP + 64
    hooks = {1: [f"s_load_dwordx2 s[66:67], {sr(S_DBG,2)}, 0"]}
    if c["u1at"] >= 100:
        assert c["u1at"] - 100 <= c["wpat"] or c["wpat"] < 0
        hooks.setdefault(c["u1at"] - 100, []).append(utext(0, 1))
    if c["wpre"] and c["wpat"] >= 0:
        hooks.setdefault(c["wpat"], []).extend(wpre_txt)
    a(".p2align 3")
    if c["gb"] == 0:
        run_steps(steps, True, hooks)
    else:
        ring = [212 + 2*i for i in range(10)]; k = 0; pend = None; ready = []
        for si, (dst, src, w, rows) in enumerate(steps + [(None,)*4]):
            x = y = [None, None]
            if w is not None:
                x = cmul(dst[0], src[0], w[0], TT[0]); y = cmul(dst[1], src[1], w[1], TT[1])
            cA = cB = None
            if pend:
                p = ring[k % 10]; k += 1
                cA = f"v_cvt_pk_bf16_f32 v{p}, v{pend[0][0]}, -v{pend[0][0]+1}"
                cB = f"v_cvt_pk_bf16_f32 v{p+1}, v{pend[0][1]}, -v{pend[0][1]+1}"
                ready.append((p, pend[1]))
            for s_ in [x[0], y[0], cA, x[1], y[1], cB]:
                if s_: a(s_)
            if len(ready) >= c["gb"] or dst is None:
                for p, rows_ in ready:
                    for r in rows_:
                        a(f"ds_write_addtid_b32 v{p} offset:{r*ROWB}")
                        a(f"ds_write_addtid_b32 v{p+1} offset:{r*ROWB+256}")
                ready = []
            for h_ in hooks.get(si, []): a(h_)
            pend = (dst, rows) if rows else None
    cst("gend")
    a(f"v_mov_b32 v0, v{VUL}")
    def rec_loads():
        for q in range(2):
            a(f"global_load_dwordx4 {vr(PL+4*q,4)}, v{TG+3}, {sr(S_WS,2)} offset:{1024*q} sc1")
    GA = T + 24
    def gather_loads():
        for q in range(2):
            a(f"global_load_dwordx4 {vr(GA+4*q,4)}, v7, {sr(S_WS,2)} offset:{1024*q} sc1")
    def bslot(k): return BR + 4*k
    def btext(cc, k):
        return f"ds_read_b128 {vr(bslot(k),4)}, v{VB} offset:{3584 - 512*cc + (64*k if k < 8 else 16)}"
    def atext(tt, hf):
        base, o = (VA0, 16*tt) if tt < 16 else (VA1, 0)
        return f"ds_read2_b32 {vr(A+4*tt+2*hf,2)}, v{base} offset0:{o+2*hf} offset1:{o+2*hf+1}"
    aorder = [x for t0 in range(1, 8) for x in (t0, t0+8)] + [0, 8, 16]
    border = (1, 2, 3, 4, 5, 6, 7, 0, 8)
    TP12 = {dl: T + 4*(dl-2) for dl in (2, 3, 4)}
    TP34 = {dl: T + 12 + 4*(dl-2) for dl in (2, 3, 4)}
    TQ = {dl: T + 24 + 4*(dl-4) for dl in (4, 5, 6, 7)}
    tl = []
    for tab, off, dls in ((TP12, -16, 2), (TP34, 32, 2), (TP12, -16, 3), (TP34, 32, 3), (TP12, -16, 4), (TP34, 32, 4),
                          (TQ, 48, 4), (TQ, 48, 5), (TQ, 48, 6), (TQ, 48, 7)):
        o = off + 16*dls; r = tab[dls]
        tl.append((("T", r, 0), f"ds_read2_b32 {vr(r,2)}, v{VT} offset0:{o} offset1:{o-1}"))
        tl.append((("T", r, 1), f"ds_read2_b32 {vr(r+2,2)}, v{VT} offset0:{o-2} offset1:{o-3}"))
    mtext = lambda dd, ra, rb, cin: f"v_mfma_f32_16x16x32_bf16 {vr(dd,4)}, {vr(ra,4)}, {vr(rb,4)}, {cin}"
    boxes = ((0, 0, C3), (1, 0, C5), (4, 0, C7), (2, 8, C3), (3, 8, C5), (5, 8, C9))
    D = 32

    def path(Y):
        n_ = "xy"[Y]
        P_ = lambda k: c[n_ + k]
        S = Sched(a, lat=c.get("lat", 5))
        r_ = S.raw
        vm = []
        def vmwait(nm): return f"s_waitcnt vmcnt({len(vm) - 1 - max(i for i, x in enumerate(vm) if x == nm)})"
        ua, ub = P_("ua"), P_("ub_")
        if ua == -2: r_(utext(1, 0, 0))
        nv0 = (ua == -2) + (1 if (c["wpre"] and c["wpat"] >= 0) else 0)
        def dp():
            r_("s_mov_b32 exec_hi, 0"); r_(f"global_load_dword v10, v{TG+2}, {sr(S_WD,2)}"); r_("s_mov_b32 exec_hi, -1")
            vm.append("dpre"); S.pos["dpre"] = S.n
        def u1block():
            cst("u10")
            r_(f"s_waitcnt vmcnt({nv0})")
            cst("u1")
            for ch in range(8):
                r_(f"v_perm_b32 v{BR+ch}, v{U1+ch//2}, v{U1+4+ch//2}, s{64+ch%2}")
            for ch in range(8):
                if ch % 4 == 0:
                    r_(f"s_mov_b32 m0, s{68+ch//4}"); r_("s_nop 0")
                S.lds(("uw", 0, ch), f"ds_write_addtid_b32 v{BR+ch} offset:{(ch%4)*REG+2048}")
        def bar2():
            r_("s_barrier")
            cst("bar2")
            rec_loads(); S.n += 2; vm.append("rec")
            if c["dpre"] and P_("dp") == -1: dp()
            if ua == -1: r_(utext(1, 0, 0)); vm.append("u2a")
            if ub == -1: r_(utext(1, 1, 0)); vm.append("u2b"); S.pos["u2b"] = S.n
            cst("b2i")
        def records():
            cst("rec")
            a(vmwait("rec"))
            cst("rec1")
            a("s_xor_b32 s67, s67, 1")
            a(f"LC_poll1{n_}:")
            a(f"v_xor_b32 v{EP+8}, s66, v{PL+1}")
            for i in (3, 5, 7):
                a(f"v_bitop3_b32 v{EP+8}, v{PL+i}, s66, v{EP+8} bitop3:0xbe")
            a(f"v_or_b32 v{EP+8}, s67, v{EP+8}")
            a(f"v_cmp_ne_u32 vcc, 0, v{EP+8}")
            a(f"s_cbranch_vccnz LC_poll1{n_}_retry")
            a(f"LC_poll1{n_}_ok:")
            if STAMP["on"]: a(f"s_mov_b32 s{ST0+24}, s10")
            S.n += 9
        gv = [(("g", 2*q+i), f"v_lshlrev_b32_e64 v{PL+4*q+i}, 16, v{PL+4*q+2*i}") for q in range(2) for i in range(2)]
        gw = [(("gw", q), f"ds_write_b64 v{VGW}, {vr(PL+4*q,2)} offset:{128*q}") for q in range(2)]
        def gbar():
            cst("gb0"); r_("s_barrier"); cst("gb1")
        gtext = lambda s_: f"ds_read_b128 {vr(GOP+4*s_,4)}, v{VOP} offset:{32*s_}"
        zq = [(("z", z), f"ds_write_addtid_b32 v{VZ} offset:{z}") for z in (KB, KB+1056, KB+2288, KB+2288+256)]
        lat0, S.lat = S.lat, 99
        NG = 6
        lq = list(late)
        if Y:
            u1block()
            r_(f"s_mov_b32 m0, s{S_REG}")
        for s_ in range(NG): S.lds(("G", s_), gtext(s_))
        dsq = [(("G", s_), gtext(s_)) for s_ in range(NG, 16)] + zq
        for s_ in range(16):
            S.wait([("G", s_ if s_ < 8 else 15)])
            r_(f"v_mfma_f32_32x32x16_bf16 {vr(D,16)}, {vr(GOP+4*s_,4)}, {vr(EOP+4*s_,4)}, {vr(D,16) if s_ else 0}")
            nd_ = 0
            for _ in range(2):
                if dsq: S.lds(*dsq.pop(0)); nd_ += 1
            nv_ = 0
            while lq and (nv_ < (4 if s_ < 8 else 5) - nd_ or s_ == 15):
                nv_ += 1 if lq[0].startswith("v_") else 0.5
                r_(lq.pop(0))
        assert not dsq
        cst("kmf")
        if (Y and c["yprio"] == 1) or not Y: r_("s_setprio 0")
        r_("s_waitcnt lgkmcnt(0)"); S.done = len(S.Q) - 1
        if Y and c["yb2"] == 0:
            bar2(); r_("s_nop 7", 8)
        else:
            r_("s_nop 10", 11)
        t = 64
        r_(f"v_add_f32 v{D}, v{D}, v{VDS}")
        r_(f"v_cvt_pk_bf16_f32 v{t+1}, v{D+2}, v{D+3}")
        r_(f"v_cvt_pk_bf16_f32 v{t}, v{D}, v{D+1}")
        r_(f"v_cvt_pk_bf16_f32 v{t+2}, v{D+4}, v{D+4}")
        r_(f"v_cvt_pk_bf16_f32 v{t+3}, v{D+5}, v{D+6}")
        r_(f"v_cvt_pk_bf16_f32 v{t+4}, v{D+1}, v{D+2}")
        r_(f"v_cvt_pk_bf16_f32 v{t+5}, v{D+3}, v{D+7}")
        r_(f"v_cvt_pk_bf16_f32 v{t+6}, v{D+4}, v{D+5}")
        r_(f"v_cvt_pk_bf16_f32 v{t+7}, v{D+6}, v{D+6}")
        r_(f"v_lshlrev_b32 v{t+8}, 16, v{t}")
        r_(f"v_mov_b32 v{t+10}, v{t+7}")
        r_(f"v_and_b32 v{t+11}, 0xffff, v{t+7}")
        u = 56
        r_(f"v_cvt_pk_bf16_f32 v{u+2}, v{D+9}, v{D+9}")
        r_(f"v_cvt_pk_bf16_f32 v{u}, v{D+8}, v{D+9}")
        r_(f"v_cvt_pk_bf16_f32 v{u+1}, v{D+10}, v{D+11}")
        r_(f"v_readlane_b32 s6, v{u+2}, 63")
        S.lds("k0", f"ds_write_b64 v{VK}, {vr(t,2)} offset:{KE}")
        S.lds("k1", f"ds_write_b64 v{VK}, {vr(t+4,2)} offset:{KO+4}")
        S.lds("k2", f"ds_write_b64 v{VK}, {vr(t+2,2)} offset:{KE+512}")
        S.lds("k3", f"ds_write_b64 v{VK}, {vr(t+6,2)} offset:{KO+4+512}")
        S.lds("k8", f"ds_write_b32 v{VTP}, v{u} offset:{TB+64}")
        S.lds("k9", f"ds_write_b16 v{VTQ}, v{u+1} offset:{TB+448}")
        S.lds("k10", f"ds_write_b16_d16_hi v{VTQ}, v{u+1} offset:{TB+448+64}")
        r_("s_mov_b64 exec, 1")
        S.lds("k4", f"ds_write_b32 v{VK}, v{t+8} offset:{KO}")
        r_("s_mov_b32 exec_lo, 0")
        r_("s_mov_b32 exec_hi, 0x80000000")
        S.lds("k5", f"ds_write_b64 v{VK}, {vr(t+10,2)} offset:{KE+1024-504}")
        S.lds("k6", f"ds_write_b32 v{VK}, v{t+10} offset:{KO+1028-504}")
        S.lds("k7", f"ds_write_b32 v{VK}, v{VZ} offset:{KO+1032-504}")
        r_("s_mov_b64 exec, -1")
        for p in range(4):
            r_(f"v_and_b32 v{C2+p}, s6, v{C2+p}")
        nA = 17
        if Y and c["yb2"] == 1: bar2()
        if not Y and c["xu1"] == 0: u1block()
        for i, tt in enumerate(aorder):
            if Y and i == c["yrec"]:
                records()
                for _, t_ in gv: r_(t_)
                for w_ in gw: S.lds(*w_)
            for hf in range(2): S.lds(("A", tt, hf), atext(tt, hf))
            if Y and c["dpre"] and P_("dp") == -10 - i: dp()
            if Y and ua == -10 - i: r_(utext(1, 0, 0)); vm.append("u2a")
            if Y and ub == -10 - i: r_(utext(1, 1, 0)); vm.append("u2b"); S.pos["u2b"] = S.n
            if Y and i == min(c["yrec"] + 3, 16):
                S.wait([("gw", 1)]); gbar(); S.pos["gbar"] = S.n
        if Y and c["yprio"] == 2: r_("s_setprio 0")
        cst("tail")
        if not Y:
            if c["xT"] == 1:
                for w_ in tl: S.lds(*w_)
            if c["xu1"] == 1: u1block()
            S.wait([("uw", 0, 7)])
            bar2()
        for k in border: S.lds(("B", 0, k), btext(0, k))
        S.lat = lat0
        S.m = 50
        S.qm = [S.m] * len(S.Q)
        ms, fs = [], []
        M0_ = S.m
        started = set(); lastacc = {}
        def mm(cc, Tt, ra, rb, needs, dist=None):
            if Tt > 7: return None
            nm = ("m", len(ms))
            ms.append(Op("M", nm, mtext(ACC+4*Tt, ra, rb, vr(ACC+4*Tt,4) if Tt in started else 0), needs=needs, dist=dist))
            started.add(Tt); lastacc[Tt] = nm
            return nm
        for tt in aorder[nA:]:
            for hf in range(2): fs.append(Op("D", ("A", tt, hf), atext(tt, hf), after=[("A", tt, 0)] if hf else []))
        if Y or c["xT"] == 0:
            for nm, t_ in tl: fs.append(Op("D", nm, t_, after=[("T", nm[1], 0)] if nm[2] else [], at=M0_ + c.get("tat", 10)))
        def epilogue(t_, after):
            r = ACC + 4*t_
            alt = t_ >= 3 and t_ % 2 == 1
            E = U2 if alt else EP
            N = C7 if (alt and t_ >= 5) else EP + 8
            pl = {0: None, 1: 0, 2: 1, 3: None, 4: 2, 5: 3, 6: 4, 7: 5}[t_]
            pn = {0: None, 1: 0, 2: 1, 3: 2, 4: 3, 5: None, 6: 4, 7: 5}[t_]
            af = list(after) + ([("e", pl, 7)] if pl is not None else [])
            if t_ == 3: af += [("up", k) for k in range(8)]
            if t_ >= 4: af.append("ubar")
            fs.append(Op("D", ("u", t_), f"ds_read_b64 {vr(E,2)}, v{VU} offset:{3584-512*t_+24}", after=af))
            fs.append(Op("D", ("gl", t_), f"ds_read_b128 {vr(E+4,4)}, v{VG} offset:{1024*t_}", after=af + [("u", t_)]))
            L = [f"v_and_b32 v{N}, 0xffff0000, v{E+1}", f"v_lshlrev_b32_e64 v{N+1}, 16, v{E+1}",
                 f"v_and_b32 v{N+2}, 0xffff0000, v{E}", f"v_lshlrev_b32_e64 v{N+3}, 16, v{E}"]
            L += [f"v_fma_f32 v{r+i}, v{E+4+i}, v{r+i}, v{N+i}" for i in range(4)]
            L += [f"v_cvt_pk_bf16_f32 v{E+2}, v{r}, v{r+1}", f"v_cvt_pk_bf16_f32 v{E+3}, v{r+2}, v{r+3}"]
            for i, l in enumerate(L):
                af = [("e", t_, i-1)] if i else ([("e", pn, 7)] if pn is not None else [])
                if i == 0 and t_ == 5: af.append(("box", 3, 4))
                if i == 8 and pl is not None: af.append(("y", pl))
                fs.append(Op("V", ("e", t_, i), l, after=af, needs=[("gl", t_)] if i == 0 else [], dist={lastacc[t_]: 8} if i == 4 else None))
            fs.append(Op("D", ("y", t_), f"ds_write_b64 v{VY}, {vr(E+2,2)} offset:{YB+576*t_}", after=[("e", t_, 9)] + ([("y", t_-1)] if t_ else []),
                         cost=3, dl=lastacc[t_][1] + (c.get("epdl", 14) if t_ else 30)))
        nst = [0]; lastq = []; lastst = []
        def store(P, half=None):
            k = nst[0]; nst[0] += 1
            ytile = 2*P + 1 if half is None else 2*P + half
            prevbar = "gbar" if k == 0 else "ubar" if k == 1 else ("bar", k-1)
            fs.append(Op("X", ("bar", k), lambda: [r_("s_barrier"), cst(f"ba{ {1:0, 3:1, 5:2, 6:3, 7:4}.get(ytile) }")], needs=[("y", ytile)],
                         after=[prevbar], at=M0_ + c.get(f"{n_}b{k}", 0), dl=lastacc[ytile][1] + c.get("stdl", 22) - 7))
            if half is not None and half != Y: return
            fs.append(Op("D", ("t0", k), f"ds_read_b64_tr_b16 {vr(SD,2)}, v{VT0} offset:{YB+1152*P}", after=[("bar", k)] + lastst[-1:] + (["dpre"] if c["dpre"] else [])))
            fs.append(Op("D", ("t1", k), f"ds_read_b64_tr_b16 {vr(SD+2,2)}, v{VT1} offset:{YB+1152*P}", after=[("t0", k)]))
            def emit():
                r_(f"buffer_store_dwordx4 {vr(SD,4)}, v11, {sr(SRD_OUT,4)}, s{(S_COL, 9, 8, 62)[P]} offen" + (" nt" if c.get("ont", 0) else ""))
                vm.append(("st", k)); cst(f"st{P}")
            fs.append(Op("X", ("st", k), emit, needs=[("t1", k)], after=["u2w"], cost=2, dl=lastacc[ytile][1] + c.get("stdl", 22)))
            lastst.append(("st", k))
        for cc in range(8):
            hasP, hasQ = cc <= 5, cc <= 3
            def nxt(k, after):
                if cc < 7 and (k < 8 or cc + 1 <= 5):
                    fs.append(Op("D", ("B", cc+1, k), btext(cc+1, k), after=[after] + (["ubar"] if cc + 1 >= 4 else [])))
            an = (lambda tt: [("A", tt, 1)]) if cc == 0 else (lambda tt: [])
            tn = (lambda r: [("T", r, 1)]) if cc == 1 else (lambda r: [])
            zero = ((0, A, 0), (1, A+32, 8), (2, A+64, 16), (4, C2, None))
            mz = lambda dl, ra, tt: mm(cc, cc+dl, ra, bslot(0), [("B", cc, 0)] + (an(tt) if tt is not None else []))
            l0 = None
            if cc >= c.get("split", 5):
                for t0 in range(1, 8): mm(cc, cc, A+4*t0, bslot(t0), [("B", cc, t0)])
                l0 = mz(*zero[0])
                for t0 in range(1, 8):
                    if cc < 7: nxt(t0, mm(cc, cc+1, A+32+4*t0, bslot(t0), []))
                for z in zero[1:]: l0 = mz(*z) or l0
            else:
                for t0 in range(1, 8):
                    l = mm(cc, cc, A+4*t0, bslot(t0), [("B", cc, t0)] + an(t0))
                    l = mm(cc, cc+1, A+32+4*t0, bslot(t0), an(t0+8)) or l
                    nxt(t0, l)
                for z in zero: l0 = mz(*z) or l0
            if cc == 0:
                if not Y:
                    fs.append(Op("X", "rec", records, at=M0_ + c["xrec"], dl=-50, cost=8))
                    for nm, t_ in gv: fs.append(Op("V", nm, t_, after=["rec"]))
                    for q, (nm, t_) in enumerate(gw): fs.append(Op("D", nm, t_, after=[("g", 2*q), ("g", 2*q+1)], cost=3))
                    fs.append(Op("X", "gbar", gbar, needs=[("gw", 0), ("gw", 1)], at=M0_ + c["xgb"], dl=c["xgb"] - 20))
                if c["dpre"] and P_("dp") >= 0:
                    fs.append(Op("X", "dpre", dp, at=M0_ + P_("dp"), dl=P_("dp") - 20, cost=3))
                if c.get(n_ + "gp", 0):
                    def gp():
                        for q in range(2):
                            r_(f"global_load_dword v10, v7, {sr(S_WS,2)} offset:{1024*q} sc1"); vm.append("gp")
                    fs.append(Op("X", "gp", gp, at=M0_ + c[n_ + "gp"], dl=c[n_ + "gp"] - 20, cost=2))
                if ua >= 0: fs.append(Op("X", "u2a", lambda: [r_(utext(1, 0, 0)), vm.append("u2a")], at=M0_ + ua, dl=ua - 20, cost=2))
                if ub >= 0: fs.append(Op("X", "u2b", lambda: [r_(utext(1, 1, 0)), vm.append("u2b")], after=["u2a"] if ua >= 0 else [], at=M0_ + ub, dl=ub - 20, cost=2))
                fs.append(Op("X", "u2w", lambda: [cst("uw0"), r_(vmwait("u2b")), cst("uw1")], after=[("t1", 0), "u2b"], at=M0_ + P_("uw")))
                epilogue(0, ["gbar"])
                for hf in range(2):
                    for k in range(4):
                        ch = 4*hf + k
                        fs.append(Op("V", ("up", ch), f"v_perm_b32 v{SD+k}, v{U2+ch//2}, v{U2+4+ch//2}, s{64+ch%2}",
                                     after=["u2w"] + ([("uw", 1, ch-4)] if hf else []), dist={("st", 0): 2}))
                    fs.append(Op("X", ("um", hf), (lambda hf=hf: r_(f"s_mov_b32 m0, s{68+hf}")), after=[("uw", 1, 3)] if hf else []))
                    for k in range(4):
                        ch = 4*hf + k
                        fs.append(Op("D", ("uw", 1, ch), f"ds_write_addtid_b32 v{SD+k} offset:{k*REG}",
                                     after=[("up", ch)] + ([("uw", 1, ch-1)] if ch else []), dist={("um", hf): 1}))
                fs.append(Op("X", "ubar", lambda: r_("s_barrier"), needs=[("uw", 1, 7)], at=M0_ + c.get(n_ + "ub", 0)))
            else:
                epilogue(cc, [])
            if cc >= 4: store(cc//2, cc % 2)
            elif cc % 2 == 1: store(cc//2)
            if cc == 4:
                def gat():
                    gather_loads(); S.n += 2; vm.append("gat0"); vm.append("gat")
                fs.append(Op("X", "gat", gat, at=M0_ + P_("gat"), dl=P_("gat"), cost=3))
            pc = cc - 1
            if 0 <= pc <= 5:
                for dl in (2, 3, 4):
                    mm(cc, pc+dl, BX, TP12[dl], tn(TP12[dl]), {("cv", pc, 0, p): 2 for p in range(4)})
                    mm(cc, pc+dl, BX+8, TP34[dl], tn(TP34[dl]), {("cv", pc, 2, p): 2 for p in range(4)})
            if 0 <= pc <= 3:
                for dl in (4, 5, 6, 7):
                    mm(cc, pc+dl, BX+16, TQ[dl], tn(TQ[dl]), {("cv", pc, 4, p): 2 for p in range(4)})
            if cc == 4: lastq.append(ms[-1].name)
            if hasP:
                for (i, k, rc) in boxes:
                    if i < 4 or hasQ:
                        ms.append(Op("M", ("box", cc, i), mtext(BX+4*i, bslot(k), rc, 0), needs=[("B", cc, k)]))
                        if k == 0: l0 = ("box", cc, i)
                nxt(8, ms[-1].name)
                for i in ((0, 2, 4) if hasQ else (0, 2)):
                    for p in range(4):
                        fs.append(Op("V", ("cv", cc, i, p), f"v_cvt_pk_bf16_f32 v{BX+4*i+p}, v{BX+4*i+p}, v{BX+4*i+4+p}",
                                     dist={("box", cc, i): 8, ("box", cc, i+1): 8}))
            nxt(0, l0)
        [f for f in fs if f.name == "gat"][0].after += lastq
        S.log = []
        S.run(ms, fs, budget=lambda i: 2, wfree=c["wfree"],
              pre=[f.name for f in fs if f.name[0] == "A"], npre=2, lead={"B": c["blead"], "cv": c.get("clead", 8), "T": c.get("tlead", 8)})
        if c.get("log"): print(n_, "".join(S.log))
        cst("gw0")
        a(vmwait("gat"))
        cst("gw1")
    a("s_bitcmp1_b32 s3, 2")
    a("s_cbranch_scc1 LC_ypath")
    path(0)
    a("s_branch LC_final")
    a("LC_ypath:")
    path(1)
    a("LC_final:")
    for i in range(4): a(f"s_bfe_u32 s{12+i}, s{S_TAG}, {0x80000 + 8*i:#x}")
    a("s_mov_b32 s10, 0")
    a("s_cmp_eq_u32 s3, 7")
    a("s_cbranch_scc1 LC_poll4")
    a("LC_poll3:")
    for i in range(8):
        a(f"v_xor_b32 v{64+i}, s{12+i%4}, v{GA+i}")
    a("v_or3_b32 v3, v64, v65, v66")
    a("v_or3_b32 v4, v67, v68, v69")
    a("v_or3_b32 v3, v70, v71, v3")
    a("v_or_b32 v3, v3, v4")
    a("v_and_b32 v3, 0xff, v3")
    a("v_cmp_ne_u32 vcc, 0, v3")
    a("s_cbranch_vccnz LC_poll3_retry")
    a("LC_poll3_ok:")
    if STAMP["on"]: a(f"s_mov_b32 s{ST0+22}, s10")
    GA_, GA = GA, 64
    a(f"v_pk_add_f32 {vr(GA,2)}, {vr(GA,2)}, {vr(GA+4,2)}")
    a(f"v_pk_add_f32 {vr(GA+2,2)}, {vr(GA+2,2)}, {vr(GA+6,2)}")
    a("s_lshl_b32 s6, s3, 8")
    a(f"s_add_u32 m0, s6, {RED2}")
    a(f"v_permlane32_swap_b32 v{GA}, v{GA+2}")
    a(f"v_permlane32_swap_b32 v{GA+1}, v{GA+3}")
    a(f"v_pk_add_f32 {vr(GA,2)}, {vr(GA,2)}, {vr(GA+2,2)}")
    a("s_nop 1")
    a(f"v_permlane16_swap_b32 v{GA}, v{GA+1}")
    a(f"v_add_f32 v{GA}, v{GA}, v{GA+1}")
    a(f"ds_write_addtid_b32 v{GA}")
    a("s_waitcnt lgkmcnt(0)")
    a("s_barrier")
    stamp_dump(a, 0, 13)
    a("s_endpgm")
    GA = GA_
    a("LC_poll4:")
    a(f"v_cmp_ne_u32 vcc, s{S_TAG}, v{GA+1}")
    a("v_and_b32 v3, 7, v1")
    a("s_cbranch_vccnz LC_poll4_retry")
    a("LC_poll4_ok:")
    a(f"v_not_b32 v64, v{GA}")
    a("v_and_b32 v64, 2047, v64")
    a(f"v_mul_u32_u24 v4, {REG}, v3")
    a("v_lshrrev_b32 v5, 8, v64")
    a("v_bfe_u32 v8, v64, 2, 2")
    a("v_lshl_add_u32 v5, v5, 2, v8")
    a("v_mul_u32_u24 v5, 144, v5")
    a("v_bfe_u32 v8, v64, 4, 4")
    a("v_lshl_add_u32 v4, v8, 3, v4")
    a("v_and_b32 v8, 3, v64")
    a("v_lshl_add_u32 v5, v8, 1, v5")
    a("v_add_u32 v4, v4, v5")
    a(f"ds_read_u16 v66, v4 offset:{YB}")
    a("v_lshlrev_b32 v64, 11, v64")
    a("v_lshl_add_u32 v64, v3, 1, v64")
    a("v_lshlrev_b32 v2, 2, v1")
    a(f"v_add_u32 v2, {RED2}, v2")
    a("s_waitcnt lgkmcnt(0)")
    a("v_lshlrev_b32 v66, 16, v66")
    a("s_barrier")
    for w in range(0, 6, 2):
        a(f"ds_read2st64_b32 {vr(68+w,2)}, v2 offset0:{w} offset1:{w+1}")
    a("ds_read_b32 v67, v2 offset:1536")
    a("s_waitcnt lgkmcnt(2)")
    a("v_pk_add_f32 v[68:69], v[68:69], v[70:71]")
    a("s_waitcnt lgkmcnt(0)")
    a("v_pk_add_f32 v[66:67], v[66:67], v[72:73]")
    a("v_pk_add_f32 v[66:67], v[66:67], v[68:69]")
    a("v_add_f32 v66, v66, v67")
    a("v_cvt_pk_bf16_f32 v66, v66, v66")
    a(f"buffer_store_short v66, v64, {sr(SRD_OUT,4)}, s{S_COL} offen")
    stamp_dump(a, 0, 13)
    a("s_endpgm")
    for k in (3, 4):
        a(f"LC_poll{k}_retry:")
        a("s_add_u32 s10, s10, 1")
        a(f"s_cmp_ge_u32 s10, {SPIN if not c.get('x_nowait') else 0}")
        a(f"s_cbranch_scc1 LC_poll{k}_ok")
        if c.get("gsl", 2): a(f"s_sleep {c.get('gsl', 2)}")
        a("s_mov_b64 exec, vcc")
        gather_loads()
        a("s_mov_b64 exec, -1")
        a("s_waitcnt vmcnt(0)")
        a(f"s_branch LC_poll{k}")
    for n_ in "xy":
        a(f"LC_poll1{n_}_retry:")
        a("s_add_u32 s10, s10, 1")
        a(f"s_cmp_ge_u32 s10, {SPIN}")
        a(f"s_cbranch_scc1 LC_poll1{n_}_ok")
        a(f"v_mov_b32 v{EP+9}, 0")
        a(f"global_load_dwordx2 {vr(TG,2)}, v{EP+9}, {sr(S_DBG,2)} sc1")
        a("s_mov_b64 exec, vcc")
        rec_loads()
        a("s_mov_b64 exec, -1")
        a("s_waitcnt vmcnt(0)")
        a(f"v_readfirstlane_b32 s66, v{TG}")
        a(f"v_readfirstlane_b32 s67, v{TG+1}")
        a("s_xor_b32 s67, s67, 1")
        a(f"s_branch LC_poll1{n_}")

def build():
    a = Asm()
    stamp_init(a)
    a("s_cmp_ge_u32 s2, 256")
    a("s_cbranch_scc1 L_end")
    a("s_load_dwordx16 s[16:31], s[0:1], 0")
    a("s_load_dwordx16 s[32:47], s[0:1], 64")
    a("v_lshrrev_b32 v2, 6, v0")
    a("v_and_b32 v1, 63, v0")
    a("v_readfirstlane_b32 s3, v2")
    if CFG.get("cpre", 1):
        a("s_cmp_lg_u32 s3, 7")
        a("s_cbranch_scc1 L_nocpre")
        a("s_getpc_b64 s[4:5]")
        a("L_pc:")
        a("s_bfe_u32 s6, s2, 0x20003")
        a("s_lshl_b32 s6, s6, 13")
        a("v_lshl_add_u32 v3, v1, 7, s6")
        a("v_min_u32 v3, L_codeend-L_pc-4, v3")
        a("global_load_dword v63, v3, s[4:5]")
        a("L_nocpre:")
    a("s_cmp_ge_u32 s2, 128")
    a("s_cbranch_scc1 L_conv")
    moe(a)
    a("L_conv:")
    conv(a)
    a("L_end:")
    a("s_endpgm")
    a("L_codeend:")
    return header([f"; @launch grid=(256,1,1) block=(512,1,1) lds={LDS_TOTAL}"]) + kstart(KN) + a.text() + RODATA + kdesc(KN, 256)

if __name__ == "__main__":
    import sys
    from lint import lint
    name = "v17"
    for kv in sys.argv[1:]:
        if "=" in kv:
            k, v = kv.split("="); CFG[k] = int(v)
        else: name = kv
    t = build()
    assert not lint(t), lint(t)
    open(f"gen/{name}.s", "w").write(t)
    if CFG.get("only"): sys.exit(0)
    CFG["log"] = 0
    STAMP["on"] = True
    open(f"gen/{name}_ts.s", "w").write(build())
    STAMP["clk"] = True
    open(f"gen/{name}_clk.s", "w").write(build())
```

```python
from blocks import *
from sched import *

WS_E    = 0xF000
WS_KEYS = 0x20000
SPIN = 40000
TAGINC = 0x9e3779b1
WS_KA = 0x28000
WS_KB = 0x38000
WS_GO = 0x2c000
WS_XI = 0x30000
SRD_WD = 56

CFG = dict(n0=2, n1=4, n2=10, n3=14, nd1=4, dpre=1, sprefetch=1, wpre=4, wpat=4, u1at=26, gb=0, wfree=0, blead=8, epdl=12, stdl=20, lat=4,
           xrec=24, xgb=34, xdp=54, xb0=84, xuw=0, xgat=196,
           yrec=2, yb2=0, xT=0, xu1=1, tat=2, ydp=20, yb0=0, yuw=0, ygat=190, yprio=1, fast=2, nd2=6, agd=2, nd0=0, kbar2=0, wbar8=0, wn=0, d1=0, pw=0, kpt=0, pp=0, na=4, ksl=4, fold=0, kbar=1, go=1, god=1, golead=8, pbar=1, upat=3, u0at=8, xua=-2, xub_=12, yua=-10, yub_=-20)

def NT(k): return " nt" if CFG.get("nt" + k, k == "w") else ""
FL = ["sc1", "sc0 sc1", "sc1 nt", "sc0 sc1 nt"]
DPP_FULL = "row_mask:0xf bank_mask:0xf"

L_REC, L_SEL, L_TAU, L_CNT = 0, 128, 160, 164
L_HB, L_ZERO, L_MB, L_RG, L_RED, L_D = 256, 1536, 2048, 8192, 16384, 49152

def moe(a, early=False):
    c = CFG
    SETS = [{k: k for k in range(1, 11)},
            {5: 1, "barC": 2, "bis0": 3, "bis1": 4, 6: 5, "xs": 6, "d2": 7, "dl": 8, "w": 9, 7: 10},
            {7: 1, "mf": 2, "barE": 3, 8: 4, "ack": 5, 9: 6, "hw": 7, "barF": 8, "mf2": 9, 10: 10},
            {"ka": 1, 1: 2, "e": 3, "wv": 4, "wb": 5, "rv": 6, 2: 7, "dots": 8, "barA": 9, 3: 10}]
    def mst(nm):
        k = SETS[c.get("mfine", 0)].get(nm)
        if k: stamp(a, k)
    R, O, DO, B, ACC = 64, 128, 192, 224, 240
    X, WR, GW = O, O + 16, O + 24
    PL, KEY, IDX, SC = 16, 24, 28, 32
    VW = 6
    S_TAG, S_TB, S_G, S_S = 60, 61, 62, 63
    if early:
        a("s_and_b32 s4, s2, 7")
        a("s_bfe_u32 s5, s2, 0x40003")
        a("v_lshlrev_b32 v3, 4, v1")
        a("s_cmp_ge_u32 s2, 128")
        a("s_cbranch_scc1 L_conv")
        a("s_lshl_b32 s6, s2, 3")
        a("s_add_u32 s6, s6, s3")
        a("s_lshl_b32 s6, s6, 12")
        a("v_add_u32 v4, s6, v3")
        a("s_and_b32 s6, s3, 3")
        a("s_lshl_b32 s6, s6, 9")
        a("v_add_u32 v2, s6, v3")
        a("s_lshl_b32 s6, s3, 9")
        a(f"s_add_u32 m0, s6, {L_RED}")
        a("s_bitcmp1_b32 s3, 2")
        a("s_waitcnt lgkmcnt(0)")
        mst("ka")
        a(f"s_cselect_b64 s[14:15], {sr(S_GW,2)}, {sr(S_WR,2)}")
        a("s_mov_b32 exec_hi, 0")
        a("global_load_lds_dwordx4 v2, s[14:15]")
        a("s_mov_b32 exec_hi, -1")
        for i in range(4):
            a(f"global_load_dwordx4 {vr(X+4*i,4)}, v4, {sr(S_X,2)} offset:{i*1024}" + NT("r"))
        a("s_branch L_moe")
        return
    a(f"s_mul_i32 s{S_G}, s4, 7")
    a("s_lshr_b32 s6, s5, 1")
    a(f"s_add_u32 s{S_G}, s{S_G}, s6")
    a(f"s_and_b32 s{S_S}, s5, 1")
    a(f"s_lshl_b32 s6, s{S_S}, 3")
    a("s_add_u32 s6, s6, s3")
    a("s_lshl_b32 s6, s6, 6")
    a("v_lshrrev_b32 v8, 4, v1")
    a("v_and_b32 v9, 7, v1")
    a("v_lshl_add_u32 v10, v8, 3, s6")
    a("v_mul_u32_u24 v12, 7168, v10")
    a(f"s_lshl_b32 s7, s{S_G}, 7")
    a("v_lshl_add_u32 v13, v9, 4, s7")
    a("v_add_u32 v12, v12, v13")
    a("v_mov_b32 v13, 0")
    a("s_mov_b32 s12, 0x00ff00ff")
    a("s_mov_b32 s13, 0x00ff00ff")
    a(f"s_load_dword s{S_TAG}, {sr(S_WS,2)}, {WS_E}")
    a(f"v_mov_b32 v{VW}, s{S_WU}")
    a(f"v_mov_b32 v{VW+1}, s{S_WU+1}")
    a(f"v_mov_b32 v14, s{S_WG}")
    a(f"v_mov_b32 v15, s{S_WG+1}")
    a(f"v_cndmask_b32 v{VW}, v{VW}, v14, s[12:13]")
    a(f"v_cndmask_b32 v{VW+1}, v{VW+1}, v15, s[12:13]")
    a(f"v_lshl_add_u64 {vr(VW,2)}, {vr(VW,2)}, 0, v[12:13]")
    a("s_lshl_b32 s6, s3, 4")
    a("v_mov_b32 v44, s6")
    a("v_lshlrev_b32 v45, 3, v1")
    a("s_mov_b32 s8, 7168")
    a("s_mov_b32 s9, 0")
    a(f"s_mov_b32 s10, {25*7168}")
    a("s_mov_b32 s11, 0")
    def wloads(lo, hi):
        for n in range(lo, hi):
            a(f"global_load_dwordx4 {vr(R+4*n,4)}, {vr(VW,2)}, off" + NT("w"))
            if n == 7:    a(f"v_lshl_add_u64 {vr(VW,2)}, s[10:11], 0, {vr(VW,2)}")
            elif n < 15:  a(f"v_lshl_add_u64 {vr(VW,2)}, s[8:9], 0, {vr(VW,2)}")
    a("s_cmp_ge_u32 s5, 14")
    a("s_cbranch_scc1 LM_spare0")
    a("s_barrier")
    wloads(0, c["n0"])
    mst(1)
    for r in range(4): a(f"v_mov_b32 v{40+r}, 0")
    def dots(q):
        for i in range(4):
            a(f"v_dot2_f32_bf16 v{40+2*(q//2)}, v{X+4*q+i}, v{WR+4*(q%2)+i}, v{40+2*(q//2)}")
            a(f"v_dot2_f32_bf16 v{41+2*(q//2)}, v{X+4*q+i}, v{GW+4*(q%2)+i}, v{41+2*(q//2)}")
    def wfetch(nafter):
        if c.get("mfine") == 3 and STAMP["on"]:
            a("s_waitcnt lgkmcnt(0)"); mst("e")
        a(f"s_waitcnt vmcnt({nafter+4})")
        mst("wv")
        a("s_barrier")
        mst("wb")
        for i in range(4):
            a(f"ds_read_b128 {vr(WR+4*i,4)}, v3 offset:{L_RED+1024*i}")
        for q in range(3):
            a(f"s_waitcnt vmcnt({nafter+3-q})" + (" lgkmcnt(0)" if q == 0 else ""))
            dots(q)
        a(f"s_waitcnt vmcnt({nafter})")
        mst("rv")
    wfetch(c["n0"])
    wloads(c["n0"], c["n1"])
    a("s_branch LM_rows")
    a("LM_spare0:")
    a("s_cmp_lg_u32 s2, 112")
    a("s_cbranch_scc1 LM_spare1")
    a("s_cmp_lg_u32 s3, 1")
    a("s_cbranch_scc1 LM_spare1")
    a("s_waitcnt lgkmcnt(0)")
    a(f"s_add_u32 s6, s{S_TAG}, {TAGINC:#x}")
    a("v_mov_b32 v46, s6")
    a("v_mov_b32 v47, 1")
    a("v_mov_b32 v2, 0")
    a("s_mov_b64 exec, 1")
    a(f"global_store_dwordx2 v2, v[46:47], {sr(S_DBG,2)} sc1")
    a("s_mov_b64 exec, -1")
    a("LM_spare1:")
    for r in range(4): a(f"v_mov_b32 v{40+r}, 0")
    if c["sprefetch"]:
        a(f"s_lshr_b32 s6, s{S_WG}, 7")
        a("s_mul_i32 s7, s4, 7")
        a("s_add_u32 s6, s6, s7")
        a("s_sub_u32 s6, 3, s6")
        a("s_and_b32 s6, s6, 7")
        a("s_cmp_eq_u32 s6, 7")
        a("s_cselect_b32 s6, 0, s6")
        a("s_add_u32 s6, s6, s7")
        a("s_lshl_b32 s6, s6, 7")
        nlo = c.get("snlo", 4)
        a("v_and_b32 v2, 3, v1")
        a(f"v_add_u32 v2, {nlo}, v2")
        a("v_and_b32 v12, 8, v2")
        a("v_mul_u32_u24 v12, 3, v12")
        a("v_add3_u32 v2, v2, v12, v10")
        a("v_mul_u32_u24 v2, 7168, v2")
        a("v_add_u32 v2, s6, v2")
        a("s_barrier")
        a("s_mov_b32 exec_lo, 0x000f000f")
        a("s_mov_b32 exec_hi, 0x000f000f")
        a(f"global_load_dword v60, v2, {sr(S_WG,2)}" + NT("s"))
        a(f"global_load_dword v61, v2, {sr(S_WU,2)}" + NT("s"))
        a("s_mov_b64 exec, -1")
        wfetch(2)
    else:
        wfetch(0)
    a("LM_rows:")
    mst(2)
    dots(3)
    a(f"s_add_u32 s{S_TAG}, s{S_TAG}, {TAGINC:#x}")
    a(f"s_getreg_b32 s{S_TB}, hwreg(HW_REG_XCC_ID, 0, 4)")
    for st in (f"row_shr:1 {DPP_FULL} bound_ctrl:0", f"row_shr:2 {DPP_FULL} bound_ctrl:0",
               f"row_shr:4 {DPP_FULL} bound_ctrl:0", f"row_shr:8 {DPP_FULL} bound_ctrl:0",
               "row_bcast:15 row_mask:0xa bank_mask:0xf", "row_bcast:31 row_mask:0xc bank_mask:0xf"):
        for r in range(4):
            a(f"v_add_f32_dpp v{40+r}, v{40+r}, v{40+r} {st}")
    mst("dots")
    a("s_mov_b32 exec_lo, 0")
    a("s_mov_b32 exec_hi, 0x80000000")
    a(f"ds_write_b128 v44, v[40:43] offset:{L_REC}")
    a("s_mov_b64 exec, -1")
    a("s_waitcnt lgkmcnt(0)")
    a("s_barrier")
    mst("barA")
    a("s_cmp_lg_u32 s3, 0")
    a("s_cbranch_scc1 LM_nopub")
    a(f"ds_read_b64 v[46:47], v45 offset:{L_REC}")
    a("s_lshl_b32 s6, s2, 7")
    a(f"s_add_u32 s6, s6, {WS_RG}")
    a("v_add_u32 v2, s6, v45")
    a(f"s_add_u32 s6, s6, {WS_XI - WS_RG}")
    a("v_writelane_b32 v2, s6, 16")
    a(f"v_mov_b32 v48, s{S_TB}")
    a(f"v_mov_b32 v49, s{S_TAG}")
    a("s_mov_b32 s6, 0x07060100")
    a("s_mov_b64 exec, 0xffff")
    a("s_waitcnt lgkmcnt(0)")
    a("v_cvt_pk_bf16_f32 v46, v47, v46")
    a("v_lshlrev_b32 v47, 16, v46")
    a("v_mul_f32 v47, 0xbfb8aa3b, v47")
    a("v_exp_f32 v47, v47")
    a("v_ashrrev_i32 v50, 31, v46")
    a("v_add_f32 v47, 1.0, v47")
    a("v_rcp_f32 v47, v47")
    a("v_or_b32 v50, 0x80000000, v50")
    a("v_cvt_pk_bf16_f32 v47, v47, v47")
    a("v_xor_b32 v46, v46, v50")
    a("v_perm_b32 v48, v46, v47, s6")
    a("s_mov_b64 exec, 0x1ffff")
    a(f"global_store_dwordx2 v2, v[48:49], {sr(S_WS,2)} sc1")
    a("s_mov_b64 exec, -1")
    a("LM_nopub:")
    mst(3)
    a("s_cmp_ge_u32 s5, 14")
    a("s_cbranch_scc1 LM_spare")
    a("s_barrier")
    wloads(c["n1"], c["n1"] + 2)
    VDA, VTR, VRD, VPO, VPP, VH, VA, VPT, VSL = 42, 44, 48, 49, 50, 51, 52, 11, 62
    a.srd(SRD_X, S_X, 4194304)
    a.srd(SRD_WD, S_WD, 7340032)
    a("v_mov_b32 v12, 0")
    a("v_lshlrev_b32 v13, 2, v1")
    a(f"ds_write_b32 v13, v12 offset:{L_ZERO}")
    a("s_lshl_b32 s6, s3, 9")
    a("v_lshl_add_u32 v14, v1, 3, s6")
    a("s_mov_b32 s64, 0x05040100")
    a("s_mov_b32 s65, 0x07060302")
    a("v_lshrrev_b32 v56, 5, v1")
    a("v_bfe_u32 v57, v1, 4, 1")
    a("v_bfe_u32 v58, v1, 3, 1")
    a("v_lshlrev_b32 v2, 2, v56")
    a("v_xor_b32 v2, v2, v9")
    a("v_lshrrev_b32 v59, 3, v1")
    a("v_lshlrev_b32 v59, 11, v59")
    a(f"v_lshl_add_u32 v{VDA}, v2, 4, v59")
    a(f"v_xor_b32 v{VDA+1}, 32, v{VDA}")
    a(f"s_lshl_b32 s70, s{S_G}, 17")
    a(f"s_lshl_b32 s7, s{S_S}, 10")
    a("s_add_u32 s70, s70, s7")
    a("s_lshl_b32 s7, s3, 7")
    a("s_add_u32 s70, s70, s7")
    a("s_lshl_b32 s71, s3, 13")
    a(f"s_add_u32 s71, s71, {L_D}")
    a("v_bfe_u32 v59, v1, 2, 1")
    a("v_lshlrev_b32 v2, 11, v56")
    a("v_lshl_add_u32 v2, v57, 9, v2")
    a("v_lshl_add_u32 v2, v58, 7, v2")
    a("v_lshl_add_u32 v2, v59, 10, v2")
    a("v_lshl_add_u32 v2, v59, 5, v2")
    a("v_lshl_add_u32 v2, v57, 6, v2")
    a("v_and_b32 v59, 3, v1")
    a("v_lshl_add_u32 v2, v59, 3, v2")
    a(f"v_add_u32 v{VTR}, s71, v2")
    for t_ in range(1, 4):
        a(f"v_xor_b32 v{VTR+t_}, {32*t_}, v{VTR}")
    a("s_and_b32 s6, s3, 3")
    a("s_lshr_b32 s7, s3, 2")
    a("s_lshl_b32 s15, s6, 1")
    a("s_add_u32 s15, s15, s7")
    a("s_lshl_b32 s15, s15, 9")
    a(f"s_add_u32 s15, s15, {L_RED}")
    a(f"v_add_u32 v{VRD}, s15, v13")
    a("s_lshl_b32 s7, s7, 3")
    a("s_add_u32 s6, s6, s7")
    a("s_lshl_b32 s6, s6, 2")
    a("v_mul_u32_u24 v2, 144, v9")
    a(f"v_lshl_add_u32 v{VH}, v57, 6, v2")
    a(f"v_lshl_add_u32 v{VH}, v58, 4, v{VH}")
    a(f"v_lshl_add_u32 v{VH}, v56, 1, v{VH}")
    a(f"v_add_u32 v{VH}, s6, v{VH}")
    a("v_lshl_add_u32 v2, v8, 4, v2")
    a(f"v_mov_b32 v59, {L_ZERO-L_HB}")
    a(f"v_cndmask_b32 v{VA}, v59, v2, s[12:13]")
    a(f"v_cndmask_b32 v{VA+1}, v2, v59, s[12:13]")
    a(f"s_lshl_b32 s6, s{S_G}, 1")
    a(f"s_add_u32 s6, s6, s{S_S}")
    a("s_lshl_b32 s6, s6, 12")
    a(f"s_add_u32 s6, s6, {WS_PRE}")
    a(f"v_add_u32 v{VPO}, s6, v14")
    a(f"v_xor_b32 v{VPP}, 4096, v{VPO}")
    a(f"s_lshl_b32 s6, s{S_S}, 3")
    a("s_add_u32 s6, s6, s3")
    a("s_lshl_b32 s6, s6, 17")
    a(f"s_lshl_b32 s7, s{S_G}, 8")
    a("s_add_u32 s6, s6, s7")
    a(f"s_add_u32 s6, s6, {WS_PART}")
    a(f"v_lshl_add_u32 v{VPT}, v56, 15, s6")
    a(f"v_lshl_add_u32 v{VPT}, v58, 14, v{VPT}")
    a(f"v_lshl_add_u32 v{VPT}, v57, 7, v{VPT}")
    a(f"v_lshl_add_u32 v{VPT}, v9, 4, v{VPT}")
    a(f"v_add_u32 v4, 0x10000, v{VPT}")
    TV = (34, 35, 61, 13); HV = (0, 63)
    for i in range(4):
        a(f"s_bfe_u32 s6, s{S_TAG}, {0x80000 + 8*i:#x}")
        a(f"v_mov_b32 v{TV[i]}, s6")
    a("s_mov_b32 vcc_lo, 0xaaaaaaaa")
    a("s_mov_b32 vcc_hi, 0xaaaaaaaa")
    a(f"v_cndmask_b32 v{HV[0]}, v{TV[0]}, v{TV[2]}, vcc")
    a(f"v_cndmask_b32 v{HV[1]}, v{TV[1]}, v{TV[3]}, vcc")
    a(f"s_lshl_b32 s6, s{S_S}, 3")
    a("s_add_u32 s6, s6, s4")
    a("s_lshl_b32 s6, s6, 8")
    a(f"s_add_u32 s6, s6, {WS_KA}")
    a("v_lshl_add_u32 v5, v9, 3, s6")
    a("s_lshl_b32 s66, s2, 8")
    a(f"s_add_u32 s66, s66, {WS_KB}")
    a("v_lshl_add_u32 v15, v9, 3, s66")
    a("v_mov_b32 v60, 0x7ffffff0")
    a("s_mov_b32 s14, 0")
    def perms(kap, ps=(0, 1, 2, 3)):
        for e in range(8):
            for p in ps:
                a(f"v_perm_b32 v{O+32*kap+4*e+p}, v{R+32*kap+4*(2*p+1)+e//2}, v{R+32*kap+4*(2*p)+e//2}, s{64+e%2}")
    dnt = NT("d")
    def dloads(lo, hi_):
        for i in range(lo, hi_):
            a(f"s_add_u32 m0, s71, {1024*i}")
            a(f"s_add_u32 s7, s70, {8*i*2048}")
            a(f"buffer_load_dwordx4 v{VDA+i%2}, {sr(SRD_WD,4)}, s7 offen{dnt} lds")
    nd0, nd1 = c["nd0"], c["nd1"]
    def prewrite():
        for r in range(4): a(f"v_not_b32 v{16+r}, v{TV[r]}")
        for j in range(2): a(f"global_store_dwordx4 v{(VPT, 4)[j]}, v[16:19], {sr(S_WS,2)} sc1")
    if c["pw"] == 1: prewrite()
    wloads(c["n1"] + 2, 8)
    if c["pw"] == 2: prewrite()
    if c.get("wbar8", 1): a("s_barrier")
    wloads(8, 12)
    if c["fast"] == 2: a(f"global_load_dwordx2 v[54:55], v{VPP}, {sr(S_WS,2)} sc1")
    if c["kpt"]: a(f"global_load_dwordx2 v[36:37], v5, {sr(S_WS,2)} sc1")
    if c.get("wbar12", 1): a("s_barrier")
    a("s_lshl_b32 s11, s3, 12")
    a(f"s_add_u32 s11, s11, {L_RED}")
    a("s_mov_b32 s10, 0xffffff00")
    a(f"s_waitcnt vmcnt({8 + (c['fast'] == 2) + c['kpt']})")
    perms(0, (0, 1))
    wloads(12, 16)
    mst(4)
    KS_ = 16
    a("s_barrier")
    a("LM_try:")
    a(f"s_load_dwordx16 s[{KS_}:{KS_+15}], {sr(S_WS,2)}, s66")
    a("s_add_u32 s66, s66, 64")
    a("s_waitcnt lgkmcnt(0)")
    a(f"s_xor_b32 s6, s{KS_+1}, s{S_TAG}")
    for t_ in range(1, 8):
        a(f"s_xor_b32 s7, s{KS_+1+2*t_}, s{S_TAG}")
        a("s_or_b32 s6, s6, s7")
    a("s_cbranch_scc1 LM_try_again")
    a("s_mov_b32 exec_lo, 0x01010101")
    a("s_mov_b32 exec_hi, 0x01010101")
    for t_ in range(8):
        a(f"v_not_b32 v38, s{KS_+2*t_}")
        a("s_lshl_b64 exec, exec, 1" if t_ < 7 else "s_mov_b64 exec, -1")
    a("LM_keys:")
    if STAMP["on"]: a(f"s_mov_b32 s{ST0+24}, s14")
    mst(5)
    a("v_and_b32 v39, 2047, v38")
    a("v_lshlrev_b32 v38, 11, v39")
    a("v_lshl_add_u32 v38, v10, 1, v38")
    a("v_cndmask_b32 v40, v60, v38, s[12:13]")
    a("v_cndmask_b32 v41, v38, v60, s[12:13]")
    a(f"buffer_load_dwordx4 {vr(B,4)}, v40, {sr(SRD_X,4)}, 0 offen")
    a(f"buffer_load_dwordx4 {vr(B+12,4)}, v41, {sr(SRD_X,4)}, 0 offen offset:64")
    mst("xs")
    a(f"s_mov_b32 s{S_TB}, s{KS_}")
    if c["pp"] == 1:
        a("s_waitcnt vmcnt(6)")
        perms(0, (2, 3)); perms(1, (0, 1))
    a("s_barrier")
    mst(6)
    dloads(0, nd1)
    mst("dl")
    a("s_mov_b32 m0, s11")
    if c["pp"] == 0:
        a(f"s_waitcnt vmcnt({nd1+6})")
        perms(0, (2, 3)); perms(1, (0, 1))
    a(f"s_waitcnt vmcnt({nd1+4})")
    perms(1, (2,))
    pz = [(e, 3) for e in (4, 0, 5, 1, 6, 2, 7, 3)]
    a(f"s_waitcnt vmcnt({nd1})")
    a("LM_mf:")
    mst(7)
    seen = set()
    def gm(j, kap, hf):
        a(f"v_mfma_f32_16x16x32_bf16 {vr(ACC+4*j,4)}, {vr(O+32*kap+4*(j+4*hf),4)}, {vr(B+8*kap+4*hf,4)}, {vr(ACC+4*j,4) if j in seen else 0}")
        seen.add(j)
    wq = [f"ds_write_addtid_b32 v{ACC+4*j+r} offset:{1024*j+256*r}" for j in range(4) for r in range(4)]
    for j in range(4):
        gm(j, 0, 0)
        for q in (2*(j%2), 2*(j%2)+1):
            if j < 2: a(f"v_mov_b32_dpp v{B+4+q}, v{B+q} row_shr:8 {DPP_FULL} bound_ctrl:0")
            else:     a(f"v_mov_b32_dpp v{B+8+q}, v{B+12+q} row_shl:8 {DPP_FULL} bound_ctrl:0")
    npz = len(pz) // 4
    for j in range(4):
        gm(j, 0, 1)
        for _ in range(npz):
            e, p = pz.pop(0)
            a(f"v_perm_b32 v{O+32+4*e+p}, v{R+32+4*(2*p+1)+e//2}, v{R+32+4*(2*p)+e//2}, s{64+e%2}")
    for n_, (j, hf) in enumerate([(j, hf) for j in range(4) for hf in (1, 0)]):
        gm(j, 1, hf)
        if n_ == 0: pass
        elif n_ < 4: a("s_nop 1")
        else: a(wq.pop(0)); a(wq.pop(0))
    mst("mf")
    for n_ in range(8):
        if n_ == 4: a("s_nop 1")
        a(wq.pop(0))
    a("s_waitcnt lgkmcnt(0)")
    a("s_barrier")
    mst("barE")
    for w in range(8):
        a(f"ds_read2st64_b32 {vr(R+2*w,2)}, v{VRD} offset0:{16*w} offset1:{16*w+1}")
    a(f"s_bitcmp0_b32 s{S_TB}, 11")
    a("s_waitcnt lgkmcnt(4)")
    a(f"v_pk_add_f32 {vr(R,2)}, {vr(R,2)}, {vr(R+2,2)}")
    a(f"v_pk_add_f32 {vr(R+4,2)}, {vr(R+4,2)}, {vr(R+6,2)}")
    a("s_waitcnt lgkmcnt(2)")
    a(f"v_pk_add_f32 {vr(R+8,2)}, {vr(R+8,2)}, {vr(R+10,2)}")
    a(f"v_pk_add_f32 {vr(R,2)}, {vr(R,2)}, {vr(R+4,2)}")
    a("s_waitcnt lgkmcnt(0)")
    a(f"v_pk_add_f32 {vr(R+12,2)}, {vr(R+12,2)}, {vr(R+14,2)}")
    a(f"v_pk_add_f32 {vr(R,2)}, {vr(R,2)}, {vr(R+8,2)}")
    a(f"v_pk_add_f32 {vr(O,2)}, {vr(R,2)}, {vr(R+12,2)}")
    a(f"v_and_or_b32 v{O+2}, v{O}, s10, v{HV[0]}")
    a(f"v_and_or_b32 v{O+3}, v{O+1}, s10, v{HV[1]}")
    if c["fast"]:
        a("s_cbranch_scc1 LM_far")
        a(f"global_store_dwordx2 v{VPO}, {vr(O+2,2)}, {sr(S_WS,2)}")
        a("LM_sent:")
    else:
        a(f"global_store_dwordx2 v{VPO}, {vr(O+2,2)}, {sr(S_WS,2)} sc1")
    mst(8)
    if c.get("ebar", 1): a("s_barrier")
    nd2 = c["nd2"]
    dloads(nd1, nd2)
    a("s_mov_b32 s14, 0")
    a(f"s_waitcnt vmcnt({nd2-nd1})")
    mst("ack")
    def poll2_loads():
        a(f"global_load_dwordx2 v[32:33], v5, {sr(S_WS,2)} offset:128 sc1")
        a(f"global_load_dwordx2 v[54:55], v{VPP}, {sr(S_WS,2)} sc1")
    poll2_loads()
    dloads(nd2, 8)
    def dreads(kap):
        for t_ in range(4):
            for pp in range(2):
                a(f"ds_read_b64_tr_b16 {vr(DO+16*kap+4*t_+2*pp,2)}, v{VTR+t_} offset:{4096*kap+256*pp}")
    assert nd1 >= 4
    dreads(0)
    if nd2 == 8:
        a("s_waitcnt vmcnt(2)")
        dreads(1)
    a(f"s_waitcnt vmcnt({8-nd2})")
    a("LM_poll2:")
    a(f"v_xor_b32 v56, v{HV[0]}, v54")
    a(f"v_xor_b32 v57, v{HV[1]}, v55")
    a("v_bitop3_b32 v2, v56, v57, s10 bitop3:0x54")
    a(f"v_bitop3_b32 v2, v33, s{S_TAG}, v2 bitop3:0xbe")
    a("v_cmp_ne_u32 vcc, 0, v2")
    a("s_cbranch_vccnz LM_poll2_retry")
    a("LM_poll2_ok:")
    if STAMP["on"]: a(f"s_mov_b32 s{ST0+22}, s14")
    mst(9)
    a(f"v_pk_add_f32 v[54:55], v[56:57], {vr(O,2)}")
    a("s_nop 1")
    a("v_permlane32_swap_b32 v54, v55")
    a("v_cvt_pk_bf16_f32 v55, v54, v55")
    a("v_lshlrev_b32 v54, 16, v55")
    a("v_mul_f32 v56, 0xbfb8aa3b, v54")
    a("v_exp_f32 v56, v56")
    a("v_and_b32 v55, 0xffff0000, v55")
    a("v_add_f32 v56, 1.0, v56")
    a("v_rcp_f32 v56, v56")
    a("v_mul_f32 v55, v55, v32")
    a("v_mul_f32 v54, v54, v56")
    a("v_mul_f32 v54, v54, v55")
    a("v_cvt_pk_bf16_f32 v54, v54, v54")
    a(f"ds_write_b16 v{VH}, v54 offset:{L_HB}")
    mst("hw")
    if nd2 < 8:
        a("s_waitcnt vmcnt(0)")
        dreads(1)
        a("s_waitcnt lgkmcnt(8)")
    else:
        a("s_waitcnt lgkmcnt(0)")
    a("s_barrier")
    mst("barF")
    for kap in range(2):
        for hf in range(2):
            a(f"ds_read_b128 {vr(B+8*kap+4*hf,4)}, v{VA+hf} offset:{L_HB+64*kap}")
    for n_, (kap, hf) in enumerate(((0,0), (0,1), (1,0), (1,1))):
        a(f"s_waitcnt lgkmcnt({3-n_})")
        for j in range(2):
            a(f"v_mfma_f32_16x16x32_bf16 {vr(ACC+4*j,4)}, {vr(B+8*kap+4*hf,4)}, {vr(DO+16*kap+4*(2*j+hf),4)}, {vr(ACC+4*j,4) if n_ else 0}")
    mst("mf2")
    a("s_nop 6")
    for j in range(2):
        for r in range(4):
            a(f"v_and_or_b32 v{ACC+4*j+r}, v{ACC+4*j+r}, s10, v{TV[r]}")
        a(f"global_store_dwordx4 v{(VPT, 4)[j]}, {vr(ACC+4*j,4)}, {sr(S_WS,2)} " + FL[c.get("pfl", 0)])
    mst(10)
    if c.get("wb", 0) & 1:
        a("s_add_u32 s6, s5, s3")
        a("s_cmp_lg_u32 s6, 0")
        a("s_cbranch_scc1 LM_nowb")
        a("s_waitcnt vmcnt(0)")
        a("buffer_wbl2 sc1")
        a("s_waitcnt vmcnt(0)")
        a("LM_nowb:")
    stamp_dump(a, 0, 13)
    a("s_endpgm")
    if c["fast"]:
        a("LM_far:")
        a(f"global_store_dwordx2 v{VPO}, {vr(O+2,2)}, {sr(S_WS,2)} sc1")
        a("s_branch LM_sent")
    a("LM_poll2_retry:")
    a("s_add_u32 s14, s14, 1")
    a(f"s_cmp_ge_u32 s14, {SPIN}")
    a("s_cbranch_scc1 LM_poll2_ok")
    poll2_loads()
    a("s_waitcnt vmcnt(0)")
    a("s_branch LM_poll2")
    a("LM_try_again:")
    a("s_add_u32 s14, s14, 1")
    a(f"s_cmp_ge_u32 s14, {c['na']}")
    a("s_cbranch_scc1 LM_poll1")
    a(f"s_sleep {c['ksl']}")
    a("s_branch LM_try")
    a("LM_poll1:")
    a(f"global_load_dwordx2 v[36:37], v15, {sr(S_WS,2)} sc1")
    a("s_add_u32 s14, s14, 1")
    a(f"s_cmp_ge_u32 s14, {SPIN}")
    a("s_waitcnt vmcnt(0)")
    a(f"v_cmp_ne_u32 vcc, s{S_TAG}, v37")
    a("v_not_b32 v38, v36")
    a(f"v_readfirstlane_b32 s{KS_}, v36")
    a("s_cbranch_scc1 LM_keys")
    a("s_cbranch_vccnz LM_poll1")
    a("s_branch LM_keys")
    a("LM_spare:")
    a("s_lshl_b32 s6, s3, 8")
    a("s_sub_u32 s6, 2047, s6")
    a("v_lshlrev_b32 v2, 1, v1")
    a(f"v_sub_u32 v{IDX}, s6, v2")
    a(f"v_subrev_u32 v{IDX+1}, 1, v{IDX}")
    a(f"v_subrev_u32 v{IDX+2}, 0x80, v{IDX}")
    a(f"v_subrev_u32 v{IDX+3}, 0x81, v{IDX}")
    a("s_lshl_b32 s6, s3, 10")
    a("v_add_u32 v14, s6, v3")
    a(f"s_add_u32 s6, s6, {L_RG}")
    a("v_lshl_add_u32 v15, v1, 3, s6")
    a("s_lshl_b32 s6, s3, 11")
    a(f"s_add_u32 s6, s6, {WS_RG}")
    a("v_add_u32 v5, s6, v3")
    a("s_lshl_b32 s6, s4, 7")
    a(f"s_add_u32 s6, s6, {WS_XI}")
    a("v_min_u32 v59, 13, v1")
    a("v_lshl_add_u32 v59, v59, 10, s6")
    a("s_sub_u32 s70, s2, 112")
    a("s_lshl_b32 s70, s70, 8")
    a(f"s_add_u32 s70, s70, {WS_KA}")
    a("s_mov_b32 s66, 0xffff0000")
    a("s_mov_b32 s14, 0")
    a(f"s_lshl_b32 s6, s{S_S}, 3")
    a("s_add_u32 s6, s6, s4")
    a("s_lshl_b32 s6, s6, 8")
    a(f"s_add_u32 s6, s6, {WS_KB}")
    a("v_lshl_add_u32 v50, v8, 12, s6")
    a("v_and_b32 v2, 15, v1")
    a("v_lshl_add_u32 v50, v2, 4, v50")
    a("v_add_u32 v51, 0x4000, v50")
    a("v_and_b32 v52, 3, v1")
    a("v_lshlrev_b32 v52, 3, v52")
    def kcopies(fl):
        a(f"global_store_dwordx4 v50, v[44:47], {sr(S_WS,2)}{fl}")
        a("s_mov_b32 exec_hi, 0xffff")
        a(f"global_store_dwordx4 v51, v[44:47], {sr(S_WS,2)}{fl}")
        a("s_mov_b32 exec_hi, -1")
    a("s_cmp_lg_u32 s3, 0")
    a("s_cbranch_scc1 LA_nopw")
    for r in range(4): a(f"v_not_b32 v{44+r}, s{S_TAG}")
    kcopies("")
    a("LA_nopw:")
    a("s_waitcnt vmcnt(0)")
    a("s_barrier")
    if c["agd"]: a(f"s_sleep {c['agd']}")
    mst(4)
    a("LA_poll:")
    a(f"global_load_dwordx2 v[56:57], v59, {sr(S_WS,2)} sc1")
    for q in range(2):
        a(f"global_load_dwordx4 {vr(PL+4*q,4)}, v5, {sr(S_WS,2)} offset:{1024*q} " + FL[c.get("afl", 0)])
    a("s_mov_b64 exec, -1")
    a("s_add_u32 s14, s14, 1")
    a(f"s_cmp_ge_u32 s14, {SPIN}")
    a("s_waitcnt vmcnt(0)")
    a(f"v_xor_b32 v2, s{S_TAG}, v57")
    for i in (1, 3, 5, 7):
        a(f"v_bitop3_b32 v2, v{PL+i}, s{S_TAG}, v2 bitop3:0xbe")
    a("v_cmp_ne_u32 vcc, 0, v2")
    a("s_cbranch_scc1 LA_poll_ok")
    a("s_cbranch_vccz LA_poll_ok")
    a("s_mov_b64 exec, vcc")
    a("s_branch LA_poll")
    a("LA_poll_ok:")
    if STAMP["on"]: a(f"s_sub_u32 s{ST0+24}, s14, 1")
    mst(5)
    for i in range(4):
        a(f"v_and_or_b32 v{KEY+i}, v{PL+2*i}, s66, v{IDX+i}")
    a(f"v_max_u32 v40, v{KEY}, v{KEY+1}")
    a(f"v_min_u32 v41, v{KEY}, v{KEY+1}")
    a(f"v_max3_u32 v36, v40, v{KEY+2}, v{KEY+3}")
    a(f"v_med3_u32 v42, v40, v{KEY+2}, v{KEY+3}")
    a(f"v_min3_u32 v43, v40, v{KEY+2}, v{KEY+3}")
    a("v_max_u32 v37, v42, v41")
    a("v_med3_u32 v38, v42, v43, v41")
    a(f"ds_write_b128 v14, v[36:39] offset:{L_RED}")
    a(f"ds_write2_b32 v15, v{PL}, v{PL+2} offset0:0 offset1:1")
    a(f"ds_write2_b32 v15, v{PL+4}, v{PL+6} offset0:128 offset1:129")
    a(f"v_cmp_ne_u32 s[64:65], s{S_TB}, v56")
    a("s_waitcnt lgkmcnt(0)")
    a("s_barrier")
    mst(6)
    a("s_cmp_lg_u32 s3, 0")
    a("s_cbranch_scc1 LA_end")
    P = 64
    for i in range(1, 8):
        a(f"ds_read_b128 {vr(P+4*i,4)}, v3 offset:{L_RED+1024*i}")
    a("s_cmp_eq_u64 s[64:65], 0")
    a("s_cselect_b32 s71, 0x800, 0")
    if not c["fast"]: a("s_mov_b32 s71, 0")
    for r in (45, 47, 49, 55): a(f"v_mov_b32 v{r}, s{S_TAG}")
    ins = []
    for i in range(1, 8):
        x, y = P+4*i, P+4*i+1
        ins += [f"v_med3_u32 v38, v37, v38, v{x}", f"v_med3_u32 v37, v36, v37, v{x}", f"v_max_u32 v36, v36, v{x}",
                f"v_med3_u32 v38, v37, v38, v{y}", f"v_max_u32 v37, v37, v{y}"]
    ins += [f"v_max3_u32 v38, v38, v{P+6}, v{P+10}", f"v_max3_u32 v38, v38, v{P+14}, v{P+18}",
            f"v_max3_u32 v38, v38, v{P+22}, v{P+26}", f"v_max_u32 v38, v38, v{P+30}"]
    def fill(n):
        for _ in range(n): a(ins.pop(0))
    a("s_waitcnt lgkmcnt(5)")
    a(f"v_max3_u32 v40, v36, v{P+4}, v{P+8}")
    fill(5)
    a("s_waitcnt lgkmcnt(0)")
    a(f"v_max3_u32 v41, v{P+12}, v{P+16}, v{P+20}")
    a(f"v_max3_u32 v40, v40, v{P+24}, v{P+28}")
    a("v_max_u32 v40, v40, v41")
    for st in ("quad_perm:[1,0,3,2]", "quad_perm:[2,3,0,1]", "row_half_mirror"):
        fill(4)
        a(f"v_max_u32_dpp v40, v40, v40 {st} {DPP_FULL}")
    fill(4)
    a(f"v_min_u32_dpp v41, v40, v40 row_mirror {DPP_FULL}")
    a(f"v_max_u32_dpp v40, v40, v40 row_mirror {DPP_FULL}")
    for st in ("row_bcast:15 row_mask:0xa bank_mask:0xf", "row_bcast:31 row_mask:0xc bank_mask:0xf"):
        fill(4)
        a(f"v_min_u32_dpp v41, v41, v41 {st}")
        a(f"v_max_u32_dpp v40, v40, v40 {st}")
    fill(2)
    a("v_readlane_b32 s6, v41, 63")
    a("v_readlane_b32 s7, v40, 63")
    fill(len(ins))
    a("s_sub_u32 s14, s7, s6")
    a("s_lshr_b32 s14, s14, 2")
    mst(7)
    a("LA_bis:")
    a("s_add_u32 s14, s14, s6")
    a("v_cmp_le_u32 s[68:69], s14, v36")
    a("v_cmp_le_u32 vcc, s14, v37")
    a("s_bcnt1_i32_b64 s15, s[68:69]")
    a("s_bcnt1_i32_b64 s67, vcc")
    a("s_add_u32 s67, s67, s15")
    a("s_cmp_eq_u32 s67, 8")
    a("s_cbranch_scc1 LA_bis_done")
    a("s_cmp_gt_u32 s67, 8")
    a("s_cselect_b32 s6, s14, s6")
    a("s_cselect_b32 s7, s7, s14")
    a("s_sub_u32 s14, s7, s6")
    a("s_lshr_b32 s14, s14, 1")
    a("s_cbranch_scc1 LA_bis")
    a("s_mov_b32 s14, s6")
    a("v_cmp_le_u32 s[68:69], s14, v36")
    a("v_cmp_le_u32 vcc, s14, v37")
    a("s_bcnt1_i32_b64 s15, s[68:69]")
    a("LA_bis_done:")
    a("v_cmp_le_u32 s[64:65], s14, v38")
    a("LA_pick:")
    a("v_mbcnt_lo_u32_b32 v40, s68, 0")
    a("v_mov_b32 v41, s15")
    a("s_cmp_lg_u64 s[64:65], 0")
    a("s_cbranch_scc1 LA_slow")
    a("v_mbcnt_hi_u32_b32 v40, s69, v40")
    a("v_mbcnt_lo_u32_b32 v41, vcc_lo, v41")
    a("v_or_b32 v36, s71, v36")
    a("v_mbcnt_hi_u32_b32 v41, vcc_hi, v41")
    a("v_lshlrev_b32 v40, 2, v40")
    a("v_or_b32 v37, s71, v37")
    a("v_lshlrev_b32 v41, 2, v41")
    a("v_and_b32 v40, 28, v40")
    a("v_and_b32 v41, 28, v41")
    a("s_mov_b64 exec, s[68:69]")
    a(f"ds_write_b32 v40, v36 offset:{L_SEL}")
    a("s_mov_b64 exec, vcc")
    a(f"ds_write_b32 v41, v37 offset:{L_SEL}")
    a("s_mov_b64 exec, -1")
    a(f"ds_read_b32 v44, v52 offset:{L_SEL}")
    a(f"ds_read_b32 v46, v52 offset:{L_SEL+4}")
    a("v_lshlrev_b32 v2, 2, v9")
    a(f"ds_read_b32 v54, v2 offset:{L_SEL}")
    a("s_cmp_eq_u32 s71, 0")
    a("s_waitcnt lgkmcnt(1)")
    a("s_cbranch_scc1 LA_far")
    kcopies("")
    a("LA_sent:")
    mst(8)
    a("v_lshrrev_b32 v12, 3, v1")
    a(f"s_lshl_b32 s6, s{S_S}, 10")
    a("v_lshl_add_u32 v12, v12, 7, s6")
    a("s_waitcnt lgkmcnt(0)")
    a("v_not_b32 v38, v54")
    a("v_and_b32 v39, 2047, v38")
    a("v_lshl_add_u32 v12, v39, 11, v12")
    a(f"global_load_dword v13, v12, {sr(S_X,2)}")
    a("v_lshlrev_b32 v39, 2, v39")
    a(f"ds_read_b32 v33, v39 offset:{L_RG}")
    a("v_ashrrev_i32 v38, 31, v38")
    a("v_or_b32 v38, 0x80000000, v38")
    a("v_xor_b32 v32, v54, v38")
    a("v_and_b32 v32, 0xffff0000, v32")
    a("v_mul_f32 v32, 0xbfb8aa3b, v32")
    a("v_exp_f32 v32, v32")
    a("v_lshl_add_u32 v42, v1, 3, s70")
    a("v_add_f32 v32, 1.0, v32")
    a("v_rcp_f32 v32, v32")
    a("s_waitcnt lgkmcnt(0)")
    a("v_lshlrev_b32 v33, 16, v33")
    a("v_sub_f32 v33, 1.0, v33")
    a("v_cvt_pk_bf16_f32 v32, v32, v32")
    a("v_lshlrev_b32 v32, 16, v32")
    a("v_mul_f32 v48, v32, v33")
    a("s_mov_b64 exec, 0xffff")
    a(f"global_store_dwordx2 v42, v[48:49], {sr(S_WS,2)} offset:128 sc1")
    a("s_cmp_lg_u32 s2, 112")
    a("s_cbranch_scc1 LA_watch")
    a("v_lshlrev_b32 v42, 3, v1")
    a(f"v_add_u32 v42, {WS_KEYS}, v42")
    a(f"global_store_dwordx2 v42, v[54:55], {sr(S_WS,2)} sc1")
    a(f"v_mov_b32 v43, {WS_E}")
    a("s_mov_b64 exec, 1")
    a(f"global_store_dword v43, v47, {sr(S_WS,2)} sc1")
    a("LA_watch:")
    if c["go"]:
        a("s_mov_b64 exec, -1")
        a("s_lshl_b32 s6, s4, 10")
        a(f"s_add_u32 s6, s6, {WS_GO}")
        a("v_lshl_add_u32 v42, v9, 7, s6")
        a(f"global_load_dword v13, v42, {sr(S_WS,2)} sc1")
        a("s_mul_i32 s6, s4, 14")
        a(f"s_add_u32 s6, s6, s{S_S}")
        a("s_lshl_b32 s6, s6, 12")
        a(f"s_add_u32 s6, s6, {WS_PRE}")
        a("v_lshrrev_b32 v2, 3, v1")
        a("v_min_u32 v43, 6, v2")
        a("v_lshl_add_u32 v43, v43, 13, s6")
        a("v_lshl_add_u32 v43, v9, 9, v43")
        a(f"s_lshl_b32 s6, s{S_S}, 5")
        a("s_add_u32 s6, s6, s4")
        a("s_lshl_b32 s6, s6, 7")
        a(f"s_add_u32 s6, s6, {WS_GO}")
        a("v_lshl_add_u32 v42, v2, 10, s6")
        a("v_lshl_add_u32 v42, v9, 4, v42")
        a(f"v_mov_b32 v44, s{S_TAG}")
        a(f"v_mov_b32 v46, s{S_TAG}")
        a("s_mov_b32 s14, 0")
        a("LA_w:")
        a("s_sleep 2")
        a(f"global_load_ubyte v40, v43, {sr(S_WS,2)} sc1")
        a(f"s_and_b32 s6, s{S_TAG}, 0xff")
        a("s_add_u32 s14, s14, 1")
        a(f"s_cmp_ge_u32 s14, {SPIN}")
        a("s_waitcnt vmcnt(0)")
        a("v_cmp_ne_u32 vcc, s6, v40")
        a("s_cbranch_scc1 LA_go")
        a("s_cbranch_vccnz LA_w")
        a("LA_go:")
        mst(9)
        if c["god"]: a(f"s_sleep {c['god']}")
        a("s_mov_b32 exec_hi, 0")
        a(f"global_store_dwordx4 v42, v[44:47], {sr(S_WS,2)} sc1")
    a("LA_end:")
    stamp_dump(a, 0, 13)
    a("s_endpgm")
    a("LA_far:")
    kcopies(" sc1")
    a("s_branch LA_sent")
    a("LA_slow:")
    KS = 64
    for i in range(8):
        a(f"ds_read_b128 {vr(KS+4*i,4)}, v3 offset:{L_RG+1024*i}")
    a("v_lshlrev_b32 v57, 2, v1")
    a("v_sub_u32 v57, 2047, v57")
    a("s_waitcnt lgkmcnt(0)")
    for i in range(32):
        a(f"v_subrev_u32 v58, {256*(i//4)+i%4}, v57")
        a(f"v_and_or_b32 v{KS+i}, v{KS+i}, s66, v58")
    a("s_mov_b32 s14, -1")
    a("s_mov_b32 m0, 0")
    a("LA_slow_rnd:")
    for i in range(0, 32, 2):
        a(f"v_sub_u32 v57, s14, v{KS+i}")
        a(f"v_sub_u32 v58, s14, v{KS+i+1}")
        a("v_min_u32 v56, v57, v58" if i == 0 else "v_min3_u32 v56, v57, v58, v56")
    for st in (f"row_shr:1 {DPP_FULL}", f"row_shr:2 {DPP_FULL}", f"row_shr:4 {DPP_FULL}", f"row_shr:8 {DPP_FULL}",
               "row_bcast:15 row_mask:0xa bank_mask:0xf", "row_bcast:31 row_mask:0xc bank_mask:0xf"):
        a("s_nop 1")
        a(f"v_min_u32_dpp v56, v56, v56 {st}")
    a("s_nop 0")
    a("v_readlane_b32 s15, v56, 63")
    a("s_sub_u32 s14, s14, s15")
    a("v_writelane_b32 v36, s14, m0")
    a("s_sub_u32 s14, s14, 1")
    a("s_add_u32 m0, m0, 1")
    a("s_cmp_lt_u32 m0, 8")
    a("s_cbranch_scc1 LA_slow_rnd")
    a("s_mov_b64 s[68:69], 0xff")
    a("s_mov_b64 vcc, 0")
    a("s_mov_b64 s[64:65], 0")
    a("s_mov_b32 s15, 8")
    a("s_branch LA_pick")

ROWB = 528
REG = 19008
YB, KB, UB = 0, 4608, 14320
KE, KO, TB = KB + 32, KB + 1252, KB + 2352
GB = 8 * REG
RED2 = GB + 8192
LDS_TOTAL = RED2 + 2048

def conv(a):
    c = CFG
    SETS = [dict(fill=1, par=2, gend=3, u1=4, bar2=5, tail=6, st0=7, st1=8, st2=9, st3=10),
            dict(karg=1, fill=2, par=3, kbar=4, eend=5, erd=6, gend=7, bar2=8, kmf=9, tail=10),
            dict(bar2=1, tail=2, rec=3, gb0=4, gb1=5, ba0=6, ba1=7, ba2=8, ba3=9, ba4=10),
            dict(u10=1, u1=2, bar2=3, b2i=4, rec=5, rec1=6, uw0=7, uw1=8, gw0=9, gw1=10)]
    def cst(nm):
        k = SETS[c.get("fine", 0)].get(nm)
        if k: stamp(a, k)
    C3, C5, C7, C9, C2 = 12, 16, 20, 24, 28
    ACC, A, T, BX, BR, EP, SD, U2 = 32, 64, 132, 172, 196, 232, 244, 248
    EOP, GOP, U1 = 64, 132, 232
    PL, TG = EP, SD
    VB, VU, VG, VY, VGW, VT0, VT1 = 2, 3, 4, 5, 6, 8, 9
    VUL, VOP, VK, VTP, VTQ, VOE, VZ, VDS = 48, 49, 50, 51, 52, 53, 54, 55
    VA0, VA1, VT = 60, 61, 62
    S_COL, S_REG, S_TAG = 60, 61, 66
    t0_, t1_, t2_, ta = 56, 57, 58, 59
    PR = 196
    a("s_lshl_b32 s6, s4, 4")
    a("s_add_u32 s63, s6, s5")
    a("s_lshl_b32 s6, s63, 3")
    a("s_add_u32 s6, s6, s3")
    a("s_lshl_b32 s7, s6, 8")
    a("v_lshl_add_u32 v5, v1, 2, s7")
    a("s_lshl_b32 s10, s6, 1")
    a("s_and_b32 s10, s10, 0x7fc")
    a(f"s_mul_i32 s{S_REG}, s3, {REG}")
    a(f"s_mov_b32 m0, s{S_REG}")
    a(f"v_and_b32 v{ta}, 15, v1")
    a("v_lshrrev_b32 v7, 4, v1")
    a(f"v_lshl_add_u32 v{t0_}, v7, 3, v{ta}")
    a(f"v_min_u32 v{t0_}, 31, v{t0_}")
    a("s_lshl_b32 s9, s3, 2")
    a("s_lshr_b32 s6, 0x23452, s9")
    a("s_lshr_b32 s7, 0x29753, s9")
    a("s_and_b32 s6, s6, 15")
    a("s_and_b32 s7, s7, 15")
    a("s_add_u32 s6, s6, 16")
    a("s_bfm_b32 s6, s7, s6")
    a("s_cmp_eq_u32 s3, 4")
    a("s_movk_i32 s7, 0x3f80")
    a(f"v_mov_b32 v{t2_}, s7")
    a("s_cselect_b32 s7, 0xffff, s7")
    a(f"v_bfe_u32 v{t1_}, s6, v{t0_}, 8")
    a(f"v_lshl_or_b32 v{t1_}, v{t1_}, 15, v{t1_}")
    for p in range(4):
        if p: a(f"v_lshrrev_b32 v{C3+p}, {2*p}, v{t1_}")
        a(f"v_and_b32 v{C3+p}, 0x10001, v{C3+p if p else t1_}")
        a(f"v_mul_u32_u24 v{C3+p}, s7, v{C3+p}")
    a(f"v_add_u32 v{VG}, {GB}, v3")
    a("s_lshl_b32 s6, s3, 10")
    a(f"v_add_u32 v{t1_}, s6, v{VG}")
    a("v_lshlrev_b32 v2, 2, v0")
    a(f"v_add_u32 v2, {RED2}, v2")
    a(f"v_mov_b32 v{VZ}, 0")
    a(f"ds_write_b128 v{t1_}, {vr(C3,4)}")
    a(f"ds_write_b32 v2, v{t2_}")
    a("s_waitcnt lgkmcnt(0)")
    cst("karg")
    for i, s_ in enumerate((S_LA, S_AI)):
        a(f"global_load_dword v{PR+i}, v5, {sr(s_,2)}" + NT("a"))
    a(f"s_load_dword s66, {sr(S_LDT,2)}, s10")
    a(f"s_load_dword s67, {sr(S_DSK,2)}, s10")
    a("s_barrier")
    for i, s_ in enumerate((S_CR, S_CI)):
        a(f"global_load_dword v{PR+2+i}, v5, {sr(s_,2)}" + NT("a"))
    a(f"ds_write_addtid_b32 v{VZ} offset:{UB+4096}")
    a(f"ds_write_addtid_b32 v{VZ} offset:{UB+4096+256}")
    a(f"s_lshl_b32 s{S_COL}, s63, 4")
    a("s_and_b32 s11, s3, 1")
    a("s_lshl_b32 s11, s11, 4")
    a(f"v_lshlrev_b32 v{VUL}, 12, v0")
    a(f"v_sub_u32 v{VUL}, {1022*2048}, v{VUL}")
    a("v_lshlrev_b32 v11, 11, v0")
    a("s_lshl_b32 s6, s5, 3")
    a("s_add_u32 s6, s6, s3")
    a("s_lshl_b32 s6, s6, 15")
    a("s_lshl_b32 s9, s4, 8")
    a("s_add_u32 s6, s6, s9")
    a("v_lshrrev_b32 v2, 1, v1")
    a("v_lshl_add_u32 v2, v2, 11, s6")
    a("v_and_b32 v3, 1, v1")
    a(f"v_lshl_add_u32 v{TG+1}, v3, 7, v2")
    upre = ["s_mov_b32 exec_hi, 0", f"buffer_load_dword v10, v{TG+1}, {sr(SRD_X,4)}, 0 offen" + NT("u"), "s_mov_b32 exec_hi, -1"]
    a(f"s_add_u32 s8, s{S_COL}, {1 << 21}")
    a.srd(SRD_X, S_X, 4194304)
    a.srd(SRD_OUT, S_OUT, 4194304)
    a("s_lshl_b32 s6, s5, 3")
    a("s_lshr_b32 s7, s3, 1")
    a("s_add_u32 s6, s6, s7")
    a("s_add_u32 s6, s6, 4")
    a(f"s_mul_i32 s6, s6, {8*7168}")
    a(f"s_lshr_b32 s7, s{S_WG}, 7")
    a("s_sub_u32 s7, s4, s7")
    a("s_add_u32 s7, s7, 3")
    a("s_and_b32 s7, s7, 7")
    a("s_min_u32 s7, s7, 6")
    a("s_mul_i32 s9, s4, 7")
    a("s_add_u32 s7, s7, s9")
    a("s_lshl_b32 s7, s7, 7")
    a("s_add_u32 s6, s6, s7")
    a("v_mul_u32_u24 v0, 7168, v1")
    a("v_add_u32 v0, s6, v0")
    a("s_bitcmp1_b32 s3, 0")
    a(f"s_cselect_b64 s[12:13], {sr(S_WU,2)}, {sr(S_WG,2)}")
    a("s_mov_b64 s[70:71], 0xff")
    wpre_txt = ["s_mov_b64 exec, s[70:71]", "global_load_dword v10, v0, s[12:13]" + NT("s"), "s_mov_b64 exec, -1"]
    n_early = 0
    def utext(H, e, va=VUL):
        return f"buffer_load_dwordx4 {vr((U1, U2)[H]+4*e,4)}, v{va}, {sr(SRD_X,4)}, s{(S_COL, 8)[H]} offen offset:{e*2048}"
    def uload(H, e): a(utext(H, e))
    a(f"v_and_b32 v{t0_}, 31, v1")
    a(f"v_lshrrev_b32 v{t1_}, 5, v1")
    a(f"v_mul_u32_u24 v{VOP}, {ROWB}, v{t0_}")
    a(f"v_lshl_add_u32 v{t2_}, v{t1_}, 4, s{S_REG}")
    a(f"v_add_u32 v{VOP}, v{VOP}, v{t2_}")
    a(f"v_subrev_u32 v{VOE}, {ROWB}, v{VOP}")
    a(f"v_cmp_eq_u32 vcc, 0, v{t0_}")
    a(f"v_and_b32 v{t2_}, 0xff, v{VOE}")
    a(f"v_add_u32 v{t2_}, {RED2}, v{t2_}")
    a(f"v_cndmask_b32 v{VOE}, v{VOE}, v{t2_}, vcc")
    a("s_mov_b32 s14, 0xaaaaaaaa")
    a("s_mov_b32 s15, 0xaaaaaaaa")
    late = f"""
    v_lshlrev_b32 v{t2_}, 5, v{ta}
    s_add_u32 s6, s{S_REG}, {UB+480}
    v_sub_u32 v{VU}, s6, v{t2_}
    v_lshl_add_u32 v{VB}, v7, 4, v{VU}
    v_lshlrev_b32 v{VY}, 3, v7
    v_sub_u32 v{VU}, v{VU}, v{VY}
    v_mul_u32_u24 v{VY}, 144, v7
    v_lshl_add_u32 v{t2_}, v{ta}, 3, s{S_REG}
    v_add_u32 v{VY}, v{VY}, v{t2_}
    v_lshl_add_u32 v{VK}, v{t0_}, 4, s{S_REG}
    v_lshl_add_u32 v{VK}, v{t1_}, 3, v{VK}
    v_lshl_add_u32 v{VTQ}, v{t0_}, 1, s{S_REG}
    v_lshl_add_u32 v{VTQ}, v{t1_}, 7, v{VTQ}
    v_lshrrev_b32 v{t0_}, 1, v{t0_}
    v_lshl_add_u32 v{VTP}, v{t0_}, 2, s{S_REG}
    v_lshl_add_u32 v{VTP}, v{t1_}, 6, v{VTP}
    v_add_u32 v{t0_}, 192, v{VTP}
    v_cndmask_b32 v{VTP}, v{VTP}, v{t0_}, s[14:15]
    v_and_b32 v{t0_}, 14, v1
    v_lshlrev_b32 v{t0_}, 1, v{t0_}
    v_lshl_add_u32 v{t0_}, v7, 4, v{t0_}
    v_mov_b32 v{t1_}, {KO-28}
    v_mov_b32 v{t2_}, {KE-28}
    v_cndmask_b32 v{t1_}, v{t1_}, v{t2_}, s[14:15]
    v_add3_u32 v{VA0}, v{t0_}, v{t1_}, s{S_REG}
    v_add_u32 v{VA1}, 1024, v{VA0}
    v_lshlrev_b32 v{t0_}, 4, v7
    s_add_u32 s6, s{S_REG}, {TB}
    v_lshl_add_u32 v{VT}, v{ta}, 2, s6
    v_sub_u32 v{VT}, v{VT}, v{t0_}
    s_lshl_b32 s6, s3, 11
    s_add_u32 s6, s6, {WS_RG}
    v_lshl_add_u32 v{TG+3}, v1, 4, s6
    v_bfe_u32 v{t0_}, v1, 2, 2
    v_mul_u32_u24 v{VT0}, {REG}, v{t0_}
    v_and_b32 v{t0_}, 3, v1
    v_mul_u32_u24 v{t0_}, 144, v{t0_}
    s_lshr_b32 s6, s3, 2
    s_mul_i32 s6, s6, {576-128}
    s_lshl_b32 s7, s3, 5
    s_add_u32 s6, s6, s7
    v_lshl_add_u32 v{t1_}, v7, 3, s6
    v_add3_u32 v{VT0}, v{VT0}, v{t0_}, v{t1_}
    v_add_u32 v{VT1}, {4*REG}, v{VT0}
    v_and_b32 v{t0_}, 1, v1
    s_lshl_b32 s6, s3, 10
    s_add_u32 s6, s6, {GB}
    v_lshl_add_u32 v{VGW}, v{t0_}, 3, s6
    v_bfe_u32 v{t0_}, v1, 1, 2
    v_lshl_add_u32 v{VGW}, v{t0_}, 8, v{VGW}
    v_lshrrev_b32 v{t0_}, 3, v1
    v_lshl_add_u32 v{VGW}, v{t0_}, 4, v{VGW}
    """.strip().split("\n")
    if c["dpre"]:
        late += f"""
        s_mul_i32 s6, s5, 7
        s_min_u32 s7, s3, 6
        s_add_u32 s6, s6, s7
        s_lshr_b32 s7, s6, 4
        s_lshl_b32 s7, s7, 4
        s_add_u32 s6, s6, s7
        s_mul_i32 s7, s4, 224
        s_add_u32 s6, s6, s7
        s_lshl_b32 s6, s6, 12
        s_add_u32 s6, s6, {32*2048}
        v_and_b32 v{t0_}, 31, v1
        v_lshl_add_u32 v{TG+2}, v{t0_}, 7, s6
        """.strip().split("\n")
    late += f"""
    s_lshl_b32 s6, s63, 3
    s_add_u32 s6, s6, s3
    s_lshl_b32 s6, s6, 11
    s_add_u32 s6, s6, {WS_PART}
    v_bfe_u32 v{t0_}, v1, 3, 1
    v_lshl_add_u32 v{t0_}, v{t0_}, 2, v7
    v_lshlrev_b32 v{t0_}, 3, v{t0_}
    v_add_u32 v{t0_}, {WS_KEYS}, v{t0_}
    v_lshl_add_u32 v7, v1, 4, s6
    s_cmp_eq_u32 s3, 7
    s_cselect_b64 vcc, -1, 0
    v_cndmask_b32 v7, v7, v{t0_}, vcc
    s_lshl_b32 s29, s4, 10
    s_add_u32 s29, s29, {WS_GO}
    s_add_u32 s9, s{S_COL}, {1 << 20}
    s_add_u32 s62, s{S_COL}, {3 << 20}
    """.strip().split("\n")
    lv = []; park = 18; pend_s = False
    for l in [l.strip() for l in late]:
        if l.startswith("s_"):
            a(l.replace("vcc", "s[30:31]")); pend_s = True
        else:
            if " s6" in l:
                if pend_s:
                    a(f"s_mov_b32 s{park}, s6"); park += 1; pend_s = False
                l = l.replace(" s6", f" s{park-1}") if f"s{S_REG}" not in l else l
            lv.append(l.replace("vcc", "s[30:31]"))
    assert park <= 26
    late = lv
    a("s_mov_b32 s64, 0x05040100")
    a("s_mov_b32 s65, 0x07060302")
    a("s_lshl_b32 s68, s3, 8")
    a(f"s_add_u32 s68, s68, {UB}")
    a(f"s_add_u32 s69, s68, {4*REG}")
    a("s_mov_b32 s10, 0")
    a("s_waitcnt lgkmcnt(0)")
    d = 200
    a("s_lshr_b32 s66, s66, s11")
    a("s_lshr_b32 s67, s67, s11")
    a("s_lshl_b32 s66, s66, 16")
    a("s_lshl_b32 s67, s67, 16")
    a(f"v_mov_b32 v{d}, {LOG2E}")
    a(f"v_mul_f32 v{d}, s66, v{d}")
    a(f"v_exp_f32 v{d}, v{d}")
    a(f"v_mov_b32 v{VDS}, 0")
    a(f"v_cvt_pk_bf16_f32 v{d}, v{d}, v{d}")
    a(f"v_writelane_b32 v{VDS}, s67, 0")
    if c["fold"]:
        a("s_mov_b64 exec, 1")
        a(f"v_add_f32 v{VDS}, -1.0, v{VDS}")
        a("s_mov_b64 exec, -1")
    a(f"v_lshlrev_b32 v{d}, 16, v{d}")
    a(f"v_mul_f32 v202, 0xbfb8aa3b, v{d}")
    a(f"v_mul_f32 v203, {INV2PI}, v{d}")
    a(f"v_add_f32 v{d}, v{d}, v{d}")
    nx = [GOP]
    def newp():
        p = (nx[0], nx[0] + 2); nx[0] += 4; return p
    W1, W8, W256, G0 = newp(), newp(), newp(), newp()
    TT = newp()
    PK = [nx[0], nx[0] + 2, nx[0] + 4]; nx[0] += 8
    Z = 204
    X_ = 208
    cst("fill")
    a(f"s_waitcnt vmcnt({n_early + 2})")
    cst("par")
    if c["upat"] == -1:
        for l in upre: a(l)
    a(f"v_lshlrev_b32 v{Z}, 16, v{PR}")
    a(f"v_and_b32 v{Z+2}, 0xffff0000, v{PR}")
    a(f"v_mul_f32 v{Z}, {LOG2E}, v{Z}")
    a(f"v_mul_f32 v{Z+2}, {LOG2E}, v{Z+2}")
    a(f"v_exp_f32 v{Z}, v{Z}")
    a(f"v_exp_f32 v{Z+2}, v{Z+2}")
    a(f"v_lshlrev_b32 v{Z+1}, 16, v{PR+1}")
    a(f"v_cvt_pk_bf16_f32 v{Z+2}, v{Z}, v{Z+2}")
    a(f"v_and_b32 v{Z+3}, 0xffff0000, v{PR+1}")
    a(f"v_lshlrev_b32 v{Z}, 16, v{Z+2}")
    a(f"v_and_b32 v{Z+2}, 0xffff0000, v{Z+2}")
    a(f"v_pk_mul_f32 {vr(Z,2)}, {vr(Z,2)}, v[202:203]")
    a(f"v_pk_mul_f32 {vr(Z+2,2)}, {vr(Z+2,2)}, v[202:203]")
    def wexp(sc, W):
        L = []
        for m in range(2):
            if sc:
                L += [f"v_mul_f32 v{X_+2*m}, {sc}, v{Z+2*m}", f"v_mul_f32 v{X_+1+2*m}, {sc}, v{Z+1+2*m}"]
        src = X_ if sc else Z
        for m in range(2):
            L += [f"v_fract_f32 v{X_+1+2*m}, v{src+1+2*m}"]
        for m in range(2):
            L += [f"v_exp_f32 v{X_+2*m}, v{src+2*m}", f"v_cos_f32 v{W[m]}, v{X_+1+2*m}", f"v_sin_f32 v{W[m]+1}, v{X_+1+2*m}"]
        for m in range(2):
            L += [f"v_pk_mul_f32 {vr(W[m],2)}, {vr(W[m],2)}, {vr(X_+2*m,2)} op_sel:[0,0] op_sel_hi:[1,0]"]
        return L
    for l in wexp("0x41000000", W8): a(l)
    if c["kbar"]: a("s_barrier")
    cst("kbar")
    kk = [0]
    def run_steps(steps, neg, hooks={}):
        n = "-" if neg else ""
        pend = None; pw = None
        for si, (dst, src, w, rows) in enumerate(steps + [(None,)*4, (None,)*4]):
            x = y = [None, None]
            if w is not None:
                x = cmul(dst[0], src[0], w[0], TT[0]); y = cmul(dst[1], src[1], w[1], TT[1])
            cA = cB = None
            if pend:
                p = PK[kk[0] % 3]; kk[0] += 1
                cA = f"v_cvt_pk_bf16_f32 v{p}, v{pend[0][0]}, {n}v{pend[0][0]+1}"
                cB = f"v_cvt_pk_bf16_f32 v{p+1}, v{pend[0][1]}, {n}v{pend[0][1]+1}"
            wa = [f"ds_write_addtid_b32 v{pw[0]} offset:{r*ROWB}" for r in pw[1]] if pw else []
            wb = [f"ds_write_addtid_b32 v{pw[0]+1} offset:{r*ROWB+256}" for r in pw[1]] if pw else []
            for s_ in [x[0], y[0]] + wa + hooks.get(si, []) + [cA, x[1], y[1]] + wb + [cB]:
                if s_: a(s_)
            pw = (p, pend[1]) if pend else None
            pend = (dst, rows) if rows else None
    EA, EB = newp(), newp()
    steps = [(W8, None, None, [0])]
    cur = W8
    for b in range(2, 32 - c.get("x_skipE", 0)):
        nxt = EA if b % 2 == 0 else EB
        steps.append((nxt, cur, W8, [b-1])); cur = nxt
    eh = {c["u1at"]: [utext(0, 1)]} if c["u1at"] < 100 else {}
    if c["upat"] >= 0: eh.setdefault(c["upat"], []).extend(upre)
    if c["u0at"] >= 0: eh.setdefault(c["u0at"], []).append(utext(0, 0))
    for i in range(5):
        eh.setdefault(8 + 3*i, []).append(f"ds_read_b128 {vr(C3+4*i,4)}, v{VG} offset:{1024*i}")
    if c["wpre"]:
        pass
    a(".p2align 3")
    run_steps(steps, False, eh)
    cst("eend")
    a(f"s_waitcnt vmcnt({n_early + (c['upat'] >= -1) + (c['u0at'] >= 0) + (c['u1at'] < 100)})")
    sb = [f"v_lshlrev_b32 v{G0[0]}, 16, v{PR+2}", f"v_and_b32 v{G0[1]}, 0xffff0000, v{PR+2}",
          f"v_lshlrev_b32 v{G0[0]+1}, 16, v{PR+3}", f"v_and_b32 v{G0[1]+1}, 0xffff0000, v{PR+3}",
          f"v_pk_mul_f32 {vr(G0[0],2)}, {vr(G0[0],2)}, {vr(d,2)} op_sel:[0,0] op_sel_hi:[1,0]",
          f"v_pk_mul_f32 {vr(G0[1],2)}, {vr(G0[1],2)}, {vr(d,2)} op_sel:[0,0] op_sel_hi:[1,0]"]
    sb += wexp(None, W1) + wexp("0x43800000", W256)
    for s_ in range(16):
        a(f"ds_read_b128 {vr(EOP+4*s_,4)}, v{VOE} offset:{32*s_}")
        if s_ % 2 == 1 and s_ >= 3:
            for _ in range(5):
                if sb: a(sb.pop(0))
    assert not sb
    cst("erd")
    if c.get("gprio", 1): a("s_setprio 1")
    if c.get("gsync", 0): a("s_barrier")
    def drow(r, h): return 8*(r//4) + 4*h + (r % 4)
    want = {}
    def put(al, r, h): want.setdefault(al, []).append(drow(r, h))
    for h in range(2):
        for j in range(4): put(4*h + j, j, h)
        for j in range(3): put(256 + 4*h + 2*j, 4 + j, h)
        put(4*h + 4, 7, h)
        for j in range(2): put(512 + 256*h + 4 + 4*j, 8 + j, h)
        for q in range(2): put(1024 + 512*h + 256*q + 8, 10 + q, h)
    keep = {al: newp() for al in (2, 4, 6, 8)}
    tA, tB = EA, EB
    steps = []
    def st(al, dst, src, w): steps.append((dst, src, w, want.pop(al)))
    st(0, G0, None, None)
    cur = G0
    for al in range(1, 9):
        dd = keep.get(al) or (tA if al % 4 == 1 else tB)
        st(al, dd, cur, W1); cur = dd
    c8 = [keep[8], tA]; c4 = [keep[4], tB]
    e1 = newp()
    singles = [(256, G0), (258, keep[2]), (262, keep[6])]
    for k in range(1, 8):
        st(256*k + 8, c8[k % 2], c8[(k-1) % 2], W256)
        if k <= 3: st(256*k + 4, c4[k % 2], c4[(k-1) % 2], W256)
        elif singles:
            al, src = singles.pop(0)
            st(al, e1, src, W256)
    assert not want and not singles and nx[0] <= GOP + 64
    hooks = {1: [f"s_load_dwordx2 s[66:67], {sr(S_DBG,2)}, 0"]}
    if c["u1at"] >= 100:
        assert c["u1at"] - 100 <= c["wpat"] or c["wpat"] < 0
        hooks.setdefault(c["u1at"] - 100, []).append(utext(0, 1))
    if c["wpre"] and c["wpat"] >= 0:
        hooks.setdefault(c["wpat"], []).extend(wpre_txt)
    a(".p2align 3")
    if c["gb"] == 0:
        run_steps(steps, True, hooks)
    else:
        ring = [212 + 2*i for i in range(10)]; k = 0; pend = None; ready = []
        for si, (dst, src, w, rows) in enumerate(steps + [(None,)*4]):
            x = y = [None, None]
            if w is not None:
                x = cmul(dst[0], src[0], w[0], TT[0]); y = cmul(dst[1], src[1], w[1], TT[1])
            cA = cB = None
            if pend:
                p = ring[k % 10]; k += 1
                cA = f"v_cvt_pk_bf16_f32 v{p}, v{pend[0][0]}, -v{pend[0][0]+1}"
                cB = f"v_cvt_pk_bf16_f32 v{p+1}, v{pend[0][1]}, -v{pend[0][1]+1}"
                ready.append((p, pend[1]))
            for s_ in [x[0], y[0], cA, x[1], y[1], cB]:
                if s_: a(s_)
            if len(ready) >= c["gb"] or dst is None:
                for p, rows_ in ready:
                    for r in rows_:
                        a(f"ds_write_addtid_b32 v{p} offset:{r*ROWB}")
                        a(f"ds_write_addtid_b32 v{p+1} offset:{r*ROWB+256}")
                ready = []
            for h_ in hooks.get(si, []): a(h_)
            pend = (dst, rows) if rows else None
    cst("gend")
    a(f"v_mov_b32 v0, v{VUL}")
    def rec_loads():
        for q in range(2):
            a(f"global_load_dwordx4 {vr(PL+4*q,4)}, v{TG+3}, {sr(S_WS,2)} offset:{1024*q} sc1")
    GA = T + 24
    def gather_loads():
        for q in range(2):
            a(f"global_load_dwordx4 {vr(GA+4*q,4)}, v7, {sr(S_WS,2)} offset:{1024*q} " + FL[c.get("gfl", 0)])
    gotext = f"global_load_dword v10, v{VGW}, {sr(S_WS,2)} sc1"
    def bslot(k): return BR + 4*k
    def btext(cc, k):
        return f"ds_read_b128 {vr(bslot(k),4)}, v{VB} offset:{3584 - 512*cc + (64*k if k < 8 else 16)}"
    def atext(tt, hf):
        base, o = (VA0, 16*tt) if tt < 16 else (VA1, 0)
        return f"ds_read2_b32 {vr(A+4*tt+2*hf,2)}, v{base} offset0:{o+2*hf} offset1:{o+2*hf+1}"
    aorder = [x for t0 in range(1, 8) for x in (t0, t0+8)] + [0, 8, 16]
    border = (1, 2, 3, 4, 5, 6, 7, 0, 8)
    TP12 = {dl: T + 4*(dl-2) for dl in (2, 3, 4)}
    TP34 = {dl: T + 12 + 4*(dl-2) for dl in (2, 3, 4)}
    TQ = {dl: T + 24 + 4*(dl-4) for dl in (4, 5, 6, 7)}
    tl = []
    for tab, off, dls in ((TP12, -16, 2), (TP34, 32, 2), (TP12, -16, 3), (TP34, 32, 3), (TP12, -16, 4), (TP34, 32, 4),
                          (TQ, 48, 4), (TQ, 48, 5), (TQ, 48, 6), (TQ, 48, 7)):
        o = off + 16*dls; r = tab[dls]
        tl.append((("T", r, 0), f"ds_read2_b32 {vr(r,2)}, v{VT} offset0:{o} offset1:{o-1}"))
        tl.append((("T", r, 1), f"ds_read2_b32 {vr(r+2,2)}, v{VT} offset0:{o-2} offset1:{o-3}"))
    mtext = lambda dd, ra, rb, cin: f"v_mfma_f32_16x16x32_bf16 {vr(dd,4)}, {vr(ra,4)}, {vr(rb,4)}, {cin}"
    boxes = ((0, 0, C3), (1, 0, C5), (4, 0, C7), (2, 8, C3), (3, 8, C5), (5, 8, C9))
    D = 32

    def path(Y):
        n_ = "xy"[Y]
        P_ = lambda k: c[n_ + k]
        S = Sched(a, lat=c.get("lat", 5))
        r_ = S.raw
        vm = []
        def vmwait(nm): return f"s_waitcnt vmcnt({len(vm) - 1 - max(i for i, x in enumerate(vm) if x == nm)})"
        ua, ub = P_("ua"), P_("ub_")
        if ua == -2: r_(utext(1, 0, 0))
        nv0 = (ua == -2) + (1 if (c["wpre"] and c["wpat"] >= 0) else 0)
        def dp():
            r_("s_mov_b32 exec_hi, 0"); r_(f"global_load_dword v10, v{TG+2}, {sr(S_WD,2)}" + NT("p")); r_("s_mov_b32 exec_hi, -1")
            vm.append("dpre"); S.pos["dpre"] = S.n
        def u1block():
            cst("u10")
            r_(f"s_waitcnt vmcnt({nv0})")
            cst("u1")
            for ch in range(8):
                r_(f"v_perm_b32 v{BR+ch}, v{U1+ch//2}, v{U1+4+ch//2}, s{64+ch%2}")
            for ch in range(8):
                if ch % 4 == 0:
                    r_(f"s_mov_b32 m0, s{68+ch//4}"); r_("s_nop 0")
                S.lds(("uw", 0, ch), f"ds_write_addtid_b32 v{BR+ch} offset:{(ch%4)*REG+2048}")
        def bar2():
            r_("s_barrier")
            cst("bar2")
            rec_loads(); S.n += 2; vm.append("rec")
            if c["dpre"] and P_("dp") == -1: dp()
            if ua == -1: r_(utext(1, 0, 0)); vm.append("u2a")
            if ub == -1: r_(utext(1, 1, 0)); vm.append("u2b"); S.pos["u2b"] = S.n
            cst("b2i")
        def records():
            cst("rec")
            a(vmwait("rec"))
            cst("rec1")
            a("s_xor_b32 s67, s67, 1")
            a(f"LC_poll1{n_}:")
            a(f"v_xor_b32 v{EP+8}, s66, v{PL+1}")
            for i in (3, 5, 7):
                a(f"v_bitop3_b32 v{EP+8}, v{PL+i}, s66, v{EP+8} bitop3:0xbe")
            a(f"v_or_b32 v{EP+8}, s67, v{EP+8}")
            a(f"v_cmp_ne_u32 vcc, 0, v{EP+8}")
            a(f"s_cbranch_vccnz LC_poll1{n_}_retry")
            a(f"LC_poll1{n_}_ok:")
            if STAMP["on"]: a(f"s_mov_b32 s{ST0+24}, s10")
            S.n += 9
        gv = [(("g", 2*q+i), f"v_lshlrev_b32_e64 v{PL+4*q+i}, 16, v{PL+4*q+2*i}") for q in range(2) for i in range(2)]
        gw = [(("gw", q), f"ds_write_b64 v{VGW}, {vr(PL+4*q,2)} offset:{128*q}") for q in range(2)]
        def gbar():
            cst("gb0"); r_("s_barrier"); cst("gb1")
        gtext = lambda s_: f"ds_read_b128 {vr(GOP+4*s_,4)}, v{VOP} offset:{32*s_}"
        zq = [(("z", z), f"ds_write_addtid_b32 v{VZ} offset:{z}") for z in (KB, KB+1056, KB+2288, KB+2288+256)]
        lat0, S.lat = S.lat, 99
        NG = 6
        lq = list(late)
        if Y:
            u1block()
            r_(f"s_mov_b32 m0, s{S_REG}")
        for s_ in range(NG): S.lds(("G", s_), gtext(s_))
        dsq = [(("G", s_), gtext(s_)) for s_ in range(NG, 16)] + zq
        for s_ in range(16):
            S.wait([("G", s_ if s_ < 8 else 15)])
            r_(f"v_mfma_f32_32x32x16_bf16 {vr(D,16)}, {vr(GOP+4*s_,4)}, {vr(EOP+4*s_,4)}, {vr(D,16) if s_ else 0}")
            nd_ = 0
            for _ in range(2):
                if dsq: S.lds(*dsq.pop(0)); nd_ += 1
            nv_ = 0
            while lq and (nv_ < (4 if s_ < 8 else 5) - nd_ or s_ == 15):
                nv_ += 1 if lq[0].startswith("v_") else 0.5
                r_(lq.pop(0))
        assert not dsq
        cst("kmf")
        if (Y and c["yprio"] == 1) or not Y: r_("s_setprio 0")
        r_("s_waitcnt lgkmcnt(0)"); S.done = len(S.Q) - 1
        if Y and c["yb2"] == 0:
            bar2(); r_("s_nop 7", 8)
        else:
            r_("s_nop 10", 11)
        t = 64
        r_(f"v_add_f32 v{D}, v{D}, v{VDS}")
        r_(f"v_cvt_pk_bf16_f32 v{t+1}, v{D+2}, v{D+3}")
        r_(f"v_cvt_pk_bf16_f32 v{t}, v{D}, v{D+1}")
        r_(f"v_cvt_pk_bf16_f32 v{t+2}, v{D+4}, v{D+4}")
        r_(f"v_cvt_pk_bf16_f32 v{t+3}, v{D+5}, v{D+6}")
        r_(f"v_cvt_pk_bf16_f32 v{t+4}, v{D+1}, v{D+2}")
        r_(f"v_cvt_pk_bf16_f32 v{t+5}, v{D+3}, v{D+7}")
        r_(f"v_cvt_pk_bf16_f32 v{t+6}, v{D+4}, v{D+5}")
        r_(f"v_cvt_pk_bf16_f32 v{t+7}, v{D+6}, v{D+6}")
        r_(f"v_lshlrev_b32 v{t+8}, 16, v{t}")
        r_(f"v_mov_b32 v{t+10}, v{t+7}")
        r_(f"v_and_b32 v{t+11}, 0xffff, v{t+7}")
        u = 56
        r_(f"v_cvt_pk_bf16_f32 v{u+2}, v{D+9}, v{D+9}")
        r_(f"v_cvt_pk_bf16_f32 v{u}, v{D+8}, v{D+9}")
        r_(f"v_cvt_pk_bf16_f32 v{u+1}, v{D+10}, v{D+11}")
        r_(f"v_readlane_b32 s6, v{u+2}, 63")
        S.lds("k0", f"ds_write_b64 v{VK}, {vr(t,2)} offset:{KE}")
        S.lds("k1", f"ds_write_b64 v{VK}, {vr(t+4,2)} offset:{KO+4}")
        S.lds("k2", f"ds_write_b64 v{VK}, {vr(t+2,2)} offset:{KE+512}")
        S.lds("k3", f"ds_write_b64 v{VK}, {vr(t+6,2)} offset:{KO+4+512}")
        S.lds("k8", f"ds_write_b32 v{VTP}, v{u} offset:{TB+64}")
        S.lds("k9", f"ds_write_b16 v{VTQ}, v{u+1} offset:{TB+448}")
        S.lds("k10", f"ds_write_b16_d16_hi v{VTQ}, v{u+1} offset:{TB+448+64}")
        r_("s_mov_b64 exec, 1")
        S.lds("k4", f"ds_write_b32 v{VK}, v{t+8} offset:{KO}")
        r_("s_mov_b32 exec_lo, 0")
        r_("s_mov_b32 exec_hi, 0x80000000")
        S.lds("k5", f"ds_write_b64 v{VK}, {vr(t+10,2)} offset:{KE+1024-504}")
        S.lds("k6", f"ds_write_b32 v{VK}, v{t+10} offset:{KO+1028-504}")
        S.lds("k7", f"ds_write_b32 v{VK}, v{VZ} offset:{KO+1032-504}")
        r_("s_mov_b64 exec, -1")
        for p in range(4):
            r_(f"v_and_b32 v{C2+p}, s6, v{C2+p}")
        nA = 17
        if Y and c["yb2"] == 1: bar2()
        if not Y and c["xu1"] == 0: u1block()
        for i, tt in enumerate(aorder):
            if Y and i == c["yrec"]:
                records()
                for _, t_ in gv: r_(t_)
                for w_ in gw: S.lds(*w_)
            for hf in range(2): S.lds(("A", tt, hf), atext(tt, hf))
            if Y and c["dpre"] and P_("dp") == -10 - i: dp()
            if Y and ua == -10 - i: r_(utext(1, 0, 0)); vm.append("u2a")
            if Y and ub == -10 - i: r_(utext(1, 1, 0)); vm.append("u2b"); S.pos["u2b"] = S.n
            if Y and i == min(c["yrec"] + 3, 16):
                S.wait([("gw", 1)]); gbar(); S.pos["gbar"] = S.n
        if Y and c["yprio"] == 2: r_("s_setprio 0")
        cst("tail")
        if not Y:
            if c["xT"] == 1:
                for w_ in tl: S.lds(*w_)
            if c["xu1"] == 1: u1block()
            S.wait([("uw", 0, 7)])
            bar2()
        for k in border: S.lds(("B", 0, k), btext(0, k))
        S.lat = lat0
        S.m = 50
        S.qm = [S.m] * len(S.Q)
        ms, fs = [], []
        M0_ = S.m
        started = set(); lastacc = {}
        def mm(cc, Tt, ra, rb, needs, dist=None):
            if Tt > 7: return None
            nm = ("m", len(ms))
            ms.append(Op("M", nm, mtext(ACC+4*Tt, ra, rb, vr(ACC+4*Tt,4) if Tt in started else 0), needs=needs, dist=dist))
            started.add(Tt); lastacc[Tt] = nm
            return nm
        for tt in aorder[nA:]:
            for hf in range(2): fs.append(Op("D", ("A", tt, hf), atext(tt, hf), after=[("A", tt, 0)] if hf else []))
        if Y or c["xT"] == 0:
            for nm, t_ in tl: fs.append(Op("D", nm, t_, after=[("T", nm[1], 0)] if nm[2] else [], at=M0_ + c.get("tat", 10)))
        ne = 10 if c["fold"] else 14
        def epilogue(t_, after):
            r = ACC + 4*t_
            alt = t_ >= 3 and t_ % 2 == 1
            E = U2 if alt else EP
            N = C7 if (alt and t_ >= 5) else EP + 8
            pl = {0: None, 1: 0, 2: 1, 3: None, 4: 2, 5: 3, 6: 4, 7: 5}[t_]
            pn = {0: None, 1: 0, 2: 1, 3: 2, 4: 3, 5: None, 6: 4, 7: 5}[t_]
            af = list(after) + ([("e", pl, ne-3)] if pl is not None else [])
            if t_ == 3: af += [("up", k) for k in range(8)]
            if t_ >= 4: af.append("ubar")
            fs.append(Op("D", ("u", t_), f"ds_read_b64 {vr(E,2)}, v{VU} offset:{3584-512*t_+24}", after=af))
            fs.append(Op("D", ("gl", t_), f"ds_read_b128 {vr(E+4,4)}, v{VG} offset:{1024*t_}", after=af + [("u", t_)]))
            L = [f"v_and_b32 v{N}, 0xffff0000, v{E+1}", f"v_lshlrev_b32_e64 v{N+1}, 16, v{E+1}",
                 f"v_and_b32 v{N+2}, 0xffff0000, v{E}", f"v_lshlrev_b32_e64 v{N+3}, 16, v{E}"]
            if not c["fold"]: L += [f"v_sub_f32_e64 v{r+i}, v{r+i}, v{N+i}" for i in range(4)]
            L += [f"v_fma_f32 v{r+i}, v{E+4+i}, v{r+i}, v{N+i}" for i in range(4)]
            L += [f"v_cvt_pk_bf16_f32 v{E+2}, v{r}, v{r+1}", f"v_cvt_pk_bf16_f32 v{E+3}, v{r+2}, v{r+3}"]
            for i, l in enumerate(L):
                af = [("e", t_, i-1)] if i else ([("e", pn, ne-3)] if pn is not None else [])
                if i == 0 and t_ == 5: af.append(("box", 3, 4))
                if i == ne-2 and pl is not None: af.append(("y", pl))
                fs.append(Op("V", ("e", t_, i), l, after=af, needs=[("gl", t_)] if i == 0 else [], dist={lastacc[t_]: 8} if i == 4 else None))
            fs.append(Op("D", ("y", t_), f"ds_write_b64 v{VY}, {vr(E+2,2)} offset:{YB+576*t_}", after=[("e", t_, ne-1)] + ([("y", t_-1)] if t_ else []),
                         cost=3, dl=lastacc[t_][1] + (c.get("epdl", 14) if t_ else 30)))
        nst = [0]; lastq = []; lastst = []
        def store(P, half=None):
            k = nst[0]; nst[0] += 1
            ytile = 2*P + 1 if half is None else 2*P + half
            prevbar = "gbar" if k == 0 else "ubar" if k == 1 else ("bar", k-1)
            fs.append(Op("X", ("bar", k), lambda: [r_("s_barrier"), cst(f"ba{ {1:0, 3:1, 5:2, 6:3, 7:4}.get(ytile) }")], needs=[("y", ytile)],
                         after=[prevbar], at=M0_ + c.get(f"{n_}b{k}", 0), dl=lastacc[ytile][1] + c.get("stdl", 22) - 7))
            if half is not None and half != Y: return
            fs.append(Op("D", ("t0", k), f"ds_read_b64_tr_b16 {vr(SD,2)}, v{VT0} offset:{YB+1152*P}", after=[("bar", k)] + lastst[-1:] + (["dpre"] if c["dpre"] else [])))
            fs.append(Op("D", ("t1", k), f"ds_read_b64_tr_b16 {vr(SD+2,2)}, v{VT1} offset:{YB+1152*P}", after=[("t0", k)]))
            def emit():
                r_(f"buffer_store_dwordx4 {vr(SD,4)}, v11, {sr(SRD_OUT,4)}, s{(S_COL, 9, 8, 62)[P]} offen" + (" nt" if c.get("ont", 0) else ""))
                vm.append(("st", k)); cst(f"st{P}")
            fs.append(Op("X", ("st", k), emit, needs=[("t1", k)], after=["u2w"], cost=2, dl=lastacc[ytile][1] + c.get("stdl", 22)))
            lastst.append(("st", k))
        for cc in range(8):
            hasP, hasQ = cc <= 5, cc <= 3
            def nxt(k, after):
                if cc < 7 and (k < 8 or cc + 1 <= 5):
                    fs.append(Op("D", ("B", cc+1, k), btext(cc+1, k), after=[after] + (["ubar"] if cc + 1 >= 4 else [])))
            an = (lambda tt: [("A", tt, 1)]) if cc == 0 else (lambda tt: [])
            tn = (lambda r: [("T", r, 1)]) if cc == 1 else (lambda r: [])
            zero = ((0, A, 0), (1, A+32, 8), (2, A+64, 16), (4, C2, None))
            mz = lambda dl, ra, tt: mm(cc, cc+dl, ra, bslot(0), [("B", cc, 0)] + (an(tt) if tt is not None else []))
            l0 = None
            if cc >= c.get("split", 5):
                for t0 in range(1, 8): mm(cc, cc, A+4*t0, bslot(t0), [("B", cc, t0)])
                l0 = mz(*zero[0])
                for t0 in range(1, 8):
                    if cc < 7: nxt(t0, mm(cc, cc+1, A+32+4*t0, bslot(t0), []))
                for z in zero[1:]: l0 = mz(*z) or l0
            else:
                for t0 in range(1, 8):
                    l = mm(cc, cc, A+4*t0, bslot(t0), [("B", cc, t0)] + an(t0))
                    l = mm(cc, cc+1, A+32+4*t0, bslot(t0), an(t0+8)) or l
                    nxt(t0, l)
                for z in zero: l0 = mz(*z) or l0
            if cc == 0:
                if not Y:
                    fs.append(Op("X", "rec", records, at=M0_ + c["xrec"], dl=-50, cost=8))
                    for nm, t_ in gv: fs.append(Op("V", nm, t_, after=["rec"]))
                    for q, (nm, t_) in enumerate(gw): fs.append(Op("D", nm, t_, after=[("g", 2*q), ("g", 2*q+1)], cost=3))
                    fs.append(Op("X", "gbar", gbar, needs=[("gw", 0), ("gw", 1)], at=M0_ + c["xgb"], dl=c["xgb"] - 20))
                if c["dpre"] and P_("dp") >= 0:
                    fs.append(Op("X", "dpre", dp, at=M0_ + P_("dp"), dl=P_("dp") - 20, cost=3))
                if c.get(n_ + "gp", 0):
                    def gp():
                        for q in range(2):
                            r_(f"global_load_dword v10, v7, {sr(S_WS,2)} offset:{1024*q} sc1"); vm.append("gp")
                    fs.append(Op("X", "gp", gp, at=M0_ + c[n_ + "gp"], dl=c[n_ + "gp"] - 20, cost=2))
                if ua >= 0: fs.append(Op("X", "u2a", lambda: [r_(utext(1, 0, 0)), vm.append("u2a")], at=M0_ + ua, dl=ua - 20, cost=2))
                if ub >= 0: fs.append(Op("X", "u2b", lambda: [r_(utext(1, 1, 0)), vm.append("u2b")], after=["u2a"] if ua >= 0 else [], at=M0_ + ub, dl=ub - 20, cost=2))
                fs.append(Op("X", "u2w", lambda: [cst("uw0"), r_(vmwait("u2b")), cst("uw1")], after=[("t1", 0), "u2b"], at=M0_ + P_("uw")))
                epilogue(0, ["gbar"])
                for hf in range(2):
                    for k in range(4):
                        ch = 4*hf + k
                        fs.append(Op("V", ("up", ch), f"v_perm_b32 v{SD+k}, v{U2+ch//2}, v{U2+4+ch//2}, s{64+ch%2}",
                                     after=["u2w"] + ([("uw", 1, ch-4)] if hf else []), dist={("st", 0): 2}))
                    fs.append(Op("X", ("um", hf), (lambda hf=hf: r_(f"s_mov_b32 m0, s{68+hf}")), after=[("uw", 1, 3)] if hf else []))
                    for k in range(4):
                        ch = 4*hf + k
                        fs.append(Op("D", ("uw", 1, ch), f"ds_write_addtid_b32 v{SD+k} offset:{k*REG}",
                                     after=[("up", ch)] + ([("uw", 1, ch-1)] if ch else []), dist={("um", hf): 1}))
                fs.append(Op("X", "ubar", lambda: r_("s_barrier"), needs=[("uw", 1, 7)], at=M0_ + c.get(n_ + "ub", 0)))
            else:
                epilogue(cc, [])
            if cc >= 4: store(cc//2, cc % 2)
            elif cc % 2 == 1: store(cc//2)
            if cc == 4:
                def gat():
                    if c["go"]:
                        r_(vmwait("go"))
                        r_(f"v_cmp_ne_u32 vcc, s{S_TAG}, v10")
                        r_(f"s_cbranch_vccnz LC_nogat{n_}")
                    gather_loads(); vm.append("gat0"); vm.append("gat")
                    a(f"LC_nogat{n_}:")
                if c["go"]:
                    fs.append(Op("V", "ga0", f"v_and_b32_e64 v{VGW}, 7, v1", after=["ubar"]))
                    fs.append(Op("V", "ga1", f"v_lshl_add_u32 v{VGW}, v{VGW}, 7, s29", after=["ga0"]))
                    fs.append(Op("X", "go", lambda: [r_(gotext), vm.append("go")], after=["ga1"], at=M0_ + P_("gat") - c["golead"], dl=P_("gat") - c["golead"], cost=2))
                fs.append(Op("X", "gat", gat, after=["go"] if c["go"] else [], at=M0_ + P_("gat"), dl=P_("gat"), cost=3))
            pc = cc - 1
            if 0 <= pc <= 5:
                for dl in (2, 3, 4):
                    mm(cc, pc+dl, BX, TP12[dl], tn(TP12[dl]), {("cv", pc, 0, p): 2 for p in range(4)})
                    mm(cc, pc+dl, BX+8, TP34[dl], tn(TP34[dl]), {("cv", pc, 2, p): 2 for p in range(4)})
            if 0 <= pc <= 3:
                for dl in (4, 5, 6, 7):
                    mm(cc, pc+dl, BX+16, TQ[dl], tn(TQ[dl]), {("cv", pc, 4, p): 2 for p in range(4)})
            if cc == 4: lastq.append(ms[-1].name)
            if hasP:
                for (i, k, rc) in boxes:
                    if i < 4 or hasQ:
                        ms.append(Op("M", ("box", cc, i), mtext(BX+4*i, bslot(k), rc, 0), needs=[("B", cc, k)]))
                        if k == 0: l0 = ("box", cc, i)
                nxt(8, ms[-1].name)
                for i in ((0, 2, 4) if hasQ else (0, 2)):
                    for p in range(4):
                        fs.append(Op("V", ("cv", cc, i, p), f"v_cvt_pk_bf16_f32 v{BX+4*i+p}, v{BX+4*i+p}, v{BX+4*i+4+p}",
                                     dist={("box", cc, i): 8, ("box", cc, i+1): 8}))
            nxt(0, l0)
        [f for f in fs if f.name == "gat"][0].after += lastq
        S.log = []
        S.run(ms, fs, budget=lambda i: 2, wfree=c["wfree"],
              pre=[f.name for f in fs if f.name[0] == "A"], npre=2, lead={"B": c["blead"], "cv": c.get("clead", 8), "T": c.get("tlead", 8)})
        if c.get("log"): print(n_, "".join(S.log))
        cst("gw0")
        if c["go"]: a("s_cbranch_vccnz LC_late")
        a(vmwait("gat"))
        cst("gw1")
    a("s_bitcmp1_b32 s3, 2")
    a("s_cbranch_scc1 LC_ypath")
    path(0)
    a("s_branch LC_final")
    a("LC_ypath:")
    path(1)
    a("LC_final:")
    for i in range(4): a(f"s_bfe_u32 s{12+i}, s{S_TAG}, {0x80000 + 8*i:#x}")
    a("s_mov_b32 s10, 0")
    a("s_cmp_eq_u32 s3, 7")
    a("s_cbranch_scc1 LC_poll4")
    a("LC_poll3:")
    for i in range(8):
        a(f"v_xor_b32 v{64+i}, s{12+i%4}, v{GA+i}")
    a("v_or3_b32 v3, v64, v65, v66")
    a("v_or3_b32 v4, v67, v68, v69")
    a("v_or3_b32 v3, v70, v71, v3")
    a("v_or_b32 v3, v3, v4")
    a("v_and_b32 v3, 0xff, v3")
    a("v_cmp_ne_u32 vcc, 0, v3")
    a("s_cbranch_vccnz LC_poll3_retry")
    a("LC_poll3_ok:")
    if STAMP["on"]: a(f"s_mov_b32 s{ST0+22}, s10")
    GA_, GA = GA, 64
    a(f"v_pk_add_f32 {vr(GA,2)}, {vr(GA,2)}, {vr(GA+4,2)}")
    a(f"v_pk_add_f32 {vr(GA+2,2)}, {vr(GA+2,2)}, {vr(GA+6,2)}")
    a("s_lshl_b32 s6, s3, 8")
    a(f"s_add_u32 m0, s6, {RED2}")
    a(f"v_permlane32_swap_b32 v{GA}, v{GA+2}")
    a(f"v_permlane32_swap_b32 v{GA+1}, v{GA+3}")
    a(f"v_pk_add_f32 {vr(GA,2)}, {vr(GA,2)}, {vr(GA+2,2)}")
    a("s_nop 1")
    a(f"v_permlane16_swap_b32 v{GA}, v{GA+1}")
    a(f"v_add_f32 v{GA}, v{GA}, v{GA+1}")
    a(f"ds_write_addtid_b32 v{GA}")
    a("s_waitcnt lgkmcnt(0)")
    a("s_barrier")
    stamp_dump(a, 0, 13)
    a("s_endpgm")
    GA = GA_
    a("LC_poll4:")
    a(f"v_cmp_ne_u32 vcc, s{S_TAG}, v{GA+1}")
    a("v_and_b32 v3, 7, v1")
    a("s_cbranch_vccnz LC_poll4_retry")
    a("LC_poll4_ok:")
    a(f"v_not_b32 v64, v{GA}")
    a("v_and_b32 v64, 2047, v64")
    a(f"v_mul_u32_u24 v4, {REG}, v3")
    a("v_lshrrev_b32 v5, 8, v64")
    a("v_bfe_u32 v8, v64, 2, 2")
    a("v_lshl_add_u32 v5, v5, 2, v8")
    a("v_mul_u32_u24 v5, 144, v5")
    a("v_bfe_u32 v8, v64, 4, 4")
    a("v_lshl_add_u32 v4, v8, 3, v4")
    a("v_and_b32 v8, 3, v64")
    a("v_lshl_add_u32 v5, v8, 1, v5")
    a("v_add_u32 v4, v4, v5")
    a(f"ds_read_u16 v66, v4 offset:{YB}")
    a("v_lshlrev_b32 v64, 11, v64")
    a("v_lshl_add_u32 v64, v3, 1, v64")
    a("v_lshlrev_b32 v2, 2, v1")
    a(f"v_add_u32 v2, {RED2}, v2")
    a("s_waitcnt lgkmcnt(0)")
    a("v_lshlrev_b32 v66, 16, v66")
    a("s_barrier")
    for w in range(0, 6, 2):
        a(f"ds_read2st64_b32 {vr(68+w,2)}, v2 offset0:{w} offset1:{w+1}")
    a("ds_read_b32 v67, v2 offset:1536")
    a("s_waitcnt lgkmcnt(2)")
    a("v_pk_add_f32 v[68:69], v[68:69], v[70:71]")
    a("s_waitcnt lgkmcnt(0)")
    a("v_pk_add_f32 v[66:67], v[66:67], v[72:73]")
    a("v_pk_add_f32 v[66:67], v[66:67], v[68:69]")
    a("v_add_f32 v66, v66, v67")
    a("v_cvt_pk_bf16_f32 v66, v66, v66")
    a(f"buffer_store_short v66, v64, {sr(SRD_OUT,4)}, s{S_COL} offen")
    stamp_dump(a, 0, 13)
    a("s_endpgm")
    for k in (3, 4):
        a(f"LC_poll{k}_retry:")
        a("s_add_u32 s10, s10, 1")
        a(f"s_cmp_ge_u32 s10, {SPIN if not c.get('x_nowait') else 0}")
        a(f"s_cbranch_scc1 LC_poll{k}_ok")
        if c.get("gsl", 2): a(f"s_sleep {c.get('gsl', 2)}")
        a("s_mov_b64 exec, vcc")
        gather_loads()
        a("s_mov_b64 exec, -1")
        a("s_waitcnt vmcnt(0)")
        a(f"s_branch LC_poll{k}")
    if c["go"]:
        a("LC_late:")
        a("s_mov_b32 s10, 0")
        a("LC_late1:")
        a(gotext)
        a("s_add_u32 s10, s10, 1")
        a(f"s_cmp_ge_u32 s10, {SPIN}")
        a("s_waitcnt vmcnt(0)")
        a(f"v_cmp_ne_u32 vcc, s{S_TAG}, v10")
        a("s_cbranch_scc1 LC_late2")
        a("s_cbranch_vccnz LC_late1")
        a("LC_late2:")
        if STAMP["on"]: a(f"s_mov_b32 s{ST0+24}, s10")
        gather_loads()
        a("s_waitcnt vmcnt(0)")
        a("s_branch LC_final")
    for n_ in "xy":
        a(f"LC_poll1{n_}_retry:")
        a("s_add_u32 s10, s10, 1")
        a(f"s_cmp_ge_u32 s10, {SPIN}")
        a(f"s_cbranch_scc1 LC_poll1{n_}_ok")
        a(f"v_mov_b32 v{EP+9}, 0")
        a(f"global_load_dwordx2 {vr(TG,2)}, v{EP+9}, {sr(S_DBG,2)} sc1")
        a("s_mov_b64 exec, vcc")
        rec_loads()
        a("s_mov_b64 exec, -1")
        a("s_waitcnt vmcnt(0)")
        a(f"v_readfirstlane_b32 s66, v{TG}")
        a(f"v_readfirstlane_b32 s67, v{TG+1}")
        a("s_xor_b32 s67, s67, 1")
        a(f"s_branch LC_poll1{n_}")

def build():
    a = Asm()
    stamp_init(a)
    a("s_cmp_ge_u32 s2, 256")
    a("s_cbranch_scc1 L_end")
    a("s_load_dwordx16 s[16:31], s[0:1], 0")
    a("s_load_dwordx16 s[32:47], s[0:1], 64")
    a("v_lshrrev_b32 v2, 6, v0")
    a("v_and_b32 v1, 63, v0")
    a("v_readfirstlane_b32 s3, v2")
    if CFG.get("cpre", 1):
        a("s_cmp_lg_u32 s3, 7")
        a("s_cbranch_scc1 L_nocpre")
        a("s_getpc_b64 s[4:5]")
        a("L_pc:")
        a("s_bfe_u32 s6, s2, 0x20003")
        a("s_lshl_b32 s6, s6, 13")
        a("v_lshl_add_u32 v3, v1, 7, s6")
        a("v_min_u32 v3, L_codeend-L_pc-4, v3")
        a("global_load_dword v63, v3, s[4:5]")
        a("L_nocpre:")
    moe(a, True)
    a("L_conv:")
    conv(a)
    a("L_moe:")
    moe(a)
    a("L_end:")
    a("s_endpgm")
    a("L_codeend:")
    return header([f"; @launch grid=(256,1,1) block=(512,1,1) lds={LDS_TOTAL}"]) + kstart(KN) + a.text() + RODATA + kdesc(KN, 256)

if __name__ == "__main__":
    import sys
    from lint import lint
    name = "v20"
    for kv in sys.argv[1:]:
        if "=" in kv:
            k, v = kv.split("="); CFG[k] = int(v)
        else: name = kv
    t = build()
    assert not lint(t), lint(t)
    open(f"gen/{name}.s", "w").write(t)
    if CFG.get("only"): sys.exit(0)
    CFG["log"] = 0
    STAMP["on"] = True
    open(f"gen/{name}_ts.s", "w").write(build())
    STAMP["clk"] = True
    open(f"gen/{name}_clk.s", "w").write(build())
```
